```python
import torch

def _softmax(x, axis=-1):
    return torch.softmax(x, dim=axis)

def _gelu(x):
    return torch.nn.functional.gelu(x, approximate='tanh')

def _silu(x):
    return torch.nn.functional.silu(x)

def _sigmoid(x):
    return torch.sigmoid(x)

def _layernorm(x, axis=-1, eps=1e-05):
    m = x.mean(dim=axis, keepdim=True)
    v = x.var(dim=axis, keepdim=True, unbiased=False)
    return (x - m) / torch.sqrt(v + eps)

def _scatter_add(tgt, idx, src, axis=0):
    return tgt.clone().index_add_(axis, idx, src)

def _segment_sum(src, seg, n):
    out = torch.zeros((n,) + src.shape[1:], dtype=src.dtype)
    return out.index_add_(0, seg, src)

def _pad(x, pw):
    flat = tuple((v for pair in reversed(pw) for v in pair))
    return torch.nn.functional.pad(x, flat)
kernel_name = 'adaLN_cond__memory_aug_recurrent_mem_tr__mixer_channel_mlp__prompt'

def setup_inputs():

    _w = lambda a: (lambda t: t.to(torch.bfloat16) if t.is_floating_point() else t)(torch.as_tensor(a))

    def _A_setup():
        B, S, Dm = (1, 2048, 640)
        H, Dh = (32, 128)
        M, seg = (8, 32)
        seg = min(seg, S)
        S = S // seg * seg
        return {'x': _w((lambda *s: torch.randn(*s, dtype=torch.bfloat16) * 0.05)(B, S, Dm)), 'mem0': _w((lambda *s: torch.randn(*s, dtype=torch.bfloat16) * 0.4)(B, M, Dm)), 'Wq': _w((lambda *s: torch.randn(*s, dtype=torch.bfloat16) * 1.6)(Dm, H, Dh) * Dm ** (-0.5)), 'Wk': _w((lambda *s: torch.randn(*s, dtype=torch.bfloat16) * 1.6)(Dm, H, Dh) * Dm ** (-0.5)), 'Wv': _w((lambda *s: torch.randn(*s, dtype=torch.bfloat16) * 0.4)(Dm, H, Dh) * Dm ** (-0.5)), 'Wo': _w((lambda *s: torch.randn(*s, dtype=torch.bfloat16) * 0.4)(H, Dh, Dm) * (H * Dh) ** (-0.5)), 'seg_len': seg}
    _A_in = _A_setup()

    def _B_setup():
        B, S, D, F = (1, 2048, 640, 1728)
        return {'x': _w((lambda *s: torch.randn(*s, dtype=torch.bfloat16) * 0.05)(B, S, D)), 'w1': _w((lambda *s: torch.randn(*s, dtype=torch.bfloat16) * 1.6)(D, F) * D ** (-0.5)), 'b1': _w((lambda *s: torch.randn(*s, dtype=torch.bfloat16) * 0.8)(F)), 'w2': _w((lambda *s: torch.randn(*s, dtype=torch.bfloat16) * 0.1)(F, D) * F ** (-0.5)), 'b2': _w((lambda *s: torch.randn(*s, dtype=torch.bfloat16) * 0.1)(D))}
    _B_in = _B_setup()
    return {'A_x': _A_in['x'], 'A_mem0': _A_in['mem0'], 'A_Wq': _A_in['Wq'], 'A_Wk': _A_in['Wk'], 'A_Wv': _A_in['Wv'], 'A_Wo': _A_in['Wo'], 'A_seg_len': _A_in['seg_len'], 'B_x': _B_in['x'], 'B_w1': _B_in['w1'], 'B_b1': _B_in['b1'], 'B_w2': _B_in['w2'], 'B_b2': _B_in['b2'], 'c': _w((lambda *s: torch.randn(*s, dtype=torch.bfloat16) * 0.1)(1, 640) * 8.0), 'w_mod': _w((lambda *s: torch.randn(*s, dtype=torch.bfloat16) * 0.1)(640, 6 * 640) * 640 ** (-0.5) * 8.0)}

def reference(A_x, A_mem0, A_Wq, A_Wk, A_Wv, A_Wo, A_seg_len, B_x, B_w1, B_b1, B_w2, B_b2, c, w_mod):

    def _A_ref(x, mem0, Wq, Wk, Wv, Wo, seg_len):
        B, S, Dm = x.shape
        H, Dh = (Wq.shape[1], Wq.shape[2])
        M = mem0.shape[1]
        scale = Dh ** (-0.5)
        n_seg = S // seg_len
        L = M + seg_len
        idx = torch.arange(L)
        mask = (idx[:, None] < M) | (idx[:, None] >= idx[None, :])
        mem = mem0
        outs = []
        for s in range(n_seg):
            xs = x[:, s * seg_len:(s + 1) * seg_len, :].clone()
            h = torch.concatenate([mem, xs], axis=1)
            q = torch.einsum('btd,dhe->bhte', h, Wq)
            k = torch.einsum('btd,dhe->bhte', h, Wk)
            v = torch.einsum('btd,dhe->bhte', h, Wv)
            scores = torch.einsum('bhqe,bhke->bhqk', q, k) * scale
            scores = torch.where(mask[None, None], scores, -1000000000.0)
            p = _softmax(scores, axis=-1)
            o = torch.einsum('bhqk,bhke->bhqe', p, v)
            o = torch.einsum('bhte,hed->btd', o, Wo)
            mem = o[:, :M, :].clone()
            outs.append(o[:, M:, :])
        return torch.concatenate(outs, axis=1)

    def _B_ref(x, w1, b1, w2, b2):
        y = _layernorm(x, axis=-1)
        h = _gelu(torch.einsum('bsd,df->bsf', y, w1) + b1)
        return torch.einsum('bsf,fd->bsd', h, w2) + b2
    x = A_x
    mod = (_silu(c) @ w_mod).reshape(c.shape[0], 6, 1, -1)
    sa, ca, ga, sb, cb, gb = (mod[:, 0].clone(), mod[:, 1].clone(), mod[:, 2].clone(), mod[:, 3].clone(), mod[:, 4].clone(), mod[:, 5].clone())
    h = _layernorm(x, axis=-1) * (1 + ca) + sa
    x = x + ga * _A_ref(h, A_mem0, A_Wq, A_Wk, A_Wv, A_Wo, A_seg_len)
    h = _layernorm(x, axis=-1) * (1 + cb) + sb
    x = x + gb * _B_ref(h, B_w1, B_b1, B_w2, B_b2)
    return x
```

```python
import re

TRANS = ('v_exp_f32','v_log_f32','v_rcp_f32','v_rsq_f32','v_sqrt_f32','v_sin_f32','v_cos_f32','v_rcp_iflag_f32')

def regs_of(tok):
    tok = tok.strip()
    tok = tok.lstrip('-')
    m = re.fullmatch(r'abs\((.*)\)', tok) or re.fullmatch(r'\|(.*)\|', tok)
    if m: tok = m.group(1)
    m = re.fullmatch(r'([vas])(\d+)', tok)
    if m: return {(m.group(1), int(m.group(2)))}
    m = re.fullmatch(r'([vas])\[(\d+):(\d+)\]', tok)
    if m: return {(m.group(1), i) for i in range(int(m.group(2)), int(m.group(3))+1)}
    if tok == 'vcc': return {('s','vcc')}
    if tok in ('vcc_lo','vcc_hi'): return {('s','vcc')}
    if tok == 'm0': return {('s','m0')}
    if tok in ('exec','exec_lo','exec_hi'): return {('s','exec')}
    return set()

class Ins:
    __slots__ = ('text','mn','ops','mods','kind','w','r','passes','srcC','srcAB','data','label','target','ws','dpp','lds')
    def __init__(self, text):
        self.text = text
        t = text.split(';')[0].strip()
        self.label = None; self.target = None; self.kind = 'none'; self.w = set(); self.r = set()
        self.passes = 0; self.srcC = set(); self.srcAB = set(); self.data = set(); self.ws = 0; self.dpp = False; self.lds = False
        self.mn = ''; self.ops = []; self.mods = ''
        if not t or t.startswith('.'):
            if t.endswith(':'): self.label = t[:-1]; self.kind = 'label'
            return
        if t.endswith(':'):
            self.label = t[:-1]; self.kind = 'label'; return
        parts = t.split(None, 1)
        mn = parts[0]; rest = parts[1] if len(parts) > 1 else ''
        mn = re.sub(r'_(e32|e64)$', '', mn)
        self.mn = mn; self.ws = 1
        toks = [x.strip() for x in rest.split(',')] if rest else []
        rest2 = re.sub(r'\[(\d+),(\d+)(?:,(\d+))?(?:,(\d+))?\]', '[]', rest)
        toks = [x.strip() for x in rest2.split(',')] if rest2 else []
        if toks:
            last = toks[-1].split(None, 1)
            toks[-1] = last[0]; self.mods = last[1] if len(last) > 1 else ''
        self.ops = toks
        R = [regs_of(x) for x in toks]
        U = lambda l: set().union(*l) if l else set()
        if mn == 's_nop':
            self.kind = 'salu'; self.ws = int(toks[0], 0) + 1
        elif mn.startswith('s_cbranch') or mn == 's_branch':
            self.kind = 'branch'; self.target = toks[0]
        elif mn == 's_endpgm':
            self.kind = 'end'
        elif mn.startswith('s_'):
            self.kind = 'salu'
            if mn.startswith('s_cmp') or mn.startswith('s_bitcmp') or mn in ('s_waitcnt','s_barrier','s_setprio','s_sleep'):
                self.r = U(R)
            else:
                self.w = R[0] if R else set(); self.r = U(R[1:])
                if 'saveexec' in mn: self.w = self.w | {('s','exec')}
        elif mn.startswith('v_mfma') or mn.startswith('v_smfmac'):
            self.kind = 'mfma'
            self.passes = 8 if '32x32' in mn else 4
            self.w = R[0]
            if mn.startswith('v_smfmac'):
                self.srcC = R[0]; self.srcAB = R[1] | R[2] | R[3]
            else:
                self.srcC = R[3]; self.srcAB = R[1] | R[2]
            self.r = self.srcC | self.srcAB
        elif mn.startswith('v_'):
            self.kind = 'valu'
            self.dpp = mn.endswith('_dpp') or 'quad_perm' in self.mods or 'row_' in self.mods
            if mn == 'v_nop': pass
            elif mn.startswith('v_permlane'):
                self.w = R[0] | R[1]; self.r = R[0] | R[1]
            elif '_co_' in mn and not mn.startswith('v_cmp'):
                self.w = R[0] | R[1]; self.r = U(R[2:])
            else:
                self.w = R[0]; self.r = U(R[1:])
                if mn.startswith('v_fmac') or mn.startswith('v_dot2c') or mn.startswith('v_writelane') or self.dpp: self.r = self.r | R[0]
                if mn.startswith('v_cmpx'): self.w = self.w | {('s','exec')}
        elif mn.startswith('buffer_') or mn.startswith('global_'):
            self.kind = 'vmem'
            self.lds = ' lds' in (' ' + self.mods) or '_lds_' in mn
            if mn in ('buffer_inv','buffer_wbl2'): return
            if self.lds: self.r = U(R) | {('s','m0')}
            elif 'load' in mn: self.w = R[0]; self.r = U(R[1:])
            elif 'atomic' in mn:
                self.r = U(R)
                if 'sc0' in self.mods.split(): self.w = R[0]
            else:
                self.r = U(R)
                self.data = R[0] if mn.startswith('buffer_') else R[1]
        elif mn.startswith('ds_'):
            self.kind = 'ds'
            if mn.startswith('ds_read') or 'permute' in mn or 'swizzle' in mn or '_rtn' in mn: self.w = R[0]; self.r = U(R[1:])
            else: self.r = U(R)
        else:
            raise ValueError('unknown instruction: ' + text)

def need(p, c):
    n = 0
    vw = {x for x in p.w if x[0] in 'va'}
    sw = {x for x in p.w if x[0] == 's'}
    if p.kind == 'valu':
        if c.kind == 'mfma' and vw & c.r: n = max(n, 2)
        if c.kind == 'valu':
            if vw & c.r:
                if c.dpp or c.mn.startswith('v_permlane'): n = max(n, 2)
                if c.mn.startswith('v_readlane') or c.mn.startswith('v_readfirstlane'): n = max(n, 1)
                if p.mn in TRANS and c.mn not in TRANS: n = max(n, 1)
                if p.mn in TRANS: n = max(n, 1)
                if 'op_sel' in p.mods and not p.mn.startswith('v_pk_'): n = max(n, 1)
                if 'dst_sel' in p.mods: n = max(n, 1)
            if sw & c.r:
                n = max(n, 4 if c.mn.startswith('v_readlane') or c.mn.startswith('v_writelane') else 2)
            if ('s','exec') in sw: n = max(n, 5 if c.dpp else 4)
        if c.kind == 'vmem' and sw & c.r: n = max(n, 5)
        if c.kind == 'mfma' and ('s','exec') in sw: n = max(n, 4)
        if c.kind == 'salu' and sw & c.r: n = max(n, 1)
        if p.mn in TRANS and c.kind in ('vmem','ds') and vw & c.r: n = max(n, 1)
    elif p.kind == 'mfma':
        big = 12 if p.passes == 8 else 8
        if c.kind == 'mfma':
            if vw & c.srcAB: n = max(n, big)
            if vw & c.srcC and (vw != c.srcC or p.mn != c.mn): n = max(n, big - 2)
            if vw & c.w and not (vw & c.srcC) and p.mn != c.mn: n = max(n, big)
        elif c.kind in ('valu','vmem','ds'):
            if vw & (c.r | c.w): n = max(n, big)
            if c.kind == 'valu' and p.srcC & c.w: n = max(n, 7 if p.passes == 8 else 3)
    elif p.kind == 'vmem':
        if len(p.data) >= 3 and p.data & c.w: n = max(n, 2)
    elif p.kind == 'salu':
        if ('s','m0') in sw and c.kind == 'vmem' and c.lds: n = max(n, 1)
    return n

class Asm:
    def __init__(self):
        self.lines = []; self.uid = 0
    def __call__(self, s):
        for l in s.split('\n'):
            l = l.strip()
            if l: self.lines.append(l)
    def lab(self, stem):
        self.uid += 1; return f'L_{stem}_{self.uid}'
    def finalize(self, verbose=False):
        ins = [Ins(l) for l in self.lines]
        out = []; inserted = 0
        MAXD = 12
        def build():
            tgt = {}
            for i, x in enumerate(ins):
                if x.kind == 'branch': tgt.setdefault(x.target, []).append(i)
            return tgt
        tgt = build()
        pad = [0]*len(ins)
        for i, c in enumerate(ins):
            if c.kind in ('none','label','end','branch') or c.mn == 's_nop': continue
            worst = 0
            stack = [(i-1, 0)]; seen = set()
            while stack:
                j, d = stack.pop()
                while j >= 0 and d < MAXD:
                    if (j, d) in seen: break
                    seen.add((j, d))
                    p = ins[j]
                    if p.kind == 'label':
                        for b in tgt.get(p.label, []): stack.append((b - 1, d + 1 + pad[b]))
                        j -= 1
                        k = j
                        while k >= 0 and ins[k].kind == 'none': k -= 1
                        if k >= 0 and (ins[k].mn == 's_branch' or ins[k].kind == 'end'): break
                        continue
                    if p.kind == 'none': j -= 1; continue
                    r = need(p, c) - d
                    if r > worst: worst = r
                    d += p.ws + pad[j]
                    j -= 1
            pad[i] = worst
        for i, c in enumerate(ins):
            if pad[i]:
                out.append(f'    s_nop {pad[i]-1}'); inserted += pad[i]
                if verbose: print('pad', pad[i], 'before', c.text)
            out.append(c.text if c.kind in ('label','none') else '    ' + c.text)
        self.inserted = inserted
        return '\n'.join(out) + '\n'
```

```python
from layout import *
import struct, math
def f2u(x): return struct.unpack('<I', struct.pack('<f', x))[0]
WS = 's[4:7]'
sGRP, sIDX, sW = 's24', 's25', 's26'
sSPIN = 's31'
sFAST = 's3'
J = '\n'.join
def vr(b, n=1): return f'v{b}' if n == 1 else f'v[{b}:{b+n-1}]'
def srd(e, s, name): e(f's_load_dwordx2 s[{s}:{s+1}], s[0:1], {KA[name]}')
def srd_fin(e, s, name): e(f's_mov_b32 s{s+2}, {SZ[name]}\ns_mov_b32 s{s+3}, 0x20000')
def spin(e): e(f's_sub_u32 {sSPIN}, {sSPIN}, 1\ns_cbranch_scc1 L_exit')

F_MOD, F_H, F_K, F_V, F_R, F_QA, F_WO, F_LN, F_M1 = (WS_FLAG + 1024*i for i in range(9))

def wait_flags(e, vaddr, soff, mask, target, vtmp, sleep=0):
    L = e.lab('wf'); D = e.lab('wfd')
    e(f's_mov_b64 exec, {mask}' if not isinstance(mask, int) or mask in (-1,) or 0 <= mask <= 64 else f's_mov_b32 exec_lo, {mask & 0xffffffff}\ns_mov_b32 exec_hi, {mask >> 32}')
    e(f'''{L}:
    buffer_load_dword v{vtmp}, v{vaddr}, {WS}, {soff} offen sc1
    s_waitcnt vmcnt(0)
    v_cmp_gt_u32 vcc, {target}, v{vtmp}
    s_cbranch_vccz {D}''')
    if sleep: e(f's_sleep {sleep}')
    spin(e)
    e(f's_branch {L}\n{D}:\ns_mov_b64 exec, -1')

def set_flag(e, soff, val, vtmp, sc=' sc1'):
    e(f'''s_mov_b64 exec, 1
    v_mov_b32 v{vtmp}, {val}
    buffer_store_dword v{vtmp}, off, {WS}, {soff}{sc}
    s_mov_b64 exec, -1''')

def arrive(e, v, young=0):
    L = e.lab('arr')
    e(f'''s_load_dwordx2 s[96:97], s[0:1], {KA['dbg']}
    s_getreg_b32 s98, hwreg(HW_REG_XCC_ID, 0, 4)
    s_mul_i32 s99, s98, s98
    s_lshl_b32 s99, s99, 16
    s_lshl_b32 s98, s98, 6
    s_add_u32 s98, s98, s99
    s_add_u32 s98, s98, 1
    s_lshl_b32 s99, {sGRP}, 2
    s_waitcnt vmcnt({young}) lgkmcnt(0)
    s_barrier
    s_cmp_lg_u32 {sW}, 0
    s_cbranch_scc1 {L}
    s_mov_b64 exec, 1
    v_mov_b32 v{v}, s99
    v_mov_b32 v{v+1}, s98
    global_atomic_add v{v}, v{v+1}, s[96:97]
    s_mov_b64 exec, -1
    {L}:''')

def gsync(e, v):
    L = e.lab('gs'); D = e.lab('gsd')
    e(f'''v_mbcnt_lo_u32_b32 v{v}, -1, 0
    v_and_b32 v{v}, 7, v{v}
    v_lshlrev_b32 v{v}, 2, v{v}
    {L}:
    global_load_dword v{v+1}, v{v}, s[96:97] sc1
    s_waitcnt vmcnt(0)
    v_and_b32 v{v+2}, 63, v{v+1}
    v_cmp_ne_u32 vcc, 32, v{v+2}
    s_cbranch_vccz {D}
    s_sleep 4''')
    spin(e)
    e(f'''s_branch {L}
    {D}:
    v_readlane_b32 s99, v{v+1}, {sGRP}
    s_lshl_b32 s98, s98, 5
    s_cmp_eq_u32 s98, s99
    s_cselect_b32 {sFAST}, 1, 0''')
```

```python
WS_M    = 0x0008000
WS_VX   = 0x0100000
WS_P    = 0x0200000
WS_FLAG = 0x0360000
WS_DBG  = 0x03a0000
WS_MOD  = 0x0380000
WS_H    = 0x0400000
WS_Y    = 0x0700000
WS_X1   = 0x0A00000
WS_K    = 0x1000000
WS_V    = 0x2000000
WS_O    = 0x3000000
WS_KM   = 0x4000000
WS_VM   = 0x4800000
WS_AP   = 0x5000000
WS_HID  = 0x7000000
WS_BYTES = 268435456

KA = dict(x=0, mem0=8, wq=16, wk=24, wv=32, wo=40, seg=48, bx=56, w1=64, b1=72, w2=80, b2=88, c=96, wmod=104, out=112, dbg=120, ws=128)
SZ = dict(x=2621440, mem0=10240, wq=5242880, wk=5242880, wv=5242880, wo=5242880, w1=2211840, b1=3456, w2=2211840, b2=1280, c=1280, wmod=4915200, out=2621440, dbg=256, ws=WS_BYTES)
```

```python
from common import *
sH = sIDX
sS, sBUF, sHS, sOUT, sFL, sT0, sT1 = 's28', 's29', 's30', 's32', 's33', 's34', 's35'
vA16, vRD = 2, 3
HB = 40960

def load_weights(e, name, kind):
    srd(e, 8, name)
    e(f'''v_and_b32 v1, 63, v0
    v_lshlrev_b32 v{vA16}, 4, v1
    v_and_b32 v4, 15, v1
    v_lshrrev_b32 v5, 4, v1
    v_lshlrev_b32 v6, 2, v5
    v_xor_b32 v6, v6, v4
    v_lshlrev_b32 v6, 4, v6
    v_lshl_add_u32 v6, v5, 13, v6
    s_lshl_b32 {sT0}, {sH}, 8
    s_lshl_b32 {sT1}, {sW}, 17
    s_add_u32 {sT0}, {sT0}, {sT1}
    v_add_u32 v6, {sT0}, v6
    s_lshl_b32 {sT1}, {sW}, 12
    s_waitcnt lgkmcnt(0)''')
    srd_fin(e, 8, name)
    for n in range(10):
        e(f's_add_u32 m0, {sT1}, {n*16384}')
        for t in range(4):
            e(f's_mov_b32 {sT0}, {(64*n + 4*t)*8192 - 1024*t}')
            e(f'buffer_load_dwordx4 v6, s[8:11], {sT0} offen offset:{1024*t} lds')
    e(f'''v_bfe_u32 v7, v1, 2, 2           ; rr
    v_and_b32 v8, 3, v1              ; cc
    v_and_b32 v9, 1, v5              ; G&1
    v_lshrrev_b32 v10, 1, v5         ; kh''')
    if kind == 'v':
        e('v_mov_b32 v11, v8\nv_mov_b32 v12, v9')
    else:
        e('v_and_b32 v11, 1, v8\nv_lshl_add_u32 v11, v9, 1, v11\nv_lshrrev_b32 v12, 1, v8')
    e(f'''v_xor_b32 v13, {sW}, v7
    v_lshl_add_u32 v11, v13, 2, v11
    v_lshlrev_b32 v11, 4, v11
    v_lshl_add_u32 v11, v12, 3, v11
    v_lshl_add_u32 v11, v7, 8, v11
    v_lshl_add_u32 v11, v10, 11, v11''')
    for n in range(10):
        e(f's_waitcnt vmcnt({4*(9-n)})\ns_barrier')
        e(f'v_add_u32 v12, {n*16384}, v11')
        for k in range(4):
            for t in range(2):
                a = 4*(4*n + k) + 2*t
                e(f'ds_read_b64_tr_b16 a[{a}:{a+1}], v12 offset:{4096*k + 1024*t}')
        e('s_waitcnt lgkmcnt(0)')

def h_dma(e):
    for j in range(10):
        if j % 4 == 0:
            e(f's_add_u32 m0, {sBUF}, {1024*j}')
            e(f's_add_u32 {sT0}, {sHS}, {1024*j}')
        e(f'buffer_load_dwordx4 v{vA16}, {WS}, {sT0} offen offset:{1024*(j%4)} sc1 lds')
    e(f'''s_add_u32 {sHS}, {sHS}, {HB}
    s_add_u32 {sBUF}, {sBUF}, {HB}
    s_sub_u32 {sT0}, {sBUF}, {3*HB}
    s_cselect_b32 {sBUF}, {sBUF}, {sT0}''')

def start_h(e):
    gsync(e, 4)
    e(f'v_lshlrev_b32 v4, 2, v1\ns_mov_b32 {sT0}, {F_H}')
    wait_flags(e, 4, sT0, -1, 1, 5, sleep=2)
    e(f'''s_barrier
    s_mul_i32 {sBUF}, {sW}, 10240
    s_add_u32 {sHS}, {sBUF}, {WS_H}
    s_mov_b32 {sS}, 0
    s_mov_b32 s36, 0''')
    h_dma(e); h_dma(e)

def gemm(e, kind, ACC, FR, extra=()):
    D = 5; extra = list(extra)
    e(f'v_add_u32 v{vRD}, s36, v{vA16}')
    def rd(k): return f'ds_read_b128 {vr(FR+4*(k%(D+2)),4)}, v{vRD} offset:{1024*k}'
    for k in range(D): e(rd(k))
    e(f'''s_add_u32 s36, s36, {HB}
    s_cmp_eq_u32 s36, {3*HB}
    s_cselect_b32 s36, 0, s36''')
    for k in range(40):
        if k + D < 40: e(rd(k+D))
        e(f's_waitcnt lgkmcnt({min(D, 39-k)})')
        w = f'a[{4*k}:{4*k+3}]'; f = vr(FR+4*(k%(D+2)), 4)
        a, b = (f, w) if kind == 'v' else (w, f)
        e(f'v_mfma_f32_32x32x16_bf16 {vr(ACC,16)}, {a}, {b}, {"0" if k == 0 else vr(ACC,16)}')
        if extra: e(extra.pop(0))

def gen_KV(e, kind):
    F = F_K if kind == 'k' else F_V
    e(f's_lshl_b32 {sFL}, {sH}, 2\ns_add_u32 {sFL}, {sFL}, {F}')
    set_flag(e, sFL, 0, 1)
    arrive(e, 2)
    load_weights(e, 'wk' if kind == 'k' else 'wv', kind)
    start_h(e)
    ACC = 16; FR = 32; PK = 8
    e(f'''s_lshl_b32 {sOUT}, {sH}, 13
    s_lshl_b32 {sT0}, {sW}, 11
    s_add_u32 {sOUT}, {sOUT}, {sT0}
    s_add_u32 {sOUT}, {sOUT}, {WS_K if kind == 'k' else WS_V}
    s_waitcnt vmcnt(10)''')
    L = e.lab('kv'); N = e.lab('kvn')
    e(f'''{L}:
    s_barrier
    s_cmp_lg_u32 {sW}, 0
    s_cbranch_scc1 {N}
    s_max_i32 {sT1}, {sS}, 1
    s_sub_u32 {sT1}, {sT1}, 1''')
    set_flag(e, sFL, sT1, 1)
    e(f'{N}:')
    h_dma(e)
    gemm(e, kind, ACC, FR)
    for i in range(8): e(f'v_cvt_pk_bf16_f32 v{PK+i}, v{ACC+2*i}, v{ACC+2*i+1}')
    e(f'''buffer_store_dwordx4 {vr(PK,4)}, v{vA16}, {WS}, {sOUT} offen sc1
    buffer_store_dwordx4 {vr(PK+4,4)}, v{vA16}, {WS}, {sOUT} offen offset:1024 sc1
    s_add_u32 {sOUT}, {sOUT}, {32*8192}
    s_add_u32 {sS}, {sS}, 1
    s_cmp_lt_u32 {sS}, 64
    s_waitcnt vmcnt(12)
    s_cbranch_scc1 {L}
    s_waitcnt vmcnt(0)
    s_barrier''')
    set_flag(e, sFL, 64, 1)
    e('s_branch L_exit')

def gen_QA(e):
    sKV, sKM, sVM, sC, sN = 's37', 's38', 's39', 's40', 's41'
    e(f's_lshl_b32 {sFL}, {sH}, 2\ns_add_u32 {sFL}, {sFL}, {F_QA}')
    set_flag(e, sFL, 0, 1)
    arrive(e, 2)
    load_weights(e, 'wq', 'q')
    start_h(e)
    LQ = 3*HB
    vQw, vQr, vK, vV, vFL, vF, vVM = 4, 5, 6, 7, 8, 9, 10
    BIAS = 12
    ACC = 20; FR = 36
    KX = 64; VX = 96; KM = 112; VM = 128; Q = 136
    S = 152; PX = 164; PM = 168; ONE = 172; O = 176; SUM = 192; T = 196; OP = 200
    e(f'''v_and_b32 v20, 15, v1            ; rho
    v_lshrrev_b32 v21, 4, v1         ; g
    s_and_b32 {sT0}, {sW}, 1
    s_lshr_b32 {sT1}, {sW}, 1        ; e half
    s_lshl_b32 s42, {sW}, 11
    s_add_u32 s42, s42, {LQ}
    v_add_u32 v{vQw}, s42, v{vA16}
    v_lshlrev_b32 v22, 9, v21
    v_lshl_add_u32 v23, v20, 4, v22
    s_lshl_b32 s42, {sT0}, 8
    s_add_u32 s42, s42, {LQ}
    v_add_u32 v{vQr}, s42, v23
    s_lshl_b32 s42, {sT1}, 12
    v_add_u32 v{vV}, s42, v23
    v_lshrrev_b32 v24, 3, v20
    v_lshl_add_u32 v24, v24, 8, v22
    v_and_b32 v25, 7, v20
    v_lshl_add_u32 v{vK}, v25, 4, v24
    s_lshl_b32 s42, {sT1}, 10
    v_lshl_add_u32 v{vVM}, v1, 3, s42
    s_lshl_b32 {sOUT}, {sT0}, 17
    s_lshl_b32 s42, {sH}, 12
    s_add_u32 {sOUT}, {sOUT}, s42
    s_add_u32 {sKM}, s42, {WS_KM}
    s_lshr_b32 s42, s42, 1
    s_add_u32 {sVM}, s42, {WS_VM}
    s_lshl_b32 s42, {sT1}, 11
    s_add_u32 {sOUT}, {sOUT}, s42
    s_add_u32 {sOUT}, {sOUT}, {WS_O}
    s_lshl_b32 {sKV}, {sH}, 13
    s_add_u32 {sKV}, {sKV}, {WS_K}
    s_mov_b32 {sC}, {f2u(128 ** -0.5 * math.log2(math.e))}
    s_lshl_b32 s42, {sT0}, 4
    v_add_u32 v20, s42, v20
    v_lshrrev_b32 v22, 1, v21
    v_and_b32 v23, 1, v21
    v_lshlrev_b32 v23, 2, v23
    v_lshl_add_u32 v22, v22, 4, v23
    v_mov_b32 v24, {f2u(-1e30)}''')
    for kt in range(2):
        for r in range(4):
            e(f'v_add_u32 v23, {8*kt+r}, v22\nv_cmp_gt_u32 vcc, v23, v20\nv_cndmask_b32 v{BIAS+4*kt+r}, 0, v24, vcc')
    e(f'''v_lshlrev_b32 v20, 10, v1
    s_lshl_b32 s42, {sH}, 2
    v_add_u32 v20, s42, v20
    s_lshl_b32 s42, {sH}, 5
    s_add_u32 s42, s42, {F_R - F_K - 32}
    v_lshl_add_u32 v21, v1, 2, s42
    v_cmp_gt_u32 vcc, 8, v1
    v_cndmask_b32 v{vFL}, v21, v20, vcc
    s_mov_b32 s43, {F_K}''')
    for i in range(4): e(f'v_mov_b32 v{ONE+i}, 0x3f803f80\nv_mov_b32 v{VM+2*i+1}, 0')
    e(f'v_mov_b32 v{PM+1}, 0\ns_mov_b32 s44, 0')
    L = e.lab('qa'); N = e.lab('qan'); G = e.lab('qag')
    e(f'''s_waitcnt vmcnt(10)
    {L}:
    s_barrier
    s_add_u32 {sN}, {sS}, 1
    s_cmp_ge_u32 s44, {sN}
    s_cbranch_scc1 {G}''')
    wait_flags(e, vFL, 's43', 3, sN, vF, sleep=2)
    e(f'''v_readlane_b32 s44, v{vF}, 0
    v_readlane_b32 s45, v{vF}, 1
    s_min_u32 s44, s44, s45
    {G}:''')
    h_dma(e)
    ld = [f's_add_u32 s45, {sKV}, 4096', f's_add_u32 s46, {sKV}, {WS_V - WS_K}']
    for kap in range(4):
        for kt in range(2):
            ld.append(f'buffer_load_dwordx4 {vr(KX+8*kap+4*kt,4)}, v{vK}, {WS}, {sKV if kap < 2 else "s45"} offen offset:{2048*(kap%2)+128*kt} sc1')
    for kk in range(2):
        for tau in range(2):
            ld.append(f'buffer_load_dwordx4 {vr(VX+8*kk+4*tau,4)}, v{vV}, {WS}, s46 offen offset:{2048*kk+256*tau} sc1')
    gemm(e, 'q', ACC, FR, ld)
    for i in range(8): e(f'v_cvt_pk_bf16_f32 v{FR+i}, v{ACC+2*i}, v{ACC+2*i+1}')
    e(f'''ds_write_b128 v{vQw}, {vr(FR,4)}
    ds_write_b128 v{vQw}, {vr(FR+4,4)} offset:1024
    s_waitcnt vmcnt(0) lgkmcnt(0)
    s_barrier
    s_cmp_lg_u32 {sW}, 0
    s_cbranch_scc1 {N}''')
    set_flag(e, sFL, sS, vF)
    e(f'{N}:')
    for kap in range(4): e(f'ds_read_b128 {vr(Q+4*kap,4)}, v{vQr} offset:{2048*kap}')
    wait_flags(e, vFL, 's43', 0xff00, sN, vF, sleep=1)
    for kap in range(4): e(f'buffer_load_dwordx4 {vr(KM+4*kap,4)}, v{vA16}, {WS}, {sKM} offen offset:{1024*kap} sc1')
    for kk in range(2): e(f'buffer_load_dwordx2 {vr(T+2*kk,2)}, v{vVM}, {WS}, {sVM} offen offset:{512*kk} sc1')
    e('s_waitcnt lgkmcnt(0)')
    for kap in range(4):
        for kt in range(2):
            e(f'v_mfma_f32_16x16x32_bf16 {vr(S+4*kt,4)}, {vr(KX+8*kap+4*kt,4)}, {vr(Q+4*kap,4)}, {vr(BIAS+4*kt,4) if kap == 0 else vr(S+4*kt,4)}')
    e(f'''s_add_u32 {sKV}, {sKV}, {32*8192}
    s_add_u32 {sKM}, {sKM}, {32*4096}
    s_add_u32 {sVM}, {sVM}, {32*2048}''')
    M, M2 = FR, FR+1
    e(f'''v_max3_f32 v{M}, v{S}, v{S+1}, v{S+2}
    v_max3_f32 v{M}, v{M}, v{S+3}, v{S+4}
    v_max3_f32 v{M}, v{M}, v{S+5}, v{S+6}
    v_max_f32 v{M}, v{M}, v{S+7}''')
    for kap in range(4):
        e(f's_waitcnt vmcnt({5-kap})')
        e(f'v_mfma_f32_16x16x32_bf16 {vr(S+8,4)}, {vr(KM+4*kap,4)}, {vr(Q+4*kap,4)}, {"0" if kap == 0 else vr(S+8,4)}')
    e('s_waitcnt vmcnt(0)')
    for i in range(4): e(f'v_mov_b32 v{VM+2*i}, v{T+i}')
    e(f'''v_max3_f32 v{M}, v{M}, v{S+10}, v{S+11}
    v_mov_b32 v{M2}, v{M}
    v_permlane16_swap_b32 v{M}, v{M2}
    v_max_f32 v{M}, v{M}, v{M2}
    v_mov_b32 v{M2}, v{M}
    v_permlane32_swap_b32 v{M}, v{M2}
    v_max_f32 v{M}, v{M}, v{M2}
    v_mul_f32 v{M}, {sC}, v{M}''')
    sv = [S+i for i in range(8)] + [S+10, S+11]
    for x in sv: e(f'v_fma_f32 v{x}, v{x}, {sC}, -v{M}')
    for x in sv: e(f'v_exp_f32 v{x}, v{x}')
    for i in range(4): e(f'v_cvt_pk_bf16_f32 v{PX+i}, v{S+2*i}, v{S+2*i+1}')
    e(f'''v_cvt_pk_bf16_f32 v{PM}, v{S+10}, v{S+11}
    v_mfma_f32_16x16x32_bf16 {vr(SUM,4)}, {vr(ONE,4)}, {vr(PX,4)}, 0''')
    for i in range(4): e(f'v_mfma_f32_16x16x32_bf16 {vr(O+4*i,4)}, {vr(VX+4*i,4)}, {vr(PX,4)}, 0')
    e(f'v_mfma_f32_16x16x16_bf16 {vr(SUM,4)}, {vr(ONE,2)}, {vr(PM,2)}, {vr(SUM,4)}')
    for i in range(4): e(f'v_mfma_f32_16x16x16_bf16 {vr(O+4*i,4)}, {vr(VM+2*i,2)}, {vr(PM,2)}, {vr(O+4*i,4)}')
    e(f'v_rcp_f32 v{M}, v{SUM}')
    for i in range(16): e(f'v_mul_f32 v{O+i}, v{O+i}, v{M}')
    for i in range(8): e(f'v_cvt_pk_bf16_f32 v{OP+i}, v{O+2*i}, v{O+2*i+1}')
    e(f'''buffer_store_dwordx4 {vr(OP,4)}, v{vA16}, {WS}, {sOUT} offen sc1
    buffer_store_dwordx4 {vr(OP+4,4)}, v{vA16}, {WS}, {sOUT} offen offset:1024 sc1
    s_add_u32 {sOUT}, {sOUT}, {2*32*4096}
    s_mov_b32 {sS}, {sN}
    s_cmp_lt_u32 {sS}, 64
    s_cbranch_scc1 {L}
    s_waitcnt vmcnt(0)
    s_barrier''')
    set_flag(e, sFL, 64, vF)
    e('s_branch L_exit')
```

```python
from common import *
sT = 's28'

def gen_mod(e):
    srd(e, 8, 'wmod'); srd(e, 12, 'c')
    Wv = 32; C = 16; ACC = 112; S = 120
    e(f'''v_lshrrev_b32 v2, 3, v0
    v_and_b32 v3, 7, v0
    v_mul_u32_u24 v4, 40, v2
    s_mov_b32 s30, {20*7680}
    v_mul_lo_u32 v5, s30, v2
    v_lshl_add_u32 v5, v3, 4, v5
    s_lshl_b32 s30, s29, 7
    s_waitcnt lgkmcnt(0)''')
    srd_fin(e, 8, 'wmod'); srd_fin(e, 12, 'c')
    e(f'''buffer_load_dwordx4 v[{C}:{C+3}], v4, s[12:15], 0 offen
    buffer_load_dwordx4 v[{C+4}:{C+7}], v4, s[12:15], 0 offen offset:16
    buffer_load_dwordx2 v[{C+8}:{C+9}], v4, s[12:15], 0 offen offset:32''')
    for j in range(20):
        e(f'buffer_load_dwordx4 v[{Wv+4*j}:{Wv+4*j+3}], v5, s[8:11], s30 offen')
        if j < 19: e('s_add_u32 s30, s30, 7680')
    for i in range(8): e(f'v_mov_b32 v{ACC+i}, 0')
    e(f's_mov_b32 s30, {f2u(-math.log2(math.e))}\ns_waitcnt vmcnt(20)')
    for j in range(20):
        s = S + j
        e(f'v_lshlrev_b32 v{s}, 16, v{C+j//2}' if j % 2 == 0 else f'v_and_b32 v{s}, 0xffff0000, v{C+j//2}')
        e(f'''v_mul_f32 v6, s30, v{s}
        v_exp_f32 v6, v6
        v_add_f32 v6, 1.0, v6
        v_rcp_f32 v6, v6
        v_mul_f32 v{s}, v{s}, v6
        v_cvt_pk_bf16_f32 v{s}, v{s}, v{s}
        v_and_b32 v{s}, 0xffff0000, v{s}''')
    for j in range(20):
        e(f's_waitcnt vmcnt({19-j})')
        for i in range(4):
            w = Wv + 4*j + i
            e(f'''v_lshlrev_b32 v6, 16, v{w}
            v_and_b32 v7, 0xffff0000, v{w}
            v_fmac_f32 v{ACC+2*i}, v6, v{S+j}
            v_fmac_f32 v{ACC+2*i+1}, v7, v{S+j}''')
    L = e.lab('modw')
    e(f'''v_lshlrev_b32 v6, 5, v0
    ds_write_b128 v6, v[{ACC}:{ACC+3}]
    ds_write_b128 v6, v[{ACC+4}:{ACC+7}] offset:16
    s_waitcnt lgkmcnt(0)
    s_barrier
    s_cmp_lg_u32 {sW}, 0
    s_cbranch_scc1 {L}
    v_lshlrev_b32 v6, 2, v0''')
    for h in range(4):
        for i in range(8): e(f'ds_read_b32 v{Wv+8*h+i}, v6 offset:{256*(8*h+i)}')
        e('s_waitcnt lgkmcnt(0)')
    n = 32
    while n > 1:
        n //= 2
        for i in range(n): e(f'v_add_f32 v{Wv+i}, v{Wv+i}, v{Wv+n+i}')
    e(f'''v_cvt_pk_bf16_f32 v{Wv}, v{Wv}, v{Wv}
    v_and_b32 v{Wv}, 0xffff0000, v{Wv}
    v_add_f32 v7, 1.0, v{Wv}
    v_cvt_pk_bf16_f32 v7, v7, v7
    v_and_b32 v7, 0xffff0000, v7
    s_sub_u32 s30, s29, 10
    s_cmp_lt_u32 s30, 10
    s_cselect_b64 vcc, -1, 0
    s_sub_u32 s30, s29, 40
    s_cmp_lt_u32 s30, 10
    s_cselect_b64 vcc, -1, vcc
    v_cndmask_b32 v{Wv}, v{Wv}, v7, vcc
    s_lshl_b32 s30, s29, 8
    s_add_u32 s30, s30, {WS_MOD}
    buffer_store_dword v{Wv}, v6, {WS}, s30 offen sc1
    s_lshl_b32 s30, s29, 2
    s_add_u32 s30, s30, {F_MOD}
    s_waitcnt vmcnt(0)''')
    set_flag(e, 's30', 1, 7)
    e(f'{L}:\ns_barrier')

def gen_ln_load(e):
    srd(e, 16, 'x')
    e(f'''v_and_b32 v2, 31, v0
    v_bfe_u32 v3, v0, 5, 1
    v_mul_u32_u24 v4, 1280, v2
    v_lshl_add_u32 v4, v3, 4, v4
    s_mul_i32 s30, {sT}, 40960
    s_mul_i32 s32, {sW}, 320
    s_add_u32 s30, s30, s32
    s_waitcnt lgkmcnt(0)''')
    srd_fin(e, 16, 'x')
    for j in range(10): e(f'buffer_load_dwordx4 v[{160+4*j}:{163+4*j}], v4, s[16:19], s30 offen offset:{32*j}')

def gen_ln(e):
    X = 160; F = 16
    e('v_mov_b32 v8, 0\nv_mov_b32 v9, 0\ns_waitcnt vmcnt(0)')
    for i in range(40):
        e(f'''v_lshlrev_b32 v{F+2*i}, 16, v{X+i}
        v_and_b32 v{F+2*i+1}, 0xffff0000, v{X+i}
        v_add_f32 v8, v8, v{F+2*i}
        v_fmac_f32 v9, v{F+2*i}, v{F+2*i}
        v_add_f32 v8, v8, v{F+2*i+1}
        v_fmac_f32 v9, v{F+2*i+1}, v{F+2*i+1}''')
    e(f'''v_and_b32 v2, 31, v0
    v_lshrrev_b32 v3, 5, v0
    v_lshlrev_b32 v4, 6, v2
    v_lshl_add_u32 v5, v3, 3, v4
    ds_write_b64 v5, v[8:9] offset:8192
    s_waitcnt lgkmcnt(0)
    s_barrier''')
    for i in range(4): e(f'ds_read_b128 v[{96+4*i}:{99+4*i}], v4 offset:{8192+16*i}')
    e('s_waitcnt lgkmcnt(0)')
    for n in (8, 4, 2):
        for i in range(n): e(f'v_add_f32 v{96+i}, v{96+i}, v{96+n+i}')
    e(f'''v_mul_f32 v96, {f2u(1/640)}, v96       ; mean
    v_mul_f32 v97, {f2u(1/640)}, v97
    v_fma_f32 v97, -v96, v96, v97
    v_max_f32 v97, 0, v97
    v_add_f32 v97, {f2u(1e-5)}, v97
    v_rsq_f32 v97, v97
    v_mul_f32 v96, v96, v97''')
    for i in range(80): e(f'v_fma_f32 v{F+i}, v{F+i}, v97, -v96')
    gsync(e, 10)
    e(f'v_and_b32 v2, 63, v0\nv_lshlrev_b32 v10, 2, v2\ns_mov_b32 s30, {F_MOD}')
    wait_flags(e, 10, 's30', 0xfffff, 1, 11, sleep=1)
    e(f'''v_lshlrev_b32 v10, 4, v2
    s_mul_i32 s30, {sW}, 640
    s_add_u32 s30, s30, {WS_MOD}
    s_add_u32 s32, s30, {2560-1024}
    s_lshl_b32 s33, {sW}, 11
    s_add_u32 m0, s33, 16384
    v_bfe_u32 v3, v0, 5, 1
    v_lshlrev_b32 v3, 5, v3
    buffer_load_dwordx4 v10, {WS}, s30 offen sc1 lds
    buffer_load_dwordx4 v10, {WS}, s32 offen offset:1024 sc1 lds
    v_add_u32 v3, s33, v3
    s_mul_i32 s30, {sT}, 40960
    s_mul_i32 s32, {sW}, 10240
    s_add_u32 s30, s30, s32
    s_add_u32 s30, s30, {WS_H}
    s_waitcnt vmcnt(0)''')
    def rd(j):
        b = 96 + 16*(j % 2)
        for k in range(2):
            e(f'ds_read_b128 v[{b+4*k}:{b+4*k+3}], v3 offset:{16384+64*j+16*k}')
            e(f'ds_read_b128 v[{b+8+4*k}:{b+8+4*k+3}], v3 offset:{16384+1024+64*j+16*k}')
    rd(0)
    for j in range(10):
        if j < 9: rd(j+1)
        e(f's_waitcnt lgkmcnt({4 if j < 9 else 0})')
        b = 96 + 16*(j % 2)
        for i in range(8): e(f'v_fma_f32 v{F+8*j+i}, v{F+8*j+i}, v{b+8+i}, v{b+i}')
        for i in range(4): e(f'v_cvt_pk_bf16_f32 v{X+4*j+i}, v{F+8*j+2*i}, v{F+8*j+2*i+1}')
        if j in (4, 8): e('s_add_u32 s30, s30, 4096')
        e(f'buffer_store_dwordx4 v[{X+4*j}:{X+4*j+3}], v10, {WS}, s30 offen offset:{1024*(j%4)} sc1')
    L = e.lab('lnf')
    e(f'''s_lshl_b32 s30, {sT}, 2
    s_add_u32 s30, s30, {F_H}
    s_waitcnt vmcnt(0)
    s_barrier
    s_cmp_lg_u32 {sW}, 0
    s_cbranch_scc1 {L}''')
    set_flag(e, 's30', 1, 11)
    e(f'{L}:')
```

```python
from common import *

def f2u(x): return struct.unpack('<I', struct.pack('<f', x))[0]
SCALE_LOG2E = f2u(128 ** -0.5 * math.log2(math.e))

WS = 's[4:7]'
sH, sW, sA = 's25', 's26', 's27'
sSTEP, sUNIT, sNEAR, sSPIN = 's28', 's29', 's30', 's31'
sMP, sPubS, sPubF, sRstS, sRstF = 's32', 's33', 's34', 's35', 's36'
sVXst, sVXld, sTAG = 's37', 's38', 's39'
sPst, sPld, sPrst = 's40', 's41', 's42'
sK, sV, sKM = 's43', 's44', 's45'
sC = 's46'
sMPc, sSc, sFc, sVXo, sVXp, sPc = 's47', 's48', 's49', 's50', 's51', 's52'
sT0, sT1, sT2, sT3 = 's53', 's54', 's55', 's56'
sEB0 = 's[58:59]'
sEPUB = 's[60:61]'
sEKM = 's[12:13]'; sEVM = 's[14:15]'; sVM = 's16'; sPro = 's17'; sPro2 = 's18'; sPrst2 = 's19'; sV2 = 's20'; sPold = 's21'; sSEEN = 's22'; sFK = 's23'; sFR = 's2'

L_MEM, L_SX, L_SM, L_O, L_SEL, L_V = 0, 10240, 14336, 15360, 17408, 18432

vIDX = 1; vID = 2
vA16, vM16, vM4, vMrd, vMrd4, vPerm, vSwr, vSwr2, vOwr, vPst4, vPst1, vPub, vKld, vVld, vStg, vStg2 = range(4, 20)
vT = 20
vPL = 22
vVrd = 0
vA = 32
vACC = 52
vKX = 76; vVX = 84; vREM = 92
vSTG = 96

def vr(b, n=1): return f'v{b}' if n == 1 else f'v[{b}:{b+n-1}]'

def srd(e, s, name):
    e(f's_load_dwordx2 s[{s}:{s+1}], s[0:1], {KA[name]}')
def srd_fin(e, s, name):
    e(f's_mov_b32 s{s+2}, {SZ[name]}\ns_mov_b32 s{s+3}, 0x20000')

def interleave(e, mf, fill, per=1, start=0):
    fill = list(fill)
    for i, m in enumerate(mf):
        e(m)
        if i >= start:
            for _ in range(per):
                if fill: e(fill.pop(0))
    for f in fill: e(f)

class RCfg:
    fast = 1; stamps = 0; nsteps = 64; d1 = 0; d2 = 200; d3 = 0; standalone = 1; near = 0; rmode = 2; rp = 24; vl = 51; vchk = 2; KL = 2; gap = 120; mrst = 1; smax = 1; kpos = 0; vdpos = 1; prst = 1; nok = 0; nov = 0; nokm = 0; kvfix = 0

def tiles_plan():
    lds = [('q','L',0), ('k','L',0), ('q','R',4), ('k','R',4), ('o','',3), ('o','',4)]
    allt = [(m,'L',c) for c in range(5) for m in 'vqk'] + [(m,'R',c) for c in range(5) for m in 'qk'] + [('o','',t) for t in range(5)]
    reg = [t for t in allt if t not in lds]
    loc = {}
    for i, t in enumerate(reg):
        loc[t] = ('a', 16*i) if i < 16 else ('v', 128 + 16*(i-16))
    order = reg + lds
    slot = {t: n % 10 for n, t in enumerate(order)}
    for i, t in enumerate(lds): loc[t] = ('v', vSTG + 16*(i % 2))
    return order, loc, slot, lds

def gen_R(e, cfg):
    order, loc, slot, lds = tiles_plan()
    def W(t, j):
        k, b = loc[t]; return f'{k}[{b+8*j}:{b+8*j+7}]'
    def stamp(i):
        if cfg.stamps == 1: e(f's_memtime s[{64+2*i}:{65+2*i}]')
        e(f'; MARK {i}')
    def nops(c):
        n = c // 4
        while n > 0:
            k = min(n, 16); e(f's_nop {k-1}'); n -= k
    srd(e, 8, 'wq'); srd(e, 12, 'wk'); srd(e, 16, 'wv'); srd(e, 20, 'wo')
    e(f'''
    v_and_b32 v0, 63, v0
    v_and_b32 v40, 15, v0            ; rho
    v_lshrrev_b32 v41, 4, v0         ; g
    v_lshlrev_b32 {vr(vA16)}, 4, v0
    s_waitcnt lgkmcnt(0)''')
    srd_fin(e, 8, 'wq'); srd_fin(e, 12, 'wk'); srd_fin(e, 16, 'wv'); srd_fin(e, 20, 'wo')
    e(f'''
    v_and_b32 v42, 1, v41
    v_lshrrev_b32 v43, 1, v41        ; rr>>1
    s_lshr_b32 {sT0}, {sW}, 1
    s_and_b32 {sT1}, {sW}, 1
    v_lshlrev_b32 v44, 2, v41
    v_xor_b32 v44, v44, v40
    v_lshlrev_b32 v44, 4, v44
    s_lshl_b32 {sT2}, {sH}, 8
    v_add_u32 v44, {sT2}, v44
    v_lshlrev_b32 v45, 6, v42
    v_lshl_add_u32 v45, v43, 1, v45
    s_lshl_b32 {sT2}, {sT0}, 2
    s_add_u32 {sT2}, {sT2}, {sT1}
    v_add_u32 v45, {sT2}, v45
    v_lshl_add_u32 v60, v45, 13, v44
    v_lshl_add_u32 v45, v43, 3, v42
    s_lshl_b32 {sT2}, {sT0}, 4
    s_lshl_b32 {sT3}, {sT1}, 2
    s_add_u32 {sT2}, {sT2}, {sT3}
    v_add_u32 v45, {sT2}, v45
    v_lshl_add_u32 v61, v45, 13, v44
    v_bfe_u32 v45, v0, 3, 1
    v_bfe_u32 v46, v0, 4, 1
    v_lshl_add_u32 v45, v46, 3, v45
    v_lshrrev_b32 v46, 5, v0
    v_lshl_add_u32 v45, v46, 2, v45
    s_lshl_b32 {sT2}, {sT0}, 6
    s_lshl_b32 {sT3}, {sT1}, 4
    s_add_u32 {sT2}, {sT2}, {sT3}
    v_add_u32 v45, {sT2}, v45
    v_mul_u32_u24 v45, 1280, v45
    v_and_b32 v46, 7, v0
    v_lshlrev_b32 v47, 1, v41
    v_xor_b32 v46, v46, v47
    v_lshl_add_u32 v45, v46, 4, v45
    s_mul_i32 {sT2}, {sH}, 163840
    s_mul_i32 {sT3}, {sA}, 640
    s_add_u32 {sT2}, {sT2}, {sT3}
    v_add_u32 v62, {sT2}, v45
    v_bfe_u32 v45, v0, 2, 2          ; rr
    v_and_b32 v46, 3, v0             ; cc
    v_xor_b32 v47, {sW}, v45
    v_lshl_add_u32 v47, v47, 2, v46
    v_lshlrev_b32 v47, 4, v47
    v_lshl_add_u32 v47, v45, 8, v47
    v_lshl_add_u32 v63, v41, 12, v47
    v_lshl_add_u32 v47, v42, 2, v45  ; (gB&1)*4+rr
    v_lshrrev_b32 v48, 1, v47
    v_xor_b32 v48, {sW}, v48
    v_lshlrev_b32 v48, 5, v48
    v_lshl_add_u32 v48, v46, 3, v48
    v_lshl_add_u32 v48, v47, 7, v48
    v_lshl_add_u32 v64, v43, 12, v48
    s_mul_i32 s57, {sA}, {320*8192}
    s_sub_u32 s62, {320*8192}, s57
    s_lshl_b32 s63, {sW}, 12
    v_add_u32 {vr(vStg)}, s63, {vr(vA16)}''')
    def dma(n):
        m, side, c = order[n]
        e(f's_add_u32 m0, s63, {slot[order[n]]*16384}')
        for t4 in range(4):
            if m == 'o':
                so = (32*(t4 >> 1) + 2*(t4 & 1))*1280 - 1024*t4 + 128*c
                e(f's_mov_b32 {sT0}, {so}')
                e(f'buffer_load_dwordx4 v62, s[20:23], {sT0} offen offset:{1024*t4} lds')
            else:
                rows = (16*c + 128*(t4 & 1) + 8*(t4 >> 1)) if c < 4 else (256 + 32*(t4 >> 1) + 2*(t4 & 1))
                so = rows*8192 - 1024*t4
                e(f's_add_u32 {sT0}, {"s57" if side == "L" else "s62"}, {so}')
                s = dict(q=8, k=12, v=16)[m]
                e(f'buffer_load_dwordx4 {"v60" if c < 4 else "v61"}, s[{s}:{s+3}], {sT0} offen offset:{1024*t4} lds')
    e(f'''    ; reducer unit
    s_mov_b32 {sUNIT}, -1
    s_cmp_eq_u32 {sW}, 0
    s_cselect_b32 {sUNIT}, {sH}, {sUNIT}
    s_and_b32 {sT0}, {sH}, 3
    s_lshl_b32 {sT0}, {sT0}, 2
    s_or_b32 {sT0}, {sT0}, {sW}
    s_lshr_b32 {sT1}, {sH}, 2
    s_add_u32 {sT1}, {sT1}, 32
    s_cmp_eq_u32 {sT0}, 1
    s_cselect_b32 {sUNIT}, {sT1}, {sUNIT}
    s_cmp_lt_i32 {sUNIT}, 0
    s_cselect_b32 {sT0}, {sH}, {sUNIT}
    s_lshl_b32 {sT0}, {sT0}, 7
    v_and_b32 v54, 7, v0
    v_lshlrev_b32 v55, 3, v54
    v_lshl_add_u32 v55, v42, 6, v55
    v_add_u32 {vr(vPub)}, {sT0}, v55
    s_mov_b32 s60, 0x00ff00ff
    s_mov_b32 s61, 0
    s_lshl_b32 {sT0}, {sH}, 1
    s_add_u32 {sT0}, {sT0}, {sA}
    s_lshl_b32 {sT0}, {sT0}, 2
    s_add_u32 {sT0}, {sT0}, {sW}
    s_lshl_b32 {sT0}, {sT0}, 2
    s_add_u32 {sFR}, {sT0}, {F_R}''')
    if not cfg.standalone:
        set_flag(e, sFR, 0, 66)
        e(f'''v_mov_b64 v[66:67], -1
        v_mov_b64 v[68:69], -1
        s_lshr_b32 {sT0}, {sH}, 1
        s_lshl_b32 {sT0}, {sT0}, 14
        s_and_b32 {sT1}, {sH}, 1
        s_lshl_b32 {sT1}, {sT1}, 12
        s_add_u32 {sT0}, {sT0}, {sT1}
        s_lshl_b32 {sT1}, {sW}, 10
        s_add_u32 {sT0}, {sT0}, {sT1}
        s_lshl_b32 {sT2}, {sA}, 18
        s_add_u32 {sT0}, {sT0}, {sT2}''')
        for o in (0, 8192, 1 << 19, (1 << 19) + 8192):
            e(f's_add_u32 {sT2}, {sT0}, {WS_VX + o}\nbuffer_store_dwordx4 v[66:69], {vr(vA16)}, {WS}, {sT2} offen sc1')
        e(f'''s_mul_i32 {sT0}, {sH}, 20480
        s_mul_i32 {sT1}, {sW}, 5120
        s_add_u32 {sT0}, {sT0}, {sT1}
        s_mul_i32 {sT1}, {sA}, 655360
        s_add_u32 {sT0}, {sT0}, {sT1}''')
        for o in range(5):
            e(f's_add_u32 {sT2}, {sT0}, {WS_P + 1024*o}\nbuffer_store_dwordx4 v[66:69], {vr(vA16)}, {WS}, {sT2} offen sc1')
        e(f'''s_lshl_b32 {sT0}, {sA}, 5
        s_add_u32 {sT0}, {sT0}, {sH}
        s_lshl_b32 {sT0}, {sT0}, 2
        s_add_u32 {sT0}, {sT0}, {sW}
        s_lshl_b32 {sT0}, {sT0}, 9
        s_add_u32 {sT0}, {sT0}, {WS_M}
        v_lshrrev_b32 v70, 1, {vr(vA16)}
        buffer_store_dwordx2 v[66:67], v70, {WS}, {sT0} offen sc1''')
    for n in range(10): dma(n)
    if not cfg.standalone: arrive(e, 66, 40)
    e(f'''
    v_bfe_u32 v45, v0, 1, 1          ; b
    v_and_b32 v46, 1, v0             ; i&1
    v_lshrrev_b32 v47, 2, v40        ; i>>1
    v_lshl_add_u32 v48, v47, 1, v46  ; i
    v_mov_b32 {vr(vIDX)}, 0x4444
    v_mov_b32 v49, 0xeeee
    v_cmp_eq_u32 vcc, 1, v45
    v_cndmask_b32 {vr(vIDX)}, {vr(vIDX)}, v49, vcc
    v_lshlrev_b32 v49, 4, v48
    v_lshl_add_u32 v50, v45, 7, v49
    v_lshl_add_u32 {vr(vPerm)}, v41, 8, v50
    s_lshl_b32 {sT0}, {sW}, 10
    v_add_u32 {vr(vSwr)}, {sT0}, {vr(vPerm)}
    s_lshl_b32 {sT0}, {sW}, 2
    s_add_u32 {sT0}, {sT0}, {L_SM}
    v_add_u32 {vr(vSwr2)}, {sT0}, {vr(vPerm)}
    v_lshl_add_u32 v50, v41, 7, v49
    s_lshl_b32 {sT0}, {sW}, 9
    v_add_u32 {vr(vOwr)}, {sT0}, v50
    v_lshlrev_b32 v50, 4, v45
    v_lshl_add_u32 v50, v46, 6, v50
    v_lshl_add_u32 v51, v42, 5, v50
    v_lshl_add_u32 v51, v47, 7, v51
    v_lshl_add_u32 {vr(vMrd)}, v43, 9, v51
    v_and_b32 v51, 1, v47
    v_lshl_add_u32 v51, v51, 5, v50
    v_lshrrev_b32 v52, 1, v47
    v_lshl_add_u32 v51, v52, 7, v51
    v_lshl_add_u32 {vr(vMrd4)}, v41, 8, v51
    s_mul_i32 {sT0}, {sW}, 1280
    v_add_u32 {vr(vM16)}, {sT0}, {vr(vA16)}
    s_add_u32 {sT0}, {sT0}, 1024
    v_lshlrev_b32 v51, 2, v0
    v_add_u32 {vr(vM4)}, {sT0}, v51
    v_lshl_add_u32 v51, v52, 2, v41
    s_lshl_b32 {sT0}, {sW}, 3
    v_add_u32 v51, {sT0}, v51
    v_and_b32 v53, 7, v0
    v_lshlrev_b32 v54, 4, v53
    v_lshl_add_u32 v51, v51, 12, v54
    s_lshl_b32 {sT1}, {sH}, 7
    v_add_u32 {vr(vPst4)}, {sT1}, v51
    s_lshl_b32 {sT0}, {sW}, 1
    s_add_u32 {sT0}, {sT0}, 32
    v_add_u32 v51, {sT0}, v43
    v_and_b32 v55, 31, v0
    v_lshlrev_b32 v55, 2, v55
    v_lshl_add_u32 v51, v51, 12, v55
    v_add_u32 {vr(vPst1)}, {sT1}, v51
    s_lshl_b32 {sT0}, {sW}, 11
    v_lshl_add_u32 v51, v41, 9, {sT0}
    v_lshl_add_u32 {vr(vVld)}, v40, 4, v51
    v_lshl_add_u32 v51, v52, 8, v51
    v_add_u32 {vr(vKld)}, v51, v54
    v_mov_b32 v55, 0x3f80
    v_lshlrev_b32 v56, 4, v46
    v_lshlrev_b32 v55, v56, v55
    v_cmp_eq_u32 vcc, v47, v41
    v_cndmask_b32 v55, 0, v55, vcc
    v_cmp_eq_u32 vcc, 0, v45
    v_cndmask_b32 {vr(vID)}, 0, v55, vcc
    v_cndmask_b32 {vr(vID+1)}, v55, 0, vcc
    v_mov_b32 v65, 0x3f80
    v_bfe_u32 v66, v0, 2, 1
    v_lshlrev_b32 v66, 4, v66
    v_lshlrev_b32 v65, v66, v65
    v_cmp_gt_u32 vcc, 8, v40
    v_cndmask_b32 v65, 0, v65, vcc
    v_and_b32 v66, 3, v0''')
    for j in range(4):
        e(f'v_cmp_eq_u32 vcc, {j}, v66\nv_cndmask_b32 v{56+j}, 0, v65, vcc')
    e(f'''
    s_mov_b32 s58, 0x33333333
    s_mov_b32 s59, 0x33333333
    s_mov_b32 {sC}, {SCALE_LOG2E}
    v_add_u32 {vr(vStg2)}, 0x10000, {vr(vStg)}''')
    def wb(t):
        base = slot[t]*16384; k, b = loc[t]
        e(f'v_add_u32 v66, {base}, {vr(vStg)}')
        for j in range(4): e(f'ds_write_b128 v66, {k}[{b+4*j}:{b+4*j+3}] offset:{1024*j}')
    last = 9
    for n in range(30):
        t = order[n]
        e(f's_waitcnt vmcnt({4*(last-n)})\ns_barrier')
        if n >= 1 and n+9 < 30: dma(n+9); last = n+9
        if n >= 1 and order[n-1] in lds: wb(order[n-1])
        k, b = loc[t]
        e(f'v_add_u32 v65, {slot[t]*16384}, {"v64" if t[0] == "o" else "v63"}')
        for j in range(2):
            for t4 in range(4):
                off = 1024*t4 + (8192*j if t[0] == 'o' else 8*j)
                e(f'ds_read_b64_tr_b16 {k}[{b+8*j+2*t4}:{b+8*j+2*t4+1}], v65 offset:{off}')
        e('s_waitcnt lgkmcnt(0)')
    e('s_barrier')
    wb(order[29])
    e(f'ds_write_b128 {vr(vA16)}, v[56:59] offset:{L_SEL}')
    e(f'v_add_u32 {vr(vStg)}, {4*16384}, {vr(vStg)}\nv_add_u32 {vr(vStg2)}, {4*16384}, {vr(vStg2)}')
    def stage(i):
        out = []
        for t in lds[2*i:2*i+2]:
            o = (slot[t]-4)*16384; k, b = loc[t]
            for j in range(4):
                oo = o + 1024*j
                out.append(f'ds_read_b128 v[{b+4*j}:{b+4*j+3}], {vr(vStg if oo < 65536 else vStg2)} offset:{oo % 65536}')
        return out
    def body(fast):
        sc = '' if fast else ' sc1'
        e(f'''
        s_lshl_b32 {sT0}, {sA}, 14
        s_add_u32 {sSc}, {sT0}, {sNEAR}
        s_add_u32 {sSc}, {sSc}, {WS_M}''')
        if fast: e(f's_xor_b32 {sFc}, {sSc}, 8192')
        else: e(f's_mov_b32 {sFc}, {sSc}')
        e(f'''
        s_xor_b32 {sMPc}, {sSc}, 16384
        s_lshr_b32 {sT0}, {sH}, 1
        s_lshl_b32 {sT0}, {sT0}, 14
        s_and_b32 {sT1}, {sH}, 1
        s_lshl_b32 {sT1}, {sT1}, 12
        s_add_u32 {sT0}, {sT0}, {sT1}
        s_lshl_b32 {sT1}, {sW}, 10
        s_add_u32 {sT0}, {sT0}, {sT1}
        s_lshl_b32 {sT1}, {sA}, 18
        s_add_u32 {sT0}, {sT0}, {sT1}
        s_add_u32 {sT0}, {sT0}, {sNEAR}
        s_add_u32 {sVXo}, {sT0}, {WS_VX}
        s_xor_b32 {sVXp}, {sVXo}, {1 << 18}
        s_mul_i32 {sT0}, {sA}, 655360
        s_add_u32 {sPc}, {sT0}, {WS_P}
        s_lshl_b32 {sT0}, {sH}, 13
        s_add_u32 {sK}, {sT0}, {WS_K}
        s_add_u32 {sV}, {sT0}, {WS_V}
        s_lshl_b32 {sT0}, {sH}, 12
        s_lshl_b32 {sT1}, {sW}, 10
        s_add_u32 {sT0}, {sT0}, {sT1}
        s_add_u32 {sT1}, {sT0}, {WS_KM}
        s_lshr_b32 {sT0}, {sT0}, 1
        s_add_u32 {sT0}, {sT0}, {WS_VM}
        s_mov_b32 {sKM}, {sT1}
        s_mov_b32 {sVM}, {sT0}
        s_cmp_eq_u32 {sA}, 0
        s_cselect_b32 s14, -1, 0
        s_cselect_b32 s15, 0, -1
        s_and_b32 s12, s14, 0xcccccccc
        s_and_b32 s13, s15, 0xcccccccc
        s_lshl_b32 {sT0}, {sH}, 12
        s_lshl_b32 {sT1}, {sW}, 10
        s_add_u32 {sPro}, {sT0}, {sT1}
        s_lshl_b32 {sT0}, {sH}, 10
        s_lshl_b32 {sT1}, {sW}, 8
        s_add_u32 {sT0}, {sT0}, {sT1}
        s_add_u32 {sPro2}, {sT0}, {32*4096}
        s_add_u32 {sPst}, {sPc}, {3*163840}
        s_mov_b32 {sPold}, {sPst}
        s_mov_b32 {sSTEP}, 0''')
        def step_scalars():
            return f'''s_lshl_b32 {sT2}, {sUNIT}, 12
        s_add_u32 {sPld}, {sPst}, {sT2}
        s_add_u32 {sPrst}, {sPst}, {sPro}
        s_add_u32 {sPrst2}, {sPold}, {sPro2}
        s_mov_b32 {sPold}, {sPst}
        s_and_b32 {sT0}, {sSTEP}, 3
        s_mul_i32 {sT1}, {sT0}, 163840
        s_add_u32 {sPst}, {sPc}, {sT1}
        s_lshl_b32 {sT0}, {sT0}, 15
        s_add_u32 {sMP}, {sMPc}, {sT0}
        s_add_u32 {sPubS}, {sSc}, {sT0}
        s_add_u32 {sPubF}, {sFc}, {sT0}
        s_add_u32 {sT1}, {sT0}, {3 << 15}
        s_and_b32 {sT1}, {sT1}, {3 << 15}
        s_add_u32 {sRstS}, {sSc}, {sT1}
        s_add_u32 {sRstF}, {sFc}, {sT1}
        s_and_b32 {sT0}, {sSTEP}, 1
        s_lshl_b32 {sT1}, {sT0}, 19
        s_add_u32 {sVXst}, {sVXo}, {sT1}
        s_add_u32 {sVXld}, {sVXp}, {sT1}
        s_bfe_u32 {sTAG}, {sSTEP}, 0x10001'''.split('\n')
        kld = [f'buffer_load_dwordx4 {vr(vKX,4)}, {vr(vKld)}, {WS}, {sK} offen sc1',
               f'buffer_load_dwordx4 {vr(vKX+4,4)}, {vr(vKld)}, {WS}, {sK} offen offset:128 sc1']
        vdma = [f'buffer_load_dwordx4 {vr(vVld)}, {WS}, {sV} offen sc1 lds',
                f'buffer_load_dwordx4 {vr(vVld)}, {WS}, {sV2} offen offset:1024 sc1 lds']
        e(f'''s_lshl_b32 {sT0}, {sW}, 11
        s_add_u32 m0, {sT0}, {L_V}
        v_add_u32 {vr(vVrd)}, {sT0}, {vr(vA16)}
        s_sub_u32 {sV2}, {sV}, 768''')
        def kvwait(target):
            e(f'v_lshlrev_b32 v{vT}, 6, {vr(vA16)}')
            wait_flags(e, vT, sFK, 3, target, vT + 1, sleep=1)
            e(f'v_readlane_b32 {sSEEN}, v{vT+1}, 0\nv_readlane_b32 {sT3}, v{vT+1}, 1\ns_min_u32 {sSEEN}, {sSEEN}, {sT3}')
            e(f's_cmp_eq_u32 {sSEEN}, 64\ns_cselect_b32 {sSEEN}, 66, {sSEEN}\ns_sub_u32 {sSEEN}, {sSEEN}, 1')
        if not cfg.standalone:
            e(f's_lshl_b32 {sFK}, {sH}, 2\ns_add_u32 {sFK}, {sFK}, {F_K}')
            kvwait(1)
        for l in kld + vdma: e(l)
        Lnp = e.lab('nopub0'); Lt4 = e.lab('pub0b'); Lgo = e.lab('pub0c')
        srd(e, 8, 'mem0')
        e(f'''
        s_waitcnt lgkmcnt(0)''')
        srd_fin(e, 8, 'mem0')
        e(f'''
        s_cmp_lt_i32 {sUNIT}, 0
        s_cbranch_scc1 {Lnp}
        s_mul_i32 {sT3}, {sA}, 640
        s_cmp_ge_u32 {sUNIT}, 32
        s_cbranch_scc1 {Lt4}
        s_and_b32 {sT0}, {sUNIT}, 3
        s_mul_i32 {sT0}, {sT0}, 2560
        s_lshr_b32 {sT1}, {sUNIT}, 2
        s_lshl_b32 {sT1}, {sT1}, 4
        s_add_u32 {sT0}, {sT0}, {sT1}
        s_add_u32 {sT0}, {sT0}, {sT3}
        v_mul_u32_u24 v44, 1280, v42
        v_lshl_add_u32 v44, v53, 1, v44
        buffer_load_ushort v45, v44, s[8:11], {sT0} offen
        buffer_load_ushort v46, v44, s[8:11], {sT0} offen offset:128
        buffer_load_ushort v47, v44, s[8:11], {sT0} offen offset:256
        buffer_load_ushort v48, v44, s[8:11], {sT0} offen offset:384
        s_waitcnt vmcnt(0)
        v_lshl_or_b32 v46, v46, 16, v45
        v_lshl_or_b32 v47, v48, 16, v47
        s_branch {Lgo}
        {Lt4}:
        s_and_b32 {sT0}, {sUNIT}, 1
        s_mul_i32 {sT0}, {sT0}, 5120
        s_sub_u32 {sT1}, {sUNIT}, 32
        s_lshr_b32 {sT1}, {sT1}, 1
        s_lshl_b32 {sT1}, {sT1}, 5
        s_add_u32 {sT0}, {sT0}, {sT1}
        s_add_u32 {sT0}, {sT0}, {sT3}
        s_add_u32 {sT0}, {sT0}, 512
        v_lshrrev_b32 v44, 2, v53
        v_lshl_add_u32 v44, v44, 1, v42
        v_mul_u32_u24 v44, 1280, v44
        v_and_b32 v45, 3, v53
        v_lshl_add_u32 v44, v45, 3, v44
        buffer_load_dwordx2 v[46:47], v44, s[8:11], {sT0} offen
        s_waitcnt vmcnt(0)
        {Lgo}:
        v_min_u32 v46, -2, v46
        v_min_u32 v47, -2, v47
        s_mov_b64 exec, {sEPUB}
        buffer_store_dwordx2 v[46:47], {vr(vPub)}, {WS}, {sSc} offen sc1''')
        if fast: e(f'buffer_store_dwordx2 v[46:47], {vr(vPub)}, {WS}, {sFc} offen')
        e(f's_mov_b64 exec, -1\n{Lnp}:')
        e('s_waitcnt lgkmcnt(0)\ns_barrier')
        if cfg.stamps:
            for i in range(84, 100): e(f's_mov_b32 s{i}, 0')
            e('s_memtime s[82:83]\ns_memtime s[64:65]\ns_memtime s[66:67]')

        Ldone = e.lab('rdone'); Labort = 'L_exit'
        q0, q1, k0, k1, v0, v1 = (vACC + 4*i for i in range(6))
        M = vT; M2 = vT + 1
        def mloads(rem, st=None):
            st = rem if st is None else st
            p = vPL + 6*st; so = sMP if rem else sPubF
            return [f'buffer_load_dwordx4 {vr(p,4)}, {vr(vM16)}, {WS}, {so} offen sc1',
                    f'buffer_load_dword {vr(vPL+4+st)}, {vr(vM4)}, {WS}, {so} offen sc1']
        tail = []
        def retry(R, body, L, cnt):
            tail.append(f"""{R}:
            s_sub_u32 {sSPIN}, {sSPIN}, 1
            s_cbranch_scc1 {Labort}
            {f's_add_u32 s{cnt}, s{cnt}, 1' if cfg.stamps in (1,2) else ''}
            {body}
            {f's_branch {L}' if L else ''}""")
        def mchk(rem, st=None):
            st = rem if st is None else st
            p = vPL + 6*st; q = vPL + 4 + st; o = L_MEM + (0 if rem else 5120)
            return [f'ds_write_b128 {vr(vM16)}, {vr(p,4)} offset:{o}',
                    f'ds_write_b32 {vr(vM4)}, {vr(q)} offset:{o}',
                    f'v_max3_u32 v{M}, v{p}, v{p+1}, v{p+2}',
                    f'v_max3_u32 v{M}, v{M}, v{p+3}, v{q}',
                    f'v_cmp_eq_u32 vcc, -1, v{M}']
        def aread(base, c): return f'ds_read_b128 {vr(vA+4*c,4)}, {vr(vMrd if c < 4 else vMrd4)} offset:{base+1024*c}'
        def smf(acc, c, t, j): return f'v_smfmac_f32_16x16x64_bf16 {vr(acc,4)}, {vr(vA+4*c,4)}, {W(t,j)}, {vr(vIDX)}'
        def zero(b, n): return [f'v_mov_b64 {vr(b+i,2)}, 0' for i in range(0, n, 2)]
        def em(l):
            for x in l: e(x)
        def prep():
            a = zero(vACC, 24); b = stage(0) + step_scalars()
            for i, x in enumerate(b):
                e(x)
                if i % 2 and a: e(a.pop(0))
            em(a)
        J = '\n'.join

        Lstep = e.lab('step')
        prep()
        e(f'{Lstep}:')
        e('; MARK 1')
        e(f"""v_mov_b64 {vr(vA,2)}, -1
        v_mov_b64 {vr(vA+2,2)}, -1
        buffer_store_dwordx4 {vr(vA,4)}, {vr(vA16)}, {WS}, {sPrst} offen{sc}
        s_mov_b64 exec, 0xffff
        buffer_store_dwordx4 {vr(vA,4)}, {vr(vA16)}, {WS}, {sPrst2} offen{sc}
        s_mov_b64 exec, -1""")
        nops(cfg.d2)
        em(mloads(0))
        Lok = e.lab('lok'); Lre = e.lab('lre')
        if cfg.KL == 2:
            nops(cfg.gap); em(mloads(0, 1))
            Lre2 = e.lab('lre2')
            e('s_waitcnt vmcnt(2)'); em(mchk(0)); e(f's_cbranch_vccnz {Lre}\n{Lok}:')
            retry(Lre, J(mloads(0,0) + ['s_waitcnt vmcnt(2)'] + mchk(0,1) + [f's_cbranch_vccz {Lok}'] + mloads(0,1) + ['s_waitcnt vmcnt(2)'] + mchk(0,0) + [f's_cbranch_vccz {Lok}']), Lre, 96)
        else:
            e('s_waitcnt vmcnt(0)'); em(mchk(0)); e(f's_cbranch_vccnz {Lre}\n{Lok}:')
            retry(Lre, J(mloads(0) + ['s_waitcnt vmcnt(0)'] + mchk(0) + [f's_cbranch_vccz {Lok}']), Lre, 96)
        if cfg.rmode == 0: em(mloads(1))
        e('s_waitcnt lgkmcnt(0)\ns_barrier')
        stamp(2)
        for c in range(5): e(aread(L_MEM + 5120, c))
        if cfg.rmode == 2: em(mloads(1))
        mf = []
        for c in range(5): mf += [smf(v0, c, ('v','L',c), 0), smf(v1, c, ('v','L',c), 1)]
        for c in range(5): mf += [smf(q0,c,('q','L',c),0), smf(k0,c,('k','L',c),0), smf(q1,c,('q','L',c),1), smf(k1,c,('k','L',c),1)]
        for c in range(5): mf += [smf(q0,c,('q','R',c),0), smf(k0,c,('k','R',c),0)]
        for c in range(5): mf += [smf(q1,c,('q','R',c),1), smf(k1,c,('k','R',c),1)]
        slots = [[] for _ in mf]
        def put(i, l, step=1):
            for x in l: slots[i].append(x); i += step
        for c in range(1, 5): put(2*c-1, [f's_waitcnt lgkmcnt({4-c})'])
        st1 = stage(1)
        st1 = [st1[i] for i in (0,1,4,5,2,3,6,7)]
        put(9, [f'ds_read_b128 {vr(vVX,4)}, {vr(vVrd)} offset:{L_V}', f'ds_read_b128 {vr(vVX+4,4)}, {vr(vVrd)} offset:{L_V+1024}', st1[0]])
        put(12, [f'v_add_f32 v{v0}, v{v0}, v{v0+2}\nv_add_f32 v{v0+1}, v{v0+1}, v{v0+3}', f'v_add_f32 v{v0+2}, v{v1}, v{v1+2}\nv_add_f32 v{v0+3}, v{v1+1}, v{v1+3}'])
        bf = [f'v_bfi_b32 v{v0+j}, 1, {sTAG}, v{v0+j}' for j in range(4)]
        put(14, [J(bf[:2]), J(bf[2:]), f'buffer_store_dwordx4 {vr(v0,4)}, {vr(vA16)}, {WS}, {sVXst} offen sc1'])
        put(17, st1[1:4])
        rp = cfg.rp
        Rok = e.lab('rok'); Rre = e.lab('rre')
        mc = mchk(1)
        put(rp, ['s_waitcnt vmcnt(1)\n' + mc[0], mc[1] + '\n' + mc[2], mc[3] + '\n' + mc[4]])
        bp = rp + 4
        put(bp, [f's_cbranch_vccnz {Rre}\n{Rok}:\ns_waitcnt lgkmcnt(0)\ns_barrier' + ('\ns_memtime s[70:71]' if cfg.stamps == 1 else '')])
        retry(Rre, J(mloads(1) + ['s_waitcnt vmcnt(0)'] + mc + [f's_cbranch_vccz {Rok}']), Rre, 97)
        pos = bp; rpos = []
        for c in range(5):
            pos = max(pos, 13 + 4*c)
            put(pos, [aread(L_MEM, c)]); rpos.append(pos)
            if pos < 29 and c >= 1: pos += 1
        for c in range(5): put(29 + 2*c, [f's_waitcnt lgkmcnt({4-c})'])
        put(20, [f's_add_u32 {sV}, {sV}, {0 if cfg.kvfix else 32*8192}', f's_add_u32 {sV2}, {sV2}, {0 if cfg.kvfix else 32*8192}'])
        Kok = e.lab('kok'); Kre = e.lab('kre')
        if not cfg.standalone:
            put(30, [f's_cmp_le_u32 {sSEEN}, {sSTEP}\ns_cbranch_scc1 {Kre}\n{Kok}:'])
            put(34, [f'v_mov_b32 v{vT}, {sSTEP}', f's_mov_b64 exec, 1\nbuffer_store_dword v{vT}, off, {WS}, {sFR} sc1\ns_mov_b64 exec, -1'], 2)
        if cfg.vdpos == 1 and not cfg.nov: put(30, vdma, 2)
        if cfg.vdpos == 2 and not cfg.nov: put(30, vdma[:1])
        put(38, st1[4:8])
        X = vA; T = vPL; D0 = vPL + 6; D1 = vA + 4; XA = vA + 12; XB = vA + 16; MK = vT; MK1 = vT + 1
        put(42, [f'v_add_f32 v{q0}, v{q0}, v{q0+2}', f'v_add_f32 v{q0+1}, v{q0+1}, v{q0+3}', f'v_add_f32 v{k0}, v{k0}, v{k0+2}', f'v_add_f32 v{k0+1}, v{k0+1}, v{k0+3}',
                 f'v_cvt_pk_bf16_f32 v{T}, v{q0}, v{q0+1}', f'v_cvt_pk_bf16_f32 v{T+1}, v{k0}, v{k0+1}\ns_waitcnt lgkmcnt(0)', f'v_bfe_i32 v{MK1}, {vr(vIDX)}, 1, 1'])
        vld = f'buffer_load_dwordx4 {vr(vREM,4)}, {vr(vA16)}, {WS}, {sVXld} offen sc1'
        if cfg.vl < 50: put(cfg.vl, [vld])
        e('s_waitcnt lgkmcnt(4)')
        for m, f in zip(mf, slots):
            e(m); em(f)
        st2 = stage(2)
        dq = 'quad_perm:[0,1,0,1] row_mask:0xf bank_mask:0xf'
        S0, SM = q0, k0
        young = [0]
        def slow(cond, l):
            if cond: young[0] += len(l); return J(l)
            return ''
        PX = vA + 12; PM = vA + 8; VM0 = v1; VM1 = v1 + 2; ONE = vPL; NEG = vA + 10
        e(f"""v_mfma_f32_16x16x16_bf16 {vr(D0,4)}, {vr(T,2)}, {vr(vID,2)}, 0
        {vld if cfg.vl == 50 else ''}
        s_add_u32 {sK}, {sK}, {0 if cfg.kvfix else 32*8192}
        v_not_b32 v{MK}, v{MK1}
        v_mov_b32 v{PM+1}, 0
        v_mov_b32 v{VM0+1}, 0
        v_mov_b32 v{VM1+1}, 0
        v_add_f32 v{q1}, v{q1}, v{q1+2}
        v_add_f32 v{q1+1}, v{q1+1}, v{q1+3}
        v_pk_add_f32 {vr(k1,2)}, {vr(k1,2)}, {vr(k1+2,2)}
        v_cvt_pk_bf16_f32 v{T+2}, v{q1}, v{q1+1}
        v_cvt_pk_bf16_f32 v{T+3}, v{k1}, v{k1+1}
        v_cvt_pk_bf16_f32 v{X}, v{D0}, v{D0+1}
        v_cvt_pk_bf16_f32 v{X+1}, v{D0+2}, v{D0+3}
        v_mfma_f32_16x16x16_bf16 {vr(D1,4)}, {vr(T+2,2)}, {vr(vID,2)}, 0
        {vld if cfg.vl == 51 else ''}
        {st2[0]}
        {st2[1]}
        v_and_b32 v{XA}, v{X}, v{MK}
        v_and_b32 v{XA+1}, v{X+1}, v{MK}
        v_and_b32_dpp v{XB}, v{X}, v{MK1} {dq}
        v_and_b32_dpp v{XB+1}, v{X+1}, v{MK1} {dq}
        {st2[2]}
        {st2[3]}
        v_cvt_pk_bf16_f32 v{X+2}, v{D1}, v{D1+1}
        v_cvt_pk_bf16_f32 v{X+3}, v{D1+2}, v{D1+3}
        v_and_b32 v{XA+2}, v{X+2}, v{MK}
        v_and_b32 v{XA+3}, v{X+3}, v{MK}
        v_and_b32_dpp v{XB+2}, v{X+2}, v{MK1} {dq}
        v_and_b32_dpp v{XB+3}, v{X+3}, v{MK1} {dq}""")
        stamp(4)
        kmst = f'buffer_store_dwordx4 {vr(X,4)}, {vr(vA16)}, {WS}, {sKM} offen sc1'
        e(f"""v_mfma_f32_16x16x32_bf16 {vr(S0,4)}, {vr(vKX,4)}, {vr(XA,4)}, 0
        {vld if cfg.vl == 52 else 's_nop 0'}
        v_mfma_f32_16x16x32_bf16 {vr(S0,4)}, {vr(vKX+4,4)}, {vr(XB,4)}, {vr(S0,4)}
        v_mov_b64 {vr(NEG,2)}, -1
        v_mfma_f32_16x16x32_bf16 {vr(SM,4)}, {vr(X,4)}, {vr(X,4)}, 0
        {slow(cfg.vdpos == 0 and not cfg.nov, vdma)}
        {slow(cfg.vdpos == 2 and not cfg.nov, vdma[1:])}
        v_mov_b32 v{ONE}, 0x3f803f80
        ds_write_b128 {vr(vSwr)}, {vr(S0,4)} offset:{L_SX}
        s_mov_b64 exec, {sEB0}
        ds_write2_b32 {vr(vSwr2)}, v{SM+2}, v{SM+3} offset0:0 offset1:32
        s_mov_b64 exec, -1
        v_mov_b32 v{ONE+1}, 0x3f803f80
        {slow(cfg.kpos == 0 and not cfg.nok, kld)}
        v_mov_b32 v{ONE+2}, 0x3f803f80
        s_waitcnt lgkmcnt(0)
        v_mov_b32 v{ONE+3}, 0x3f803f80
        s_barrier""")
        stamp(5)
        R = [q0, q1, k0, k1]; RM = D1
        Vok = e.lab('vok'); Vre = e.lab('vre')
        C1 = vPL + 4; C2 = vPL + 5
        vchk = [f'v_bitop3_b32 v{C1}, v{vREM}, v{vREM+1}, {sTAG} bitop3:0x7e',
                f'v_bitop3_b32 v{C2}, v{vREM+2}, v{vREM+3}, {sTAG} bitop3:0x7e',
                f'v_bitop3_b32 v{C1}, v{C1}, v{C2}, 1 bitop3:0xa8',
                f'v_cmp_ne_u32 vcc, 0, v{C1}',
                f'v_add_f32 v{vREM}, v{v0}, v{vREM}\nv_add_f32 v{vREM+1}, v{v0+1}, v{vREM+1}',
                f'v_add_f32 v{vREM+2}, v{v0+2}, v{vREM+2}\nv_add_f32 v{vREM+3}, v{v0+3}, v{vREM+3}',
                f'v_cvt_pk_bf16_f32 v{VM0}, v{vREM}, v{vREM+1}',
                f'v_cvt_pk_bf16_f32 v{VM1}, v{vREM+2}, v{vREM+3}']
        retry(Vre, J([vld, 's_waitcnt vmcnt(0)'] + vchk + [f's_cbranch_vccz {Vok}']), Vre, 98)
        for w in range(4): e(f'ds_read_b128 {vr(R[w],4)}, {vr(vPerm)} offset:{L_SX+1024*w}')
        e(f'ds_read_b128 {vr(RM,4)}, {vr(vPerm)} offset:{L_SM}')
        e(f"""v_lshrrev_b32 v{vA+16}, 1, {vr(vA16)}
        s_mov_b64 exec, {sEKM}
        {slow(not cfg.nokm, [kmst])}
        s_mov_b64 exec, -1
        v_mov_b32 v{M}, 0""")
        if cfg.vchk == 1:
            e(f's_waitcnt vmcnt({young[0]})'); em(vchk)
        e(f"""s_waitcnt lgkmcnt(3)
        v_pk_add_f32 {vr(q0,2)}, {vr(q0,2)}, {vr(q1,2)}
        v_pk_add_f32 {vr(q0+2,2)}, {vr(q0+2,2)}, {vr(q1+2,2)}
        s_waitcnt lgkmcnt(2)
        v_pk_add_f32 {vr(q0,2)}, {vr(q0,2)}, {vr(k0,2)}
        v_pk_add_f32 {vr(q0+2,2)}, {vr(q0+2,2)}, {vr(k0+2,2)}
        s_waitcnt lgkmcnt(0)
        v_pk_add_f32 {vr(q0,2)}, {vr(q0,2)}, {vr(k1,2)}
        v_pk_add_f32 {vr(RM,2)}, {vr(RM,2)}, {vr(RM+2,2)}
        v_pk_add_f32 {vr(q0+2,2)}, {vr(q0+2,2)}, {vr(k1+2,2)}
        v_add_f32 v{RM}, v{RM}, v{RM+1}
        v_max3_f32 v{M}, v{q0}, v{q0+1}, v{q0+2}
        v_max3_f32 v{M}, v{M}, v{q0+3}, v{RM}
        {st2[4]}
        {st2[5]}
        v_max_f32_dpp v{M2}, v{M}, v{M} quad_perm:[2,3,0,1] row_mask:0xf bank_mask:0xf
        v_max_f32_dpp v{M}, v{M}, v{M} quad_perm:[2,3,0,1] row_mask:0xf bank_mask:0xf
        {st2[6]}
        {st2[7]}
        v_permlane16_swap_b32 v{M}, v{M2}
        v_max_f32 v{RM+1}, v{M}, v{M2}
        v_max_f32 v{M}, v{M}, v{M2}
        v_permlane32_swap_b32 v{M}, v{RM+1}
        v_max_f32 v{M}, v{M}, v{RM+1}
        v_mul_f32 v{M}, {sC}, v{M}
        v_fma_f32 v{q0}, v{q0}, {sC}, -v{M}
        v_fma_f32 v{q0+1}, v{q0+1}, {sC}, -v{M}
        v_fma_f32 v{q0+2}, v{q0+2}, {sC}, -v{M}
        v_fma_f32 v{q0+3}, v{q0+3}, {sC}, -v{M}
        v_fma_f32 v{RM}, v{RM}, {sC}, -v{M}
        v_exp_f32 v{q0}, v{q0}
        v_exp_f32 v{q0+1}, v{q0+1}
        v_exp_f32 v{q0+2}, v{q0+2}
        v_exp_f32 v{q0+3}, v{q0+3}
        v_cvt_pk_bf16_f32 v{PX}, v{q0}, v{q0+1}
        v_cvt_pk_bf16_f32 v{PX+1}, v{q0+2}, v{q0+3}
        v_exp_f32 v{RM}, v{RM}
        v_mov_b32_dpp v{PX+2}, v{PX} quad_perm:[2,3,2,3] row_mask:0xf bank_mask:0xf
        v_mov_b32_dpp v{PX+3}, v{PX+1} quad_perm:[2,3,2,3] row_mask:0xf bank_mask:0xf
        v_mov_b32_dpp v{RM+1}, v{RM} quad_perm:[2,3,2,3] row_mask:0xf bank_mask:0xf
        v_cvt_pk_bf16_f32 v{PM}, v{RM}, v{RM+1}""")
        stamp(6)
        O0, O1 = q0, q1; SUM = vA; OP = vPL + 6
        e(f'v_mfma_f32_16x16x32_bf16 {vr(O0,4)}, {vr(vVX,4)}, {vr(PX,4)}, 0')
        if cfg.vchk == 2:
            e(f's_waitcnt vmcnt({young[0]})'); em(vchk[:4])
        e(f'v_mfma_f32_16x16x32_bf16 {vr(O1,4)}, {vr(vVX+4,4)}, {vr(PX,4)}, 0')
        if cfg.vchk == 2: em(vchk[4:])
        e(f"""s_cbranch_vccnz {Vre}
        {Vok}:
        v_mfma_f32_16x16x16_bf16 {vr(O0,4)}, {vr(VM0,2)}, {vr(PM,2)}, {vr(O0,4)}
        v_mfma_f32_16x16x16_bf16 {vr(O1,4)}, {vr(VM1,2)}, {vr(PM,2)}, {vr(O1,4)}
        v_mfma_f32_16x16x16_bf16 {vr(SUM,4)}, {vr(PM,2)}, {vr(ONE,2)}, 0
        v_mov_b32 v{VM0+1}, v{VM1}
        {J(zero(vACC+8, 8))}
        s_mov_b64 exec, {sEB0}
        v_cvt_pk_bf16_f32 v{OP}, v{O0}, v{O0+1}
        v_cvt_pk_bf16_f32 v{OP+1}, v{O0+2}, v{O0+3}
        v_cvt_pk_bf16_f32 v{OP+2}, v{O1}, v{O1+1}
        v_cvt_pk_bf16_f32 v{OP+3}, v{O1+2}, v{O1+3}
        ds_write_b128 {vr(vOwr)}, {vr(OP,4)} offset:{L_O}
        s_mov_b64 exec, {sEVM}
        {f'buffer_store_dwordx2 {vr(VM0,2)}, v{vA+16}, {WS}, {sVM} offen sc1' if not cfg.nokm else ''}
        s_mov_b64 exec, -1
        v_mfma_f32_16x16x32_bf16 {vr(SUM,4)}, {vr(PX,4)}, {vr(ONE,4)}, {vr(SUM,4)}
        {zero(vACC+16, 4)[0]}
        s_cmp_eq_u32 {sSTEP}, {cfg.nsteps-1}
        s_cbranch_scc1 {Ldone}""")
        if cfg.mrst == 1:
            Lsk = e.lab('norst')
            e(f's_cmp_lt_i32 {sUNIT}, 0\ns_cbranch_scc1 {Lsk}\ns_mov_b64 exec, {sEPUB}')
            e(f'buffer_store_dwordx2 {vr(NEG,2)}, {vr(vPub)}, {WS}, {sRstS} offen sc1')
            if fast: e(f'buffer_store_dwordx2 {vr(NEG,2)}, {vr(vPub)}, {WS}, {sRstF} offen')
            e(f's_mov_b64 exec, -1\n{Lsk}:')
        e(zero(vACC+16, 4)[1])
        e('s_waitcnt lgkmcnt(0)\ns_barrier')
        stamp(7)
        OA = vA + 12
        e(f'ds_read_b128 {vr(OA,4)}, {vr(vPerm)} offset:{L_O}\nds_read_b128 {vr(OA+4,4)}, {vr(vPerm)} offset:{L_O+1024}')
        z = zero(vACC, 8)
        e(f"""{z[0]}
        {kld[0] if cfg.kpos == 1 and not cfg.nok else 's_nop 0'}
        {z[1]}
        {kld[1] if cfg.kpos == 1 and not cfg.nok else 's_nop 0'}
        {z[2]}
        s_nop 0
        {z[3]}""")
        def wo(t, kap): return f'v_smfmac_f32_16x16x64_bf16 {vr(vACC+4*t,4)}, {vr(OA+4*kap,4)}, {W(("o","",t),kap)}, {vr(vIDX)}'
        PO = vPL; SEL = vREM
        def fin(t):
            a = vACC + 4*t
            return [f'v_pk_add_f32 {vr(a,2)}, {vr(a,2)}, {vr(a+2,2)}', f'v_pk_mul_f32 {vr(a,2)}, {vr(a,2)}, {vr(M,2)}', f'v_cvt_pk_bf16_f32 v{PO+t}, v{a}, v{a+1}']
        e(f'v_rcp_f32 v{M}, v{SUM}\nv_rcp_f32 v{M2}, v{SUM+1}')
        a0, a1, a2, a3 = (vACC + 4*t for t in range(4))
        e('s_waitcnt lgkmcnt(1)')
        e(wo(0, 0)); e('s_waitcnt lgkmcnt(0)'); e(wo(0, 1))
        e(f'ds_read_b128 {vr(SEL,4)}, {vr(vA16)} offset:{L_SEL}')
        e(wo(1, 0)); e(f's_add_u32 {sKM}, {sKM}, {32*4096}'); e(wo(1, 1)); e(f's_add_u32 {sVM}, {sVM}, {32*2048}')
        e(wo(2, 0)); e(f's_add_u32 {sSTEP}, {sSTEP}, 1'); e(wo(2, 1)); e(f'v_add_f32 v{a0}, v{a0}, v{a0+2}')
        e(wo(3, 0)); e(f'v_add_f32 v{a0+1}, v{a0+1}, v{a0+3}'); e(wo(3, 1)); e(f'v_add_f32 v{a1}, v{a1}, v{a1+2}')
        e(wo(4, 0)); e(f'v_add_f32 v{a1+1}, v{a1+1}, v{a1+3}'); e(wo(4, 1))
        e(f"""v_add_f32 v{a2}, v{a2}, v{a2+2}
        v_add_f32 v{a2+1}, v{a2+1}, v{a2+3}
        v_mul_f32 v{a0}, v{a0}, v{M}
        v_mul_f32 v{a0+1}, v{a0+1}, v{M2}
        v_cvt_pk_bf16_f32 v{PO}, v{a0}, v{a0+1}""")
        em([fin(3)[0], fin(1)[1], fin(2)[1], fin(3)[1], fin(1)[2], fin(2)[2], fin(3)[2], fin(4)[0], fin(4)[1]])
        e(f'buffer_store_dwordx4 {vr(PO,4)}, {vr(vPst4)}, {WS}, {sPst} offen{sc}')
        e(fin(4)[2])
        e(f'buffer_store_dword v{PO+4}, {vr(vPst1)}, {WS}, {sPst} offen{sc}')
        if cfg.stamps == 1: e('s_memtime s[80:81]')
        e('; MARK 8')
        if cfg.mrst == 0: e(f's_mov_b32 {sT3}, {sRstS}\ns_mov_b32 s57, {sRstF}')
        prep()
        Lnr = e.lab('nored'); Lr = e.lab('red'); Lrr = e.lab('redr')
        e(f's_cmp_lt_i32 {sUNIT}, 0\ns_cbranch_scc1 {Lnr}')
        nops(cfg.d1)
        RA = vA; RD = vA + 16
        rl = J(f'buffer_load_dwordx4 {vr(RA+4*j,4)}, {vr(vA16)}, {WS}, {sPld} offen offset:{1024*j} sc1' for j in range(4))
        e(rl)
        e(f'v_mov_b64 {vr(vPL+6,2)}, -1')
        e(f'{Lr}:\ns_waitcnt vmcnt(3) lgkmcnt(0)')
        e(f"""v_mfma_f32_16x16x32_bf16 {vr(RD,4)}, {vr(SEL,4)}, {vr(RA,4)}, 0
        v_max3_u32 v{M}, v{RA}, v{RA+1}, v{RA+2}""")
        for j in range(1, 4):
            r = RA + 4*j
            e(f"""s_waitcnt vmcnt({3-j})
            v_mfma_f32_16x16x32_bf16 {vr(RD,4)}, {vr(SEL,4)}, {vr(r,4)}, {vr(RD,4)}
            v_max3_u32 v{M}, v{M}, v{r-1}, v{r}
            v_max3_u32 v{M}, v{M}, v{r+1}, v{r+2}""")
        e(f"""v_max_u32 v{M}, v{M}, v{RA+15}
        v_cmp_eq_u32 vcc, -1, v{M}""")
        retry(Lrr, rl, Lr, 99)
        for j in range(4): e(f'v_add_f32_dpp v{RA+j}, v{RD+j}, v{RD+j} row_ror:8 row_mask:0xf bank_mask:0xf')
        e(f"""v_cvt_pk_bf16_f32 v{RA}, v{RA}, v{RA+1}
        v_cvt_pk_bf16_f32 v{RA+1}, v{RA+2}, v{RA+3}
        s_cbranch_vccnz {Lrr}
        s_mov_b64 exec, {sEPUB}
        buffer_store_dwordx2 {vr(RA,2)}, {vr(vPub)}, {WS}, {sPubS} offen sc1""")
        if fast: e(f'buffer_store_dwordx2 {vr(RA,2)}, {vr(vPub)}, {WS}, {sPubF} offen')
        if cfg.mrst == 0: e(f'buffer_store_dwordx2 {vr(vPL+6,2)}, {vr(vPub)}, {WS}, {sT3} offen sc1')
        if cfg.mrst == 0 and fast: e(f'buffer_store_dwordx2 {vr(vPL+6,2)}, {vr(vPub)}, {WS}, s57 offen')
        e(f's_mov_b64 exec, -1\n{Lnr}:')
        e('s_barrier')
        if cfg.stamps == 1:
            e('s_memtime s[100:101]\ns_waitcnt lgkmcnt(0)')
            for i in range(8): e(f's_sub_u32 {sT0}, s{66+2*i}, s{64+2*i}\ns_add_u32 s{84+i}, s{84+i}, {sT0}')
            e('s_mov_b32 s64, s80\ns_mov_b32 s66, s100')
        e('; MARK 9')
        e(f's_branch {Lstep}')
        em(tail)
        if not cfg.standalone:
            e(f'{Kre}:\ns_add_u32 {sT2}, {sSTEP}, 2')
            kvwait(sT2)
            e(f's_branch {Kok}')
        e(f'{Ldone}:')
        if not cfg.standalone:
            e('s_waitcnt vmcnt(0)'); set_flag(e, sFR, 64, vT)
        if cfg.stamps:
            if cfg.stamps != 3: e('s_memtime s[80:81]\ns_waitcnt lgkmcnt(0)\ns_sub_u32 s92, s80, s82\ns_sub_u32 s93, s82, s24')
            e(f"""s_waitcnt lgkmcnt(0)
            s_lshl_b32 {sT0}, {sA}, 5
            s_add_u32 {sT0}, {sT0}, {sH}
            s_lshl_b32 {sT0}, {sT0}, 2
            s_add_u32 {sT0}, {sT0}, {sW}
            s_lshl_b32 {sT0}, {sT0}, 6
            s_add_u32 {sT0}, {sT0}, {WS_DBG}""")
            for i in range(16): e(f'v_mov_b32 v{vA+4+i}, s{84+i if cfg.stamps != 3 else 64+2*i}')
            e('s_mov_b64 exec, 1')
            for j in range(4): e(f'buffer_store_dwordx4 {vr(vA+4+4*j,4)}, {vr(vA16)}, {WS}, {sT0} offen offset:{16*j}')
        e('s_waitcnt vmcnt(0)\ns_branch L_exit')

    e(f's_mov_b32 {sNEAR}, {cfg.near}')
    if cfg.standalone:
        body(cfg.fast)
    else:
        gsync(e, 66)
        LS = e.lab('rslow')
        e(f's_cmp_eq_u32 {sFAST}, 0\ns_cbranch_scc1 {LS}')
        body(1)
        e(f'{LS}:')
        body(0)
```

```python
from common import *
from role_pre import gen_mod, gen_ln_load, gen_ln, sT
sCU = sIDX
sTEAM, sS, sN = 's27', 's29', 's30'
sT0, sT1, sT2, sT3 = 's32', 's33', 's34', 's35'
sFWO, sFLN, sFM1, sFB = 's36', 's37', 's38', 's39'
sO, sAP, sAPr, sX, sX1, sY, sYr, sHID, sHIDr, sHIDt, sX1r, sOUT = 's40','s41','s42','s43','s44','s45','s46','s47','s48','s49','s50','s51'
NTEAM = 3
def WO(k, t): r = 4*(5*k + t); return ('a', r)
def W1(k): return ('a', 160 + 4*k)
def W2(k, t):
    i = 3*k + t
    return ('a', 240 + 4*i) if i < 4 else ('v', 104 + 4*(i-4))
def R4(x): return f'{x[0]}[{x[1]}:{x[1]+3}]'
vA16, vA4, vQF, vRW, vRR, vAPs, vYs, vHs, vOs, vX1, vT = 1, 2, 3, 4, 5, 6, 7, 8, 9, 10, 11
A = 16; ACC = 64
L_RED, L_Y, L_PAR = 0, 40960, 81920

def stage_rows(e, srdn, ppr, ninstr, rowbytes, step_rows, sbase):
    grp = 5 if ppr in (5, 10) else 1
    for j in range(grp):
        e(f'v_add_u32 v20, {64*j}, v17')
        if ppr == 2: e('v_lshrrev_b32 v21, 1, v20')
        else: e(f'v_mul_u32_u24 v21, {6554 if ppr == 10 else 13108}, v20\nv_lshrrev_b32 v21, 16, v21')
        e(f'''v_mul_u32_u24 v22, {ppr}, v21
        v_sub_u32 v22, v20, v22
        v_mul_u32_u24 v21, {rowbytes}, v21
        v_lshl_add_u32 v{24+j}, v22, 4, v21''')
    for n in range(ninstr):
        e(f's_add_u32 m0, s52, {1024*n}')
        if n % grp == 0: e(f's_add_u32 {sT0}, {sbase}, {(n//grp)*step_rows*rowbytes}')
        e(f'buffer_load_dwordx4 v{24 + n % grp}, s[{srdn}:{srdn+3}], {sT0} offen lds')

def gen_T(e, cfg):
    e(f'''s_sub_u32 {sTEAM}, {sGRP}, 5
    s_lshl_b32 {sT}, {sTEAM}, 5
    s_add_u32 {sT}, {sT}, {sCU}
    s_lshl_b32 {sT0}, {sT}, 2
    s_add_u32 {sFWO}, {sT0}, {F_WO}
    s_add_u32 {sFLN}, {sT0}, {F_LN}
    s_add_u32 {sFM1}, {sT0}, {F_M1}
    s_sub_u32 s29, {sT}, 64
    s_sub_u32 {sT1}, {sT}, 4
    s_cmp_ge_u32 {sT}, 64
    s_cselect_b32 s29, s29, {sT1}''')
    for f in (sFWO, sFLN, sFM1): set_flag(e, f, 0, 1)
    L1 = e.lab('t1'); L2 = e.lab('t2'); L3 = e.lab('t3'); L4 = e.lab('t4'); L5 = e.lab('t5'); L6 = e.lab('t6')
    e(f's_cmp_ge_u32 {sT}, 64\ns_cbranch_scc1 {L1}\ns_add_u32 {sT1}, {sT0}, {F_H}')
    set_flag(e, sT1, 0, 1)
    e(f'{L1}:\ns_cmp_lt_u32 {sT}, 36\ns_cbranch_scc1 {L2}\ns_lshl_b32 {sT1}, s29, 2\ns_add_u32 {sT1}, {sT1}, {F_MOD}')
    set_flag(e, sT1, 0, 1)
    e(f'{L2}:')
    arrive(e, 2)
    e(f's_cmp_ge_u32 {sT}, 64\ns_cbranch_scc1 {L3}')
    gen_ln_load(e)
    e(f'{L3}:\ns_cmp_lt_u32 {sT}, 36\ns_cbranch_scc1 {L4}')
    gen_mod(e)
    e(f'{L4}:\ns_cmp_ge_u32 {sT}, 64\ns_cbranch_scc1 {L5}')
    gen_ln(e)
    e(f's_branch {L6}\n{L5}:')
    gsync(e, 10)
    e(f'{L6}:')
    if cfg.get('stop') == 'pre':
        e('s_branch L_exit'); return
    srd(e, 8, 'wo'); srd(e, 12, 'w1'); srd(e, 16, 'w2')
    e(f'''v_and_b32 v17, 63, v0
    v_lshlrev_b32 v{vA16}, 4, v17
    v_lshlrev_b32 v{vA4}, 2, v17
    v_and_b32 v18, 15, v17           ; rho
    v_lshrrev_b32 v19, 4, v17        ; g
    v_bfe_u32 v30, v17, 2, 2         ; rr
    v_and_b32 v31, 3, v17            ; cc
    s_mul_i32 s52, {sW}, 40960
    s_lshr_b32 s53, {sCU}, 3
    s_and_b32 s54, {sCU}, 7
    s_lshr_b32 s55, {sCU}, 4
    s_and_b32 s56, {sCU}, 15
    s_min_u32 s57, {sCU}, 26
    s_waitcnt lgkmcnt(0)
    s_barrier''')
    srd_fin(e, 8, 'wo'); srd_fin(e, 12, 'w1'); srd_fin(e, 16, 'w2')
    e(f'''s_lshl_b32 {sT1}, s53, 2
    s_add_u32 {sT1}, {sT1}, {sW}
    s_mul_i32 {sT1}, {sT1}, {256*1280}
    s_mul_i32 {sT2}, s54, 160
    s_add_u32 {sT1}, {sT1}, {sT2}''')
    stage_rows(e, 8, 10, 40, 1280, 32, sT1)
    e(f'''v_lshl_add_u32 v32, v19, 3, v30
    v_mul_u32_u24 v33, 160, v32
    v_lshl_add_u32 v33, v31, 3, v33
    v_add_u32 v33, s52, v33''')
    for k in range(8):
        e(f's_waitcnt vmcnt({35-5*k})')
        for t in range(5):
            for u in range(2):
                r = WO(k, t); e(f'ds_read_b64_tr_b16 {r[0]}[{r[1]+2*u}:{r[1]+2*u+1}], v33 offset:{5120*k + 640*u + 32*t}')
        e('s_waitcnt lgkmcnt(0)')
    e(f'''s_mul_i32 {sT1}, {sW}, {448*1280}
    s_mul_i32 {sT2}, s56, 80
    s_add_u32 {sT1}, {sT1}, {sT2}''')
    stage_rows(e, 16, 5, 35, 1280, 64, sT1)
    e(f'''v_lshl_add_u32 v33, v19, 2, v30
    v_mul_u32_u24 v33, 80, v33
    v_add_u32 v33, s52, v33
    v_and_b32 v34, 1, v31
    v_lshl_add_u32 v34, v34, 3, v33
    v_lshl_add_u32 v33, v31, 3, v33''')
    for k in range(14):
        if k % 2 == 0: e(f's_waitcnt vmcnt({30-5*(k//2)})')
        for t in range(3):
            for u in range(2):
                r = W2(k, t); e(f'ds_read_b64_tr_b16 {r[0]}[{r[1]+2*u}:{r[1]+2*u+1}], {"v33" if t < 2 else "v34"} offset:{2560*k + 1280*u + 32*t}')
        e('s_waitcnt lgkmcnt(0)')
    e(f'''s_lshl_b32 {sT1}, s57, 7
    s_lshl_b32 {sT2}, {sW}, 5
    s_add_u32 {sT1}, {sT1}, {sT2}''')
    stage_rows(e, 12, 2, 20, 3456, 32, sT1)
    e(f'''v_lshlrev_b32 v33, 5, v32
    v_lshl_add_u32 v33, v31, 3, v33
    v_add_u32 v33, s52, v33''')
    for k in range(20):
        e(f's_waitcnt vmcnt({19-k})')
        for u in range(2):
            r = W1(k); e(f'ds_read_b64_tr_b16 {r[0]}[{r[1]+2*u}:{r[1]+2*u+1}], v33 offset:{1024*k + 128*u}')
        if k % 4 == 3: e('s_waitcnt lgkmcnt(0)')
    srd(e, 8, 'b1'); srd(e, 12, 'b2'); srd(e, 16, 'x'); srd(e, 20, 'out')
    e(f's_mov_b32 {sT0}, {F_MOD}')
    wait_flags(e, vA4, sT0, (1 << 60) - 1, 1, vT, sleep=2)
    e('s_waitcnt lgkmcnt(0)\ns_barrier')
    srd_fin(e, 8, 'b1'); srd_fin(e, 12, 'b2'); srd_fin(e, 16, 'x'); srd_fin(e, 20, 'out')
    Lp = e.lab('par')
    e(f'''s_cmp_lg_u32 {sW}, 0
    s_cbranch_scc1 {Lp}''')
    for j in range(10):
        e(f's_mov_b32 m0, {L_PAR + 1024*j}\ns_mov_b32 {sT0}, {WS_MOD + 5120 + 1024*j}')
        e(f'buffer_load_dwordx4 v{vA16}, {WS}, {sT0} offen sc1 lds')
    e(f'''v_lshlrev_b32 v20, 1, v17
    s_lshl_b32 {sT0}, s57, 7
    s_mul_i32 {sT1}, s56, 80
    buffer_load_ushort v21, v20, s[8:11], {sT0} offen
    buffer_load_ushort v22, v20, s[12:15], {sT1} offen
    v_add_u32 v20, {L_PAR + 10240}, v{vA4}
    s_waitcnt vmcnt(0)
    v_lshlrev_b32 v21, 16, v21
    v_lshlrev_b32 v22, 16, v22
    ds_write_b32 v20, v21
    ds_write_b32 v20, v22 offset:256
    s_waitcnt lgkmcnt(0)
    {Lp}:''')
    e(f'''s_lshl_b32 {sT0}, s53, 3
    s_lshl_b32 {sT1}, {sW}, 1
    s_add_u32 {sT0}, {sT0}, {sT1}
    s_lshl_b32 {sT1}, {sT0}, 2
    v_add_u32 v{vQF}, {sT1}, v{vA4}
    s_lshl_b32 {sO}, {sT0}, 12
    s_add_u32 {sO}, {sO}, {WS_O}
    s_mul_i32 {sT0}, {sW}, 10240
    v_add_u32 v{vRW}, {sT0}, v{vA16}
    s_add_u32 {sYr}, {sT0}, {WS_Y}
    v_lshrrev_b32 v20, 2, v17
    v_lshlrev_b32 v21, 4, v20
    v_lshl_add_u32 v21, v31, 8, v21
    s_lshl_b32 {sT0}, {sW}, 10
    v_add_u32 v{vRR}, {sT0}, v21
    v_mul_u32_u24 v21, 10240, v20
    v_lshl_add_u32 v{vAPs}, v31, 4, v21
    s_mul_i32 {sAP}, s53, 2560
    s_mul_i32 {sT0}, s54, 320
    s_add_u32 {sAP}, {sAP}, {sT0}
    s_add_u32 {sAP}, {sAP}, {WS_AP}
    s_mul_i32 {sAPr}, {sCU}, 10240
    s_add_u32 {sAPr}, {sAPr}, {WS_AP}
    s_mul_i32 {sX}, {sCU}, 1280
    s_mul_i32 {sX1}, {sCU}, 2560
    s_add_u32 {sX1}, {sX1}, {WS_X1}
    s_mul_i32 {sY}, s55, 20480
    s_lshl_b32 {sT0}, s56, 4
    s_add_u32 {sY}, {sY}, {sT0}
    s_add_u32 {sY}, {sY}, {WS_Y}
    v_lshlrev_b32 v21, 2, v31
    v_lshl_add_u32 v{vYs}, v20, 8, v21
    s_and_b32 {sT0}, {sW}, 1
    s_lshl_b32 {sT0}, {sT0}, 3
    v_add_u32 v{vHs}, {sT0}, v{vA16}
    s_lshr_b32 {sT0}, {sW}, 1
    s_lshl_b32 {sT1}, s57, 1
    s_add_u32 {sT0}, {sT0}, {sT1}
    s_lshl_b32 {sHID}, {sT0}, 10
    s_add_u32 {sHID}, {sHID}, {WS_HID}
    s_mul_i32 {sHIDr}, s55, {54*1024}
    s_mul_i32 {sT0}, {sW}, {14*1024}
    s_add_u32 {sHIDr}, {sHIDr}, {sT0}
    s_add_u32 {sHIDr}, {sHIDr}, {WS_HID}
    s_cmp_eq_u32 {sW}, 3
    s_cselect_b32 {sHIDt}, 10, 12
    s_lshl_b32 {sHIDt}, {sHIDt}, 10
    v_mul_u32_u24 v21, 1280, v20
    v_lshl_add_u32 v{vOs}, v31, 3, v21
    v_lshlrev_b32 v{vX1}, 1, v{vOs}
    s_mul_i32 {sOUT}, s55, {16*1280}
    s_mul_i32 {sT0}, s56, 80
    s_add_u32 {sOUT}, {sOUT}, {sT0}
    s_lshl_b32 {sT0}, {sW}, 5
    s_add_u32 {sOUT}, {sOUT}, {sT0}
    s_lshl_b32 {sX1r}, {sOUT}, 1
    s_add_u32 {sX1r}, {sX1r}, {WS_X1}
    s_lshl_b32 {sFB}, {sTEAM}, 7
    s_mov_b32 {sS}, {sTEAM}
    s_mov_b32 s58, 0x33333333
    s_cmp_eq_u32 {sW}, 2
    s_cselect_b32 s58, s58, -1
    s_mov_b32 s59, s58
    s_barrier''')
    LS = e.lab('tslow')
    e(f's_cmp_eq_u32 {sFAST}, 0\ns_cbranch_scc1 {LS}')
    loop(e, '', cfg)
    e(f'{LS}:')
    loop(e, ' sc1', cfg)

def lane_sum2(e, a, b, t):
    for m in ('quad_perm:[1,0,3,2]', 'quad_perm:[2,3,0,1]', 'row_half_mirror', 'row_mirror'):
        e(f'v_add_f32_dpp v{a}, v{a}, v{a} {m} row_mask:0xf bank_mask:0xf\nv_add_f32_dpp v{b}, v{b}, v{b} {m} row_mask:0xf bank_mask:0xf')
    for sw in ('v_permlane16_swap_b32', 'v_permlane32_swap_b32'):
        e(f'''v_mov_b32 v{t}, v{a}
        v_mov_b32 v{t+1}, v{b}
        {sw} v{a}, v{t}
        {sw} v{b}, v{t+1}
        v_add_f32 v{a}, v{a}, v{t}
        v_add_f32 v{b}, v{b}, v{t+1}''')

def norm(e, X, a, b, t):
    e(f'v_add_f32 v{a}, v{X}, v{X+1}\nv_mul_f32 v{b}, v{X}, v{X}\nv_fmac_f32 v{b}, v{X+1}, v{X+1}')
    for i in range(2, 10): e(f'v_add_f32 v{a}, v{a}, v{X+i}\nv_fmac_f32 v{b}, v{X+i}, v{X+i}')
    lane_sum2(e, a, b, t)
    e(f'''v_mul_f32 v{a}, {f2u(1/640)}, v{a}
    v_mul_f32 v{b}, {f2u(1/640)}, v{b}
    v_fma_f32 v{b}, -v{a}, v{a}, v{b}
    v_max_f32 v{b}, 0, v{b}
    v_add_f32 v{b}, {f2u(1e-5)}, v{b}
    v_rsq_f32 v{b}, v{b}
    v_mul_f32 v{a}, v{a}, v{b}''')

def loop(e, sc, cfg):
    L = e.lab('team')
    e(f'''{L}:
    s_add_u32 {sN}, {sS}, 1
    s_mov_b32 {sT0}, {F_QA}''')
    wait_flags(e, vQF, sT0, 3, sN, vT, sleep=2)
    e(f's_lshl_b32 {sT0}, {sS}, 18\ns_add_u32 s60, {sT0}, {sO}\ns_add_u32 s61, s60, 4096\ns_add_u32 s62, s60, {1 << 17}\ns_add_u32 s63, s61, {1 << 17}')
    def old(i):
        k, mt = divmod(i, 2)
        return f'buffer_load_dwordx4 {vr(A+4*(i%12),4)}, v{vA16}, {WS}, s{60 + 2*mt + k//4} offen offset:{1024*(k%4)} sc1'
    for i in range(12): e(old(i))
    issued = 12
    for i in range(16):
        k, mt = divmod(i, 2)
        e(f's_waitcnt vmcnt({issued-1-i})')
        for t in range(5):
            a = vr(ACC + 4*(5*mt + t), 4)
            e(f'v_mfma_f32_16x16x32_bf16 {a}, {R4(WO(k,t))}, {vr(A+4*(i%12),4)}, {"0" if k == 0 else a}')
        if issued < 16: e(old(issued)); issued += 1
    for i in range(10): e(f'ds_write_b128 v{vRW}, {vr(ACC+4*i,4)} offset:{L_RED+1024*i}')
    e(f's_mul_i32 {sT0}, {sS}, {32*10240}\ns_add_u32 {sT1}, {sT0}, {sAP}\ns_waitcnt lgkmcnt(0)\ns_barrier')
    Lk = e.lab('wo2')
    def rrd(j):
        for w in range(4): e(f'ds_read_b128 {vr(A+16*j+4*w,4)}, v{vRR} offset:{L_RED + 10240*w + 4096*j}')
    def rfin(j):
        b = A + 16*j
        e(f'''s_add_u32 {sT2}, {sW}, {4*j}
        s_cmp_ge_u32 {sT2}, 5
        s_cselect_b32 {sT3}, {16*10240 - 5*64}, 0
        s_lshl_b32 {sT2}, {sT2}, 6
        s_add_u32 {sT2}, {sT2}, {sT3}
        s_add_u32 {sT2}, {sT2}, {sT1}''')
        for h in (0, 2):
            e(f'''v_pk_add_f32 {vr(b+h,2)}, {vr(b+h,2)}, {vr(b+4+h,2)}
            v_pk_add_f32 {vr(b+8+h,2)}, {vr(b+8+h,2)}, {vr(b+12+h,2)}
            v_pk_add_f32 {vr(b+h,2)}, {vr(b+h,2)}, {vr(b+8+h,2)}''')
        e(f'buffer_store_dwordx4 {vr(b,4)}, v{vAPs}, {WS}, {sT2} offen{sc}')
    rrd(0); rrd(1)
    e('s_waitcnt lgkmcnt(4)'); rfin(0)
    e(f's_waitcnt lgkmcnt(0)'); rfin(1)
    e(f's_cmp_ge_u32 {sW}, 2\ns_cbranch_scc1 {Lk}')
    rrd(2); e('s_waitcnt lgkmcnt(0)'); rfin(2)
    Lln = e.lab('lnskip')
    e(f'''{Lk}:
    s_waitcnt vmcnt(0)
    s_barrier
    s_cmp_lg_u32 {sW}, 0
    s_cbranch_scc1 {Lln}''')
    set_flag(e, sFWO, sN, vT, sc)
    P = A; XB = A + 40; GA = ACC; SB = ACC + 10; CB = ACC + 20; a_, b_, t_ = ACC + 30, ACC + 31, ACC + 32
    e(f'''s_mul_i32 {sT1}, {sS}, 40960
    s_add_u32 {sT2}, {sT1}, {sX}
    v_lshlrev_b32 v{vT+1}, 1, v{vA4}
    v_add_u32 v{vT+2}, {L_PAR}, v{vT+1}''')
    for j in range(5): e(f'buffer_load_dword v{XB+j}, v{vA4}, s[16:19], {sT2} offen offset:{256*j}')
    for n, b in enumerate((GA, SB, CB)):
        for j in range(5): e(f'ds_read_b64 {vr(b+2*j,2)}, v{vT+2} offset:{2560*n + 512*j}')
    e(f's_add_u32 {sT2}, {sFB}, {F_WO}')
    wait_flags(e, vA4, sT2, 0xffffffff, sN, vT)
    e(f's_add_u32 s60, {sT0}, {sAPr}\ns_add_u32 s61, s60, 2560\ns_add_u32 s62, s60, 5120\ns_add_u32 s63, s60, 7680')
    for j in range(5):
        for g in range(4): e(f'buffer_load_dwordx2 {vr(P+10*g+2*j,2)}, v{vT+1}, {WS}, s{60+g} offen offset:{512*j} sc1')
    e(f's_lshl_b32 {sT2}, {sT1}, 1\ns_add_u32 {sT2}, {sT2}, {sX1}\ns_waitcnt lgkmcnt(0)')
    for j in range(5):
        p = P + 2*j
        e(f'''s_waitcnt vmcnt({16-4*j+j})
        v_pk_add_f32 {vr(p,2)}, {vr(p,2)}, {vr(p+10,2)}
        v_pk_add_f32 {vr(p+20,2)}, {vr(p+20,2)}, {vr(p+30,2)}
        v_lshlrev_b32 v{p+10}, 16, v{XB+j}
        v_and_b32 v{p+11}, 0xffff0000, v{XB+j}
        v_pk_add_f32 {vr(p,2)}, {vr(p,2)}, {vr(p+20,2)}
        v_pk_fma_f32 {vr(p,2)}, {vr(p,2)}, {vr(GA+2*j,2)}, {vr(p+10,2)}
        buffer_store_dwordx2 {vr(p,2)}, v{vT+1}, {WS}, {sT2} offen offset:{512*j}{sc}''')
    H2 = P + 10
    norm(e, P, a_, b_, t_)
    for i in range(10): e(f'v_fma_f32 v{H2+i}, v{P+i}, v{b_}, -v{a_}')
    for j in range(5): e(f'v_pk_fma_f32 {vr(H2+2*j,2)}, {vr(H2+2*j,2)}, {vr(CB+2*j,2)}, {vr(SB+2*j,2)}')
    norm(e, H2, a_, b_, t_)
    e(f's_add_u32 {sT2}, {sT1}, {sY}')
    for j in range(5):
        e(f'''v_fma_f32 v{H2+2*j}, v{H2+2*j}, v{b_}, -v{a_}
        v_fma_f32 v{H2+2*j+1}, v{H2+2*j+1}, v{b_}, -v{a_}
        v_cvt_pk_bf16_f32 v{XB+j}, v{H2+2*j}, v{H2+2*j+1}
        buffer_store_dword v{XB+j}, v{vYs}, {WS}, {sT2} offen{sc}''')
        if j < 4: e(f's_add_u32 {sT2}, {sT2}, 4096')
    e('s_waitcnt vmcnt(0)')
    set_flag(e, sFLN, sN, vT, sc)
    e(f's_add_u32 {sT2}, {sFB}, {F_LN}')
    wait_flags(e, vA4, sT2, 0xffffffff, sN, vT)
    Lm2 = e.lab('m1skip')
    e(f'''{Lln}:
    s_barrier
    s_mul_i32 {sT1}, {sS}, 40960
    s_cmp_ge_u32 {sCU}, 27
    s_cbranch_scc1 {Lm2}''')
    e(f's_add_u32 {sT2}, {sT1}, {sYr}\ns_mul_i32 {sT3}, {sW}, 10240')
    for j in range(10):
        if j % 4 == 0: e(f's_add_u32 m0, {sT3}, {L_Y + 1024*j}\ns_add_u32 s60, {sT2}, {1024*j}')
        e(f'buffer_load_dwordx4 v{vA16}, {WS}, s60 offen offset:{1024*(j%4)} sc1 lds')
    e(f'''v_lshrrev_b32 v{vT+1}, 8, v{vA16}
    v_lshlrev_b32 v{vT+1}, 4, v{vT+1}
    s_lshl_b32 {sT3}, {sW}, 6
    s_add_u32 {sT3}, {sT3}, {L_PAR + 10240}
    v_add_u32 v{vT+1}, {sT3}, v{vT+1}
    ds_read_b128 {vr(ACC+8,4)}, v{vT+1}
    v_add_u32 v{vT+2}, {L_Y}, v{vA16}
    s_mul_i32 {sT2}, {sS}, {108*1024}
    s_add_u32 s60, {sT2}, {sHID}
    s_add_u32 s61, s60, {54*1024}
    s_waitcnt vmcnt(0) lgkmcnt(0)
    s_barrier''')
    D = 8
    def yrd(i): k, mt = divmod(i, 2); return f'ds_read_b128 {vr(A+4*(i%(D+2)),4)}, v{vT+2} offset:{20480*mt + 1024*k}'
    for i in range(D): e(yrd(i))
    for i in range(40):
        k, mt = divmod(i, 2)
        if i + D < 40: e(yrd(i+D))
        e(f's_waitcnt lgkmcnt({min(D, 39-i)})')
        a = vr(ACC+4*mt, 4)
        e(f'v_mfma_f32_16x16x32_bf16 {a}, {R4(W1(k))}, {vr(A+4*(i%(D+2)),4)}, {vr(ACC+8,4) if k == 0 else a}')
    c0 = -2*math.sqrt(2/math.pi)*math.log2(math.e)
    e(f's_mov_b32 s62, {f2u(c0*0.044715)}\nv_mov_b32 v{vT+1}, {f2u(c0)}')
    U = ACC + 12
    for i in range(8): e(f'v_mul_f32 v{U+i}, v{ACC+i}, v{ACC+i}')
    for i in range(8): e(f'v_fma_f32 v{U+i}, v{U+i}, s62, v{vT+1}')
    for i in range(8): e(f'v_mul_f32 v{U+i}, v{U+i}, v{ACC+i}')
    for i in range(8): e(f'v_exp_f32 v{U+i}, v{U+i}')
    for i in range(8): e(f'v_add_f32 v{U+i}, 1.0, v{U+i}')
    for i in range(8): e(f'v_rcp_f32 v{U+i}, v{U+i}')
    for i in range(8): e(f'v_mul_f32 v{U+i}, v{U+i}, v{ACC+i}')
    for i in range(4): e(f'v_cvt_pk_bf16_f32 v{ACC+i}, v{U+2*i}, v{U+2*i+1}')
    Lf = e.lab('m1f')
    e(f'''buffer_store_dwordx2 {vr(ACC,2)}, v{vHs}, {WS}, s60 offen{sc}
    buffer_store_dwordx2 {vr(ACC+2,2)}, v{vHs}, {WS}, s61 offen{sc}
    s_waitcnt vmcnt(0)
    s_barrier
    s_cmp_lg_u32 {sW}, 0
    s_cbranch_scc1 {Lm2}''')
    set_flag(e, sFM1, sN, vT, sc)
    AC2 = 72; X1 = 84; B2 = 88; GB = 92
    e(f'''{Lm2}:
    s_lshl_b32 {sT2}, {sT1}, 1
    s_add_u32 {sT2}, {sT2}, {sX1r}
    buffer_load_dwordx4 {vr(X1,4)}, v{vX1}, {WS}, {sT2} offen sc1
    v_and_b32 v{vT+1}, 48, v{vA16}
    s_lshl_b32 {sT3}, {sW}, 6
    v_add_u32 v{vT+1}, {sT3}, v{vT+1}
    s_mul_i32 {sT3}, s56, 160
    v_add_u32 v{vT+2}, {sT3}, v{vT+1}
    v_add_u32 v{vT+1}, {L_PAR}, v{vT+1}
    v_add_u32 v{vT+2}, {L_PAR}, v{vT+2}
    ds_read_b128 {vr(B2,4)}, v{vT+1} offset:{10240+256}
    ds_read_b128 {vr(GB,4)}, v{vT+2} offset:7680
    s_add_u32 {sT2}, {sFB}, {F_M1}''')
    wait_flags(e, vA4, sT2, (1 << 27) - 1, sN, vT)
    e(f'''s_mul_i32 {sT2}, {sS}, {108*1024}
    s_add_u32 s60, {sT2}, {sHIDr}
    s_add_u32 s61, s60, 4096
    s_add_u32 s62, s60, 8192
    s_add_u32 s63, s60, {sHIDt}''')
    for k in range(14): e(f'buffer_load_dwordx4 {vr(A+4*k,4)}, v{vA16}, {WS}, s{60+k//4} offen offset:{1024*(k%4)} sc1')
    for k in range(14):
        e(f's_waitcnt vmcnt({13-k})')
        for t in range(3):
            a = vr(AC2+4*t, 4)
            e(f'v_mfma_f32_16x16x32_bf16 {a}, {R4(W2(k,t))}, {vr(A+4*k,4)}, {"0" if k == 0 else a}')
    for t in range(3): e(f'ds_write_b128 v{vRW}, {vr(AC2+4*t,4)} offset:{L_RED+1024*t}')
    Le = e.lab('m2e')
    e(f'''s_add_u32 {sT2}, {sT1}, {sOUT}
    s_waitcnt lgkmcnt(0)
    s_barrier
    s_cmp_eq_u32 {sW}, 3
    s_cbranch_scc1 {Le}''')
    rrd(0)
    e('s_waitcnt lgkmcnt(0)')
    for h in (0, 2):
        e(f'''v_pk_add_f32 {vr(A+h,2)}, {vr(A+h,2)}, {vr(A+4+h,2)}
        v_pk_add_f32 {vr(A+8+h,2)}, {vr(A+8+h,2)}, {vr(A+12+h,2)}
        v_pk_add_f32 {vr(A+h,2)}, {vr(A+h,2)}, {vr(B2+h,2)}
        v_pk_add_f32 {vr(A+h,2)}, {vr(A+h,2)}, {vr(A+8+h,2)}
        v_pk_fma_f32 {vr(A+h,2)}, {vr(A+h,2)}, {vr(GB+h,2)}, {vr(X1+h,2)}''')
    e(f'''v_cvt_pk_bf16_f32 v{A+4}, v{A}, v{A+1}
    v_cvt_pk_bf16_f32 v{A+5}, v{A+2}, v{A+3}
    s_mov_b64 exec, s[58:59]
    buffer_store_dwordx2 {vr(A+4,2)}, v{vOs}, s[20:23], {sT2} offen
    s_mov_b64 exec, -1
    {Le}:
    s_barrier
    s_add_u32 {sS}, {sS}, {NTEAM}
    s_cmp_lt_u32 {sS}, 64
    s_cbranch_scc1 {L}
    s_branch L_exit''')
```

```python
import sys
from asmlib import Asm
from common import *
from role_r import gen_R, RCfg
from role_g import gen_KV, gen_QA
from role_t import gen_T
NAME = 'adaLN_cond__memory_aug_recurrent_mem_tr__mixer_channel_mlp__prompt_kernel'
REF = 'adaLN_cond__memory_aug_recurrent_mem_tr__mixer_channel_mlp__prompt.s'
def gen(head='', **kw):
    rc = RCfg(); rc.standalone = 0
    for k, v in kw.items():
        if hasattr(rc, k): setattr(rc, k, v)
    e = Asm()
    e(f'''s_cmp_lt_u32 s2, 256
    s_cbranch_scc1 L_start
    L_exit:
    s_endpgm
    L_start:
    s_load_dwordx2 s[4:5], s[0:1], {KA['ws']}
    s_and_b32 {sGRP}, s2, 7
    s_lshr_b32 {sIDX}, s2, 3
    v_lshrrev_b32 v1, 6, v0
    v_readfirstlane_b32 {sW}, v1
    s_mov_b32 s6, {WS_BYTES}
    s_mov_b32 s7, 0x20000
    s_mov_b32 {sSPIN}, {kw.get('spin', 400000)}
    s_waitcnt lgkmcnt(0)
    s_cmp_ge_u32 {sGRP}, 5
    s_cbranch_scc1 L_team
    s_cmp_eq_u32 {sGRP}, 4
    s_cbranch_scc1 L_qa
    s_cmp_eq_u32 {sGRP}, 3
    s_cbranch_scc1 L_v
    s_cmp_eq_u32 {sGRP}, 2
    s_cbranch_scc1 L_k
    s_mov_b32 s27, {sGRP}''')
    gen_R(e, rc)
    e('L_k:'); gen_KV(e, 'k')
    e('L_v:'); gen_KV(e, 'v')
    e('L_qa:'); gen_QA(e)
    e('L_team:'); gen_T(e, kw)
    if kw.get('slow'):
        e.lines = [(f's_mov_b32 {sFAST}, 0' if l.startswith(f's_cselect_b32 {sFAST},') else l) for l in e.lines]
    e.lines = [l for l in e.lines if not l.startswith('; MARK')]
    body = e.finalize()
    return f'''{head}; @launch grid=(256,1,1) block=(256,1,1) lds=163840
.amdgcn_target "amdgcn-amd-amdhsa--gfx950"
.text
.globl {NAME}
.p2align 8
.type {NAME},@function
{NAME}:
{body}.section .rodata,"a"
.p2align 6
.amdhsa_kernel {NAME}
  .amdhsa_next_free_vgpr 512
  .amdhsa_next_free_sgpr 102
  .amdhsa_accum_offset 256
  .amdhsa_group_segment_fixed_size 0
  .amdhsa_kernarg_size 136
  .amdhsa_user_sgpr_count 2
  .amdhsa_user_sgpr_kernarg_segment_ptr 1
  .amdhsa_system_sgpr_workgroup_id_x 1
.end_amdhsa_kernel
'''
if __name__ == '__main__':
    head = ''.join(l for l in open(REF + '.ref') if l.startswith(';') and '@launch' not in l and 'Override' not in l and 'grid=ceil' not in l)
    open(sys.argv[1] if len(sys.argv) > 1 else REF, 'w').write(gen(head))
```

```python
from layout import *
import struct, math
def f2u(x): return struct.unpack('<I', struct.pack('<f', x))[0]
WS = 's[4:7]'
sGRP, sIDX, sW = 's24', 's25', 's26'
sSPIN = 's31'
sFAST = 's3'
J = '\n'.join
def vr(b, n=1): return f'v{b}' if n == 1 else f'v[{b}:{b+n-1}]'
def srd(e, s, name): e(f's_load_dwordx2 s[{s}:{s+1}], s[0:1], {KA[name]}')
def srd_fin(e, s, name): e(f's_mov_b32 s{s+2}, {SZ[name]}\ns_mov_b32 s{s+3}, 0x20000')
def spin(e): e(f's_sub_u32 {sSPIN}, {sSPIN}, 1\ns_cbranch_scc1 L_exit')

F_K, F_V, F_R, F_QA = (WS_FLAG + 8192*i for i in (0, 1, 2, 4))
F_WO, F_LN, F_M1 = (WS_FLAG + 40960 + 1024*i for i in range(3))
D_MIX, D_MODA, D_MODB, D_H, D_ARM = 32, 36, 40, 44, 48
G_GO, G_MODA, G_MODB, G_H, G_NEAR, G_ARM = 128, 132, 136, 140, 144, 148
DBG = 's[96:97]'
sOWN = 's98'

def wait_flags(e, vaddr, soff, mask, target, vtmp, sleep=0):
    L = e.lab('wf'); D = e.lab('wfd')
    e(f's_mov_b64 exec, {mask}' if not isinstance(mask, int) or mask in (-1,) or 0 <= mask <= 64 else f's_mov_b32 exec_lo, {mask & 0xffffffff}\ns_mov_b32 exec_hi, {mask >> 32}')
    e(f'''{L}:
    buffer_load_dword v{vtmp}, v{vaddr}, {WS}, {soff} offen sc1
    s_waitcnt vmcnt(0)
    v_cmp_gt_u32 vcc, {target}, v{vtmp}
    s_cbranch_vccz {D}''')
    if sleep: e(f's_sleep {sleep}')
    spin(e)
    e(f's_branch {L}\n{D}:\ns_mov_b64 exec, -1')

def set_flag(e, soff, val, vtmp, sc=' sc1'):
    e(f'''s_mov_b64 exec, 1
    v_mov_b32 v{vtmp}, {val}
    buffer_store_dword v{vtmp}, off, {WS}, {soff}{sc}
    s_mov_b64 exec, -1''')

L_CL = 163832
vCL = 254
def claim_issue(e):
    L = e.lab('ci')
    e(f'''s_or_b32 s99, {sW}, {sOWN}
    s_cbranch_scc1 {L}
    s_lshl_b32 s99, {sGRP}, 2
    s_lshl_b32 s95, 1, {sIDX}
    s_atomic_or s95, {DBG}, s99 glc
    {L}:''')

def claim_check(e, at=L_CL):
    L = e.lab('cc'); W = e.lab('ccw')
    e(f'''s_cmp_lg_u32 {sOWN}, 0
    s_cbranch_scc1 {L}
    v_mov_b32 v{vCL}, {at}
    s_cmp_lg_u32 {sW}, 0
    s_cbranch_scc1 {W}
    s_waitcnt lgkmcnt(0)
    v_mov_b32 v{vCL+1}, s95
    ds_write_b32 v{vCL}, v{vCL+1}
    s_waitcnt lgkmcnt(0)
    {W}:
    s_barrier
    ds_read_b32 v{vCL+1}, v{vCL}
    s_waitcnt lgkmcnt(0)
    v_readfirstlane_b32 s99, v{vCL+1}
    s_barrier
    s_bitcmp1_b32 s99, {sIDX}
    s_cbranch_scc1 L_reclaim
    {L}:''')

def reclaim(e):
    L = e.lab('cl'); D = e.lab('cld'); N = e.lab('cln'); W = e.lab('clw'); A = e.lab('cla')
    e(f'''L_reclaim:
    s_waitcnt vmcnt(0)
    s_cmp_lg_u32 {sW}, 0
    s_cbranch_scc1 {W}
    s_mov_b64 exec, 1
    {L}:
    s_ff0_i32_b32 {sIDX}, s99
    s_cmp_lt_i32 {sIDX}, 0
    s_cbranch_scc0 {A}
    s_add_u32 {sGRP}, {sGRP}, 1
    s_and_b32 {sGRP}, {sGRP}, 7
    s_mov_b32 {sIDX}, 0
    v_mov_b32 v2, 0
    v_mov_b32 v3, 1
    global_atomic_or v2, v3, {DBG} offset:{D_MIX}
    s_waitcnt vmcnt(0)''')
    spin(e)
    e(f'''{A}:
    s_lshl_b32 s99, {sGRP}, 2
    v_mov_b32 v2, s99
    s_lshl_b32 s99, 1, {sIDX}
    v_mov_b32 v3, s99
    global_atomic_or v3, v2, v3, {DBG} sc0
    s_waitcnt vmcnt(0)
    v_readfirstlane_b32 s99, v3
    s_bitcmp1_b32 s99, {sIDX}
    s_cbranch_scc1 {L}
    v_mov_b32 v2, {sGRP}
    v_mov_b32 v3, {sIDX}
    ds_write_b64 v{vCL}, v[2:3]
    s_mov_b64 exec, -1
    s_waitcnt lgkmcnt(0)
    {W}:
    s_barrier
    ds_read_b64 v[2:3], v{vCL}
    s_lshl_b32 s99, {sW}, 6
    v_mbcnt_lo_u32_b32 v0, -1, 0
    v_mbcnt_hi_u32_b32 v0, -1, v0
    v_add_u32 v0, s99, v0
    s_waitcnt lgkmcnt(0)
    v_readfirstlane_b32 {sGRP}, v2
    v_readfirstlane_b32 {sIDX}, v3
    s_and_b32 {sGRP}, {sGRP}, 7
    s_and_b32 {sIDX}, {sIDX}, 31
    s_mov_b32 {sOWN}, 1
    s_barrier
    s_branch L_dispatch''')

def count_in(e, cnt, n, go, v):
    L = e.lab('ci')
    e(f'''s_mov_b64 exec, 1
    v_mov_b32 v{v}, 0
    v_mov_b32 v{v+1}, 1
    global_atomic_add v{v+2}, v{v}, v{v+1}, {DBG} offset:{cnt} sc0
    s_waitcnt vmcnt(0)
    v_cmp_ne_u32 vcc, {n-1}, v{v+2}
    s_cbranch_vccnz {L}
    global_store_dword v{v}, v{v+1}, {DBG} offset:{go} sc1
    {L}:
    s_mov_b64 exec, -1''')

def wait_go(e, mask, v, sleep=2):
    L = e.lab('gs'); D = e.lab('gsd')
    e(f'''v_mbcnt_lo_u32_b32 v{v}, -1, 0
    v_lshlrev_b32 v{v}, 2, v{v}
    s_mov_b64 exec, {mask}
    {L}:
    global_load_dword v{v+1}, v{v}, {DBG} offset:128 sc1
    s_waitcnt vmcnt(0)
    v_cmp_eq_u32 vcc, 0, v{v+1}
    s_cbranch_vccz {D}
    s_sleep {sleep}''')
    spin(e)
    e(f's_branch {L}\n{D}:\ns_mov_b64 exec, -1')

def gsync(e, v, mask):
    wait_go(e, mask, v)
    e(f'''v_readlane_b32 s99, v{v+1}, 0
    s_cmp_eq_u32 s99, 1
    s_cselect_b32 {sFAST}, 1, 0''')

def coordinate(e, v):
    L = e.lab('co'); D = e.lab('cod')
    e(f'''v_mbcnt_lo_u32_b32 v{v}, -1, 0
    v_lshlrev_b32 v{v}, 2, v{v}
    s_mov_b64 exec, 0xff
    {L}:
    global_load_dword v{v+1}, v{v}, {DBG} sc1
    s_waitcnt vmcnt(0)
    v_cmp_ne_u32 vcc, -1, v{v+1}
    s_cbranch_vccz {D}
    s_sleep 8''')
    spin(e)
    e(f'''s_branch {L}
    {D}:
    s_mov_b64 exec, 1
    global_atomic_or v{v+1}, v{v}, v{v}, {DBG} offset:{D_MIX} sc0
    s_waitcnt vmcnt(0)
    v_add_u32 v{v+1}, 1, v{v+1}
    global_store_dword v{v}, v{v+1}, {DBG} offset:{G_GO} sc1
    s_mov_b64 exec, -1''')

def probe_near(e, v):
    L = e.lab('pn')
    e(f'''s_mov_b64 exec, 1
    v_mov_b32 v{v}, 0
    s_mov_b32 s40, -1
    s_mov_b32 s41, -1
    s_mov_b32 s42, 0
    {L}:''')
    for c in range(2):
        P = e.lab('pp')
        e(f'''s_lshl_b32 s43, s42, 8
        s_add_u32 s43, s43, {8192*c}
        s_mov_b32 s44, 0
        buffer_store_dword v{v}, off, {WS}, s43 sc1
        {P}:
        s_add_u32 s44, s44, 1
        s_getreg_b32 s45, hwreg(HW_REG_IB_STS, 0, 4)
        s_cmp_lt_u32 s44, 4000
        s_cselect_b32 s45, s45, 0
        s_cmp_lg_u32 s45, 0
        s_cbranch_scc1 {P}
        s_min_u32 s{40+c}, s{40+c}, s44''')
    e(f'''s_add_u32 s42, s42, 1
    s_cmp_lt_u32 s42, 4
    s_cbranch_scc1 {L}
    s_cmp_lt_u32 s40, s41
    s_cselect_b32 s42, 1, 2
    s_lshl_b32 s40, s40, 8
    s_lshl_b32 s41, s41, 20
    s_or_b32 s42, s42, s40
    s_or_b32 s42, s42, s41
    v_mov_b32 v{v+1}, s42
    global_store_dword v{v}, v{v+1}, {DBG} offset:{G_NEAR} sc1
    s_mov_b64 exec, -1''')

TRACE = [0]
WS_TR = 0x8000000
def trace(e, slot, v, idx=None):
    if not TRACE[0]: return
    L = e.lab('tr')
    e(f'''s_cmp_lg_u32 {sW}, 0
    s_cbranch_scc1 {L}
    {'s_memrealtime' if TRACE[0] == 1 else 's_memtime'} s[100:101]
    s_waitcnt lgkmcnt(0)
    s_lshl_b32 s101, {sGRP}, 5
    s_add_u32 s101, s101, {sIDX}
    s_lshl_b32 s101, s101, 9
    s_add_u32 s101, s101, {slot}
    {f's_add_u32 s101, s101, {idx}' if idx else ''}
    s_lshl_b32 s101, s101, 2
    s_add_u32 s101, s101, {WS_TR}
    s_mov_b64 exec, 1
    v_mov_b32 v{v}, s100
    buffer_store_dword v{v}, off, {WS}, s101
    s_mov_b64 exec, -1
    {L}:''')
```

```python
from common import *
sH = sIDX
sS, sBUF, sHS, sOUT, sFL, sT0, sT1 = 's28', 's29', 's30', 's32', 's33', 's34', 's35'
vA16, vRD = 2, 3
HB = 40960

def load_weights(e, name, kind, claim=True):
    srd(e, 8, name)
    e(f'''v_and_b32 v1, 63, v0
    v_lshlrev_b32 v{vA16}, 4, v1
    v_and_b32 v4, 15, v1
    v_lshrrev_b32 v5, 4, v1
    v_lshlrev_b32 v6, 2, v5
    v_xor_b32 v6, v6, v4
    v_lshlrev_b32 v6, 4, v6
    v_lshl_add_u32 v6, v5, 13, v6
    s_lshl_b32 {sT0}, {sH}, 8
    s_lshl_b32 {sT1}, {sW}, 17
    s_add_u32 {sT0}, {sT0}, {sT1}
    v_add_u32 v6, {sT0}, v6
    s_lshl_b32 {sT1}, {sW}, 12
    s_waitcnt lgkmcnt(0)''')
    srd_fin(e, 8, name)
    for n in range(10):
        e(f's_add_u32 m0, {sT1}, {n*16384}')
        for t in range(4):
            e(f's_mov_b32 {sT0}, {(64*n + 4*t)*8192 - 1024*t}')
            e(f'buffer_load_dwordx4 v6, s[8:11], {sT0} offen offset:{1024*t} lds')
    e(f'''v_bfe_u32 v7, v1, 2, 2           ; rr
    v_and_b32 v8, 3, v1              ; cc
    v_and_b32 v9, 1, v5              ; G&1
    v_lshrrev_b32 v10, 1, v5         ; kh''')
    if kind == 'v':
        e('v_mov_b32 v11, v8\nv_mov_b32 v12, v9')
    else:
        e('v_and_b32 v11, 1, v8\nv_lshl_add_u32 v11, v9, 1, v11\nv_lshrrev_b32 v12, 1, v8')
    e(f'''v_xor_b32 v13, {sW}, v7
    v_lshl_add_u32 v11, v13, 2, v11
    v_lshlrev_b32 v11, 4, v11
    v_lshl_add_u32 v11, v12, 3, v11
    v_lshl_add_u32 v11, v7, 8, v11
    v_lshl_add_u32 v11, v10, 11, v11''')
    for n in range(10):
        e(f's_waitcnt vmcnt({4*(9-n)})\ns_barrier')
        e(f'v_add_u32 v12, {n*16384}, v11')
        for k in range(4):
            for t in range(2):
                a = 4*(4*n + k) + 2*t
                e(f'ds_read_b64_tr_b16 a[{a}:{a+1}], v12 offset:{4096*k + 1024*t}')
        e('s_waitcnt lgkmcnt(0)')
        if n == 7 and claim: claim_issue(e)
    if claim: claim_check(e, 0)

def h_dma():
    out = []
    for j in range(10):
        x = f's_add_u32 m0, {sBUF}, {1024*j}\ns_add_u32 {sT0}, {sHS}, {1024*j}\n' if j % 4 == 0 else ''
        out.append(x + f'buffer_load_dwordx4 v{vA16}, {WS}, {sT0} offen offset:{1024*(j%4)} sc1 lds')
    out.append(f'''s_add_u32 {sHS}, {sHS}, {HB}
    s_add_u32 {sBUF}, {sBUF}, {HB}
    s_sub_u32 {sT0}, {sBUF}, {3*HB}
    s_cselect_b32 {sBUF}, {sBUF}, {sT0}''')
    return out

def start_h(e, mask=40):
    trace(e, 1, 4)
    wait_go(e, mask, 4)
    trace(e, 3, 4)
    e(f'''s_barrier
    s_mul_i32 {sBUF}, {sW}, 10240
    s_add_u32 {sHS}, {sBUF}, {WS_H}
    s_mov_b32 {sS}, 0
    s_mov_b32 s36, 0''')
    e(J(h_dma() + h_dma()))

def gemm(e, kind, ACC, FR, extra=(), every=1):
    D = 5; extra = list(extra)
    e(f'v_add_u32 v{vRD}, s36, v{vA16}')
    def rd(k): return f'ds_read_b128 {vr(FR+4*(k%(D+2)),4)}, v{vRD} offset:{1024*k}'
    for k in range(D): e(rd(k))
    e(f'''s_add_u32 s36, s36, {HB}
    s_cmp_eq_u32 s36, {3*HB}
    s_cselect_b32 s36, 0, s36''')
    for k in range(40):
        if k + D < 40: e(rd(k+D))
        e(f's_waitcnt lgkmcnt({min(D, 39-k)})')
        w = f'a[{4*k}:{4*k+3}]'; f = vr(FR+4*(k%(D+2)), 4)
        a, b = (f, w) if kind == 'v' else (w, f)
        e(f'v_mfma_f32_32x32x16_bf16 {vr(ACC,16)}, {a}, {b}, {"0" if k == 0 else vr(ACC,16)}')
        if extra and k % every == 0: e(extra.pop(0))
    assert not extra

def gen_KV(e, kind):
    F = F_K if kind == 'k' else F_V
    e(f's_lshl_b32 {sFL}, {sH}, 8\ns_add_u32 {sFL}, {sFL}, {F}')
    load_weights(e, 'wk' if kind == 'k' else 'wv', kind)
    if kind == 'k':
        P = e.lab('nopr')
        e(f's_or_b32 {sT0}, {sH}, {sW}\ns_cbranch_scc1 {P}')
        probe_near(e, 4)
        e(f'{P}:')
    start_h(e)
    ACC = 16; FR = 32; PK = 8
    e(f'''s_lshl_b32 {sOUT}, {sH}, 13
    s_lshl_b32 {sT0}, {sW}, 11
    s_add_u32 {sOUT}, {sOUT}, {sT0}
    s_add_u32 {sOUT}, {sOUT}, {WS_K if kind == 'k' else WS_V}
    s_waitcnt vmcnt(10)''')
    L = e.lab('kv'); N = e.lab('kvn'); E = e.lab('kve')
    e(f'''s_mov_b32 {sT1}, 0
    {L}:
    s_barrier
    s_cmp_lg_u32 {sW}, 0
    s_cbranch_scc1 {N}''')
    set_flag(e, sFL, sT1, 1)
    trace(e, 64, 1, sS)
    e(f'{N}:')
    gemm(e, kind, ACC, FR, h_dma(), 3)
    for i in range(8): e(f'v_cvt_pk_bf16_f32 v{PK+i}, v{ACC+2*i}, v{ACC+2*i+1}')
    e(f'''buffer_store_dwordx4 {vr(PK,4)}, v{vA16}, {WS}, {sOUT} offen sc1
    buffer_store_dwordx4 {vr(PK+4,4)}, v{vA16}, {WS}, {sOUT} offen offset:1024 sc1
    s_add_u32 {sOUT}, {sOUT}, {32*8192}
    s_mov_b32 {sT1}, {sS}
    s_add_u32 {sS}, {sS}, 1
    s_cmp_gt_u32 {sS}, 2
    s_cbranch_scc1 {E}
    s_waitcnt vmcnt(0)
    s_mov_b32 {sT1}, {sS}
    {E}:
    s_cmp_lt_u32 {sS}, 64
    s_waitcnt vmcnt(12)
    s_cbranch_scc1 {L}
    s_waitcnt vmcnt(0)
    s_barrier''')
    set_flag(e, sFL, 64, 1)
    trace(e, 4, 1)
    e('s_branch L_exit')

def gen_QA(e):
    sKV, sKM, sVM, sC, sN = 's37', 's38', 's39', 's40', 's41'
    e(f's_lshl_b32 {sFL}, {sH}, 8\ns_add_u32 {sFL}, {sFL}, {F_QA}')
    claim_issue(e); claim_check(e)
    La = e.lab('arm')
    e(f'''v_mov_b64 v[8:9], -1
    v_mov_b64 v[10:11], -1
    v_mov_b64 v[12:13], 0
    v_lshlrev_b32 v6, 4, v0
    v_lshlrev_b32 v7, 3, v0
    s_lshl_b32 {sT0}, {sH}, 11
    s_add_u32 {sT0}, {sT0}, {WS_FLAG}
    buffer_store_dwordx2 v[12:13], v7, {WS}, {sT0} offen sc1
    s_lshl_b32 {sT0}, {sH}, 12
    s_add_u32 {sT0}, {sT0}, {WS_M}
    buffer_store_dwordx4 v[8:11], v6, {WS}, {sT0} offen sc1
    s_mul_i32 {sT0}, {sH}, {18*4096}
    s_add_u32 {sT0}, {sT0}, {WS_VX}''')
    for j in range(18): e(f'buffer_store_dwordx4 v[8:11], v6, {WS}, {sT0} offen sc1\ns_add_u32 {sT0}, {sT0}, 4096')
    e(f's_waitcnt vmcnt(0)\ns_barrier\ns_cmp_lg_u32 {sW}, 0\ns_cbranch_scc1 {La}')
    count_in(e, D_ARM, 32, G_ARM, 8)
    e(f'{La}:')
    load_weights(e, 'wq', 'q', False)
    start_h(e)
    LQ = 3*HB
    vQw, vQr, vK, vV, vFL, vF, vVM, vLF = 4, 5, 6, 7, 8, 9, 10, 11
    BIAS = 12
    ACC = 20; FR = 36
    KX = 64; VX = 96; KM = 112; VM = 128; Q = 136
    S = 152; PX = 164; PM = 168; ONE = 172; O = 176; SUM = 192; T = 196; OP = 200
    e(f'''v_and_b32 v20, 15, v1            ; rho
    v_lshrrev_b32 v21, 4, v1         ; g
    s_and_b32 {sT0}, {sW}, 1
    s_lshr_b32 {sT1}, {sW}, 1        ; e half
    s_lshl_b32 s42, {sW}, 11
    s_add_u32 s42, s42, {LQ}
    v_add_u32 v{vQw}, s42, v{vA16}
    v_lshlrev_b32 v22, 9, v21
    v_lshl_add_u32 v23, v20, 4, v22
    s_lshl_b32 s42, {sT0}, 8
    s_add_u32 s42, s42, {LQ}
    v_add_u32 v{vQr}, s42, v23
    s_lshl_b32 s42, {sT1}, 12
    v_add_u32 v{vV}, s42, v23
    v_lshrrev_b32 v24, 3, v20
    v_lshl_add_u32 v24, v24, 8, v22
    v_and_b32 v25, 7, v20
    v_lshl_add_u32 v{vK}, v25, 4, v24
    s_lshl_b32 s42, {sT1}, 10
    v_lshl_add_u32 v{vVM}, v1, 3, s42
    s_lshl_b32 {sOUT}, {sT0}, 17
    s_lshl_b32 s42, {sH}, 12
    s_add_u32 {sOUT}, {sOUT}, s42
    s_add_u32 {sKM}, s42, {WS_KM}
    s_lshr_b32 s42, s42, 1
    s_add_u32 {sVM}, s42, {WS_VM}
    s_lshl_b32 s42, {sT1}, 11
    s_add_u32 {sOUT}, {sOUT}, s42
    s_add_u32 {sOUT}, {sOUT}, {WS_O}
    s_lshl_b32 {sKV}, {sH}, 13
    s_add_u32 {sKV}, {sKV}, {WS_K}
    s_mov_b32 {sC}, {f2u(128 ** -0.5 * math.log2(math.e))}
    s_lshl_b32 s42, {sT0}, 4
    v_add_u32 v20, s42, v20
    v_lshrrev_b32 v22, 1, v21
    v_and_b32 v23, 1, v21
    v_lshlrev_b32 v23, 2, v23
    v_lshl_add_u32 v22, v22, 4, v23
    v_mov_b32 v24, {f2u(-1e30)}''')
    for kt in range(2):
        for r in range(4):
            e(f'v_add_u32 v23, {8*kt+r}, v22\nv_cmp_gt_u32 vcc, v23, v20\nv_cndmask_b32 v{BIAS+4*kt+r}, 0, v24, vcc')
    e(f'''v_lshlrev_b32 v{vFL}, 13, v1
    s_lshl_b32 s43, {sH}, 8
    s_add_u32 s43, s43, {F_K}''')
    for i in range(4): e(f'v_mov_b32 v{ONE+i}, 0x3f803f80\nv_mov_b32 v{VM+2*i+1}, 0')
    e(f'v_mov_b32 v{PM+1}, 0\ns_mov_b32 s44, 0')
    LF = LQ + 8192
    M, M2 = FR, FR+1
    def fetch():
        ld = [f's_add_u32 s45, {sKV}, 4096\ns_add_u32 s46, {sKV}, {WS_V - WS_K}']
        for kap in range(4): ld.append(f'buffer_load_dwordx4 {vr(KM+4*kap,4)}, v{vA16}, {WS}, {sKM} offen offset:{1024*kap} sc1')
        for kk in range(2): ld.append(f'buffer_load_dwordx2 {vr(T+2*kk,2)}, v{vVM}, {WS}, {sVM} offen offset:{512*kk} sc1')
        for kap in range(4):
            for kt in range(2):
                ld.append(f'buffer_load_dwordx4 {vr(KX+8*kap+4*kt,4)}, v{vK}, {WS}, {sKV if kap < 2 else "s45"} offen offset:{2048*(kap%2)+128*kt} sc1')
        for kk in range(2):
            for tau in range(2):
                ld.append(f'buffer_load_dwordx4 {vr(VX+8*kk+4*tau,4)}, v{vV}, {WS}, s46 offen offset:{2048*kk+256*tau} sc1')
        return ld
    def qout(young):
        for i in range(8): e(f'v_cvt_pk_bf16_f32 v{FR+i}, v{ACC+2*i}, v{ACC+2*i+1}')
        e(f"""ds_write_b128 v{vQw}, {vr(FR,4)}
        ds_write_b128 v{vQw}, {vr(FR+4,4)} offset:1024
        s_waitcnt vmcnt({young}) lgkmcnt(0)
        s_barrier""")
    qrd = [f'ds_read_b128 {vr(Q+4*kap,4)}, v{vQr} offset:{2048*kap}' for kap in range(4)]
    def attend(last):
        for kap in range(4):
            for kt in range(2):
                e(f'v_mfma_f32_16x16x32_bf16 {vr(S+4*kt,4)}, {vr(KX+8*kap+4*kt,4)}, {vr(Q+4*kap,4)}, {vr(BIAS+4*kt,4) if kap == 0 else vr(S+4*kt,4)}')
            e(f'v_mfma_f32_16x16x32_bf16 {vr(S+8,4)}, {vr(KM+4*kap,4)}, {vr(Q+4*kap,4)}, {"0" if kap == 0 else vr(S+8,4)}')
            e(f'v_mov_b32 v{VM+2*kap}, v{T+kap}')
        e(f"""s_add_u32 {sKV}, {sKV}, {32*8192}
        s_add_u32 {sKM}, {sKM}, {32*4096}
        s_add_u32 {sVM}, {sVM}, {32*2048}""")
        if not last: e(J(qrd))
        e(f"""v_max3_f32 v{M}, v{S}, v{S+1}, v{S+2}
        v_max3_f32 v{M}, v{M}, v{S+3}, v{S+4}
        v_max3_f32 v{M}, v{M}, v{S+5}, v{S+6}
        v_max3_f32 v{M}, v{M}, v{S+7}, v{S+10}
        v_max_f32 v{M2}, v{M}, v{S+11}
        v_max_f32 v{M}, v{M}, v{S+11}
        v_permlane16_swap_b32 v{M}, v{M2}
        v_max_f32 v{M2+1}, v{M}, v{M2}
        v_max_f32 v{M}, v{M}, v{M2}
        v_permlane32_swap_b32 v{M}, v{M2+1}
        v_max_f32 v{M}, v{M}, v{M2+1}
        v_mul_f32 v{M}, {sC}, v{M}""")
        sv = [S+i for i in range(8)] + [S+10, S+11]
        for x in sv: e(f'v_fma_f32 v{x}, v{x}, {sC}, -v{M}')
        for x in sv: e(f'v_exp_f32 v{x}, v{x}')
        for i in range(4): e(f'v_cvt_pk_bf16_f32 v{PX+i}, v{S+2*i}, v{S+2*i+1}')
        e(f"""v_cvt_pk_bf16_f32 v{PM}, v{S+10}, v{S+11}
        v_mfma_f32_16x16x32_bf16 {vr(SUM,4)}, {vr(ONE,4)}, {vr(PX,4)}, 0""")
        for i in range(4): e(f'v_mfma_f32_16x16x32_bf16 {vr(O+4*i,4)}, {vr(VX+4*i,4)}, {vr(PX,4)}, 0')
        e(f'v_mfma_f32_16x16x16_bf16 {vr(SUM,4)}, {vr(ONE,2)}, {vr(PM,2)}, {vr(SUM,4)}')
        for i in range(4): e(f'v_mfma_f32_16x16x16_bf16 {vr(O+4*i,4)}, {vr(VM+2*i,2)}, {vr(PM,2)}, {vr(O+4*i,4)}')
        if not last:
            W = e.lab('qaw')
            e(f"""s_cmp_lg_u32 {sW}, 0
            s_cbranch_scc1 {W}
            s_waitcnt vmcnt(1)
            ds_write_b32 v{vLF}, v{vF}
            {W}:""")
        e(f'v_rcp_f32 v{M}, v{SUM}')
        for i in range(8): e(f'v_pk_mul_f32 {vr(O+2*i,2)}, {vr(O+2*i,2)}, {vr(M,2)} op_sel_hi:[1,0]')
        for i in range(8): e(f'v_cvt_pk_bf16_f32 v{OP+i}, v{O+2*i}, v{O+2*i+1}')
        e(f"""buffer_store_dwordx4 {vr(OP,4)}, v{vA16}, {WS}, {sOUT} offen sc1
        buffer_store_dwordx4 {vr(OP+4,4)}, v{vA16}, {WS}, {sOUT} offen offset:1024 sc1
        s_add_u32 {sOUT}, {sOUT}, {2*32*4096}""")
    e(f"""v_lshlrev_b32 v{vLF}, 2, v1
    v_add_u32 v{vLF}, {LF}, v{vLF}
    v_mov_b32 v{vF}, 0
    ds_write_b32 v{vLF}, v{vF}
    s_waitcnt vmcnt(10)
    s_barrier""")
    gemm(e, 'q', ACC, FR, h_dma(), 3)
    qout(10)
    e(J(qrd))
    L = e.lab('qa'); G = e.lab('qag'); N = e.lab('qan'); N2 = e.lab('qan2'); Z = e.lab('qaz')
    e(f"""{L}:
    s_waitcnt lgkmcnt(0)
    s_barrier
    ds_read_b32 v{vF}, v{vLF}
    s_add_u32 {sN}, {sS}, 1
    s_mov_b64 exec, 15
    s_waitcnt lgkmcnt(0)
    v_cmp_gt_u32 vcc, {sN}, v{vF}
    s_mov_b64 exec, -1
    s_cbranch_vccz {G}
    s_waitcnt vmcnt(0)
    s_barrier
    s_cmp_lg_u32 {sW}, 0
    s_cbranch_scc1 {N}""")
    set_flag(e, sFL, sS, vF)
    wait_flags(e, vFL, 's43', 15, sN, vF, sleep=1)
    e(f'{N}:\ns_barrier\n{G}:')
    trace(e, 192, vF, sS)
    e(f's_cmp_eq_u32 {sS}, 63\ns_cbranch_scc1 {Z}')
    gemm(e, 'q', ACC, FR, fetch() + h_dma())
    qout(10)
    e(f"""s_cmp_lg_u32 {sW}, 0
    s_cbranch_scc1 {N2}
    s_mov_b64 exec, 15
    buffer_load_dword v{vF}, v{vFL}, {WS}, s43 offen sc1""")
    trace(e, 64, M, sS)
    set_flag(e, sFL, sS, M)
    e(f'{N2}:')
    attend(False)
    e(f's_mov_b32 {sS}, {sN}\ns_branch {L}\n{Z}:')
    e(J(fetch()))
    e('s_waitcnt vmcnt(0)')
    attend(True)
    e(f's_waitcnt vmcnt(0)\ns_barrier\ns_cmp_lg_u32 {sW}, 0\ns_cbranch_scc1 L_exit')
    set_flag(e, sFL, 64, vF)
    trace(e, 4, vF)
    e('s_branch L_exit')
```

```python
from common import *
sT = 's28'

def gen_mod(e):
    srd(e, 8, 'wmod'); srd(e, 12, 'c')
    Wv = 32; C = 16; ACC = 112; S = 120
    e(f'''v_lshrrev_b32 v2, 3, v0
    v_and_b32 v3, 7, v0
    v_mul_u32_u24 v4, 40, v2
    s_mov_b32 s30, {20*7680}
    v_mul_lo_u32 v5, s30, v2
    v_lshl_add_u32 v5, v3, 4, v5
    s_lshl_b32 s30, s29, 7
    s_waitcnt lgkmcnt(0)''')
    srd_fin(e, 8, 'wmod'); srd_fin(e, 12, 'c')
    e(f'''buffer_load_dwordx4 v[{C}:{C+3}], v4, s[12:15], 0 offen
    buffer_load_dwordx4 v[{C+4}:{C+7}], v4, s[12:15], 0 offen offset:16
    buffer_load_dwordx2 v[{C+8}:{C+9}], v4, s[12:15], 0 offen offset:32''')
    for j in range(20):
        e(f'buffer_load_dwordx4 v[{Wv+4*j}:{Wv+4*j+3}], v5, s[8:11], s30 offen')
        if j < 19: e('s_add_u32 s30, s30, 7680')
    claim_issue(e)
    for i in range(8): e(f'v_mov_b32 v{ACC+i}, 0')
    e(f's_mov_b32 s30, {f2u(-math.log2(math.e))}\ns_waitcnt vmcnt(20)')
    for j in range(20):
        s = S + j
        e(f'v_lshlrev_b32 v{s}, 16, v{C+j//2}' if j % 2 == 0 else f'v_and_b32 v{s}, 0xffff0000, v{C+j//2}')
        e(f'''v_mul_f32 v6, s30, v{s}
        v_exp_f32 v6, v6
        v_add_f32 v6, 1.0, v6
        v_rcp_f32 v6, v6
        v_mul_f32 v{s}, v{s}, v6
        v_cvt_pk_bf16_f32 v{s}, v{s}, v{s}
        v_and_b32 v{s}, 0xffff0000, v{s}''')
    for j in range(20):
        e(f's_waitcnt vmcnt({19-j})')
        for i in range(4):
            w = Wv + 4*j + i
            e(f'''v_lshlrev_b32 v6, 16, v{w}
            v_and_b32 v7, 0xffff0000, v{w}
            v_fmac_f32 v{ACC+2*i}, v6, v{S+j}
            v_fmac_f32 v{ACC+2*i+1}, v7, v{S+j}''')
    claim_check(e)
    L = e.lab('modw')
    e(f'''v_lshlrev_b32 v6, 5, v0
    ds_write_b128 v6, v[{ACC}:{ACC+3}]
    ds_write_b128 v6, v[{ACC+4}:{ACC+7}] offset:16
    s_waitcnt lgkmcnt(0)
    s_barrier
    s_cmp_lg_u32 {sW}, 0
    s_cbranch_scc1 {L}
    v_lshlrev_b32 v6, 2, v0''')
    for h in range(4):
        for i in range(8): e(f'ds_read_b32 v{Wv+8*h+i}, v6 offset:{256*(8*h+i)}')
        e('s_waitcnt lgkmcnt(0)')
    n = 32
    while n > 1:
        n //= 2
        for i in range(n): e(f'v_add_f32 v{Wv+i}, v{Wv+i}, v{Wv+n+i}')
    e(f'''v_cvt_pk_bf16_f32 v{Wv}, v{Wv}, v{Wv}
    v_and_b32 v{Wv}, 0xffff0000, v{Wv}
    v_add_f32 v7, 1.0, v{Wv}
    v_cvt_pk_bf16_f32 v7, v7, v7
    v_and_b32 v7, 0xffff0000, v7
    s_sub_u32 s30, s29, 10
    s_cmp_lt_u32 s30, 10
    s_cselect_b64 vcc, -1, 0
    s_sub_u32 s30, s29, 40
    s_cmp_lt_u32 s30, 10
    s_cselect_b64 vcc, -1, vcc
    v_cndmask_b32 v{Wv}, v{Wv}, v7, vcc
    s_lshl_b32 s30, s29, 8
    s_add_u32 s30, s30, {WS_MOD}
    buffer_store_dword v{Wv}, v6, {WS}, s30 offen sc1
    s_waitcnt vmcnt(0)
    s_cmp_ge_u32 s29, 20
    s_cbranch_scc1 {L}b''')
    count_in(e, D_MODA, 20, G_MODA, 8)
    e(f'{L}b:')
    trace(e, 5, 7)
    count_in(e, D_MODB, 60, G_MODB, 8)
    e(f'{L}:')

def gen_ln_load(e):
    srd(e, 16, 'x')
    e(f'''v_and_b32 v2, 31, v0
    v_bfe_u32 v3, v0, 5, 1
    v_mul_u32_u24 v4, 1280, v2
    v_lshl_add_u32 v4, v3, 4, v4
    s_mul_i32 s30, {sT}, 40960
    s_mul_i32 s32, {sW}, 320
    s_add_u32 s30, s30, s32
    s_waitcnt lgkmcnt(0)''')
    srd_fin(e, 16, 'x')
    for j in range(10): e(f'buffer_load_dwordx4 v[{160+4*j}:{163+4*j}], v4, s[16:19], s30 offen offset:{32*j}')

def gen_ln(e, young=0):
    X = 160; F = 16
    e('v_mov_b32 v8, 0\nv_mov_b32 v9, 0')
    for i in range(40):
        if i % 4 == 0: e(f's_waitcnt vmcnt({young + 9 - i//4})')
        e(f'''v_lshlrev_b32 v{F+2*i}, 16, v{X+i}
        v_and_b32 v{F+2*i+1}, 0xffff0000, v{X+i}
        v_add_f32 v8, v8, v{F+2*i}
        v_fmac_f32 v9, v{F+2*i}, v{F+2*i}
        v_add_f32 v8, v8, v{F+2*i+1}
        v_fmac_f32 v9, v{F+2*i+1}, v{F+2*i+1}''')
    e(f'''v_and_b32 v2, 31, v0
    v_lshrrev_b32 v3, 5, v0
    v_lshlrev_b32 v4, 6, v2
    v_lshl_add_u32 v5, v3, 3, v4
    ds_write_b64 v5, v[8:9] offset:8192
    s_waitcnt lgkmcnt(0)
    s_barrier''')
    for i in range(4): e(f'ds_read_b128 v[{96+4*i}:{99+4*i}], v4 offset:{8192+16*i}')
    e('s_waitcnt lgkmcnt(0)')
    for n in (8, 4, 2):
        for i in range(n): e(f'v_add_f32 v{96+i}, v{96+i}, v{96+n+i}')
    e(f'''v_mul_f32 v96, {f2u(1/640)}, v96       ; mean
    v_mul_f32 v97, {f2u(1/640)}, v97
    v_fma_f32 v97, -v96, v96, v97
    v_max_f32 v97, 0, v97
    v_add_f32 v97, {f2u(1e-5)}, v97
    v_rsq_f32 v97, v97
    v_mul_f32 v96, v96, v97''')
    for i in range(80): e(f'v_fma_f32 v{F+i}, v{F+i}, v97, -v96')
    trace(e, 1, 10)
    claim_check(e)
    wait_go(e, 2, 10, sleep=1)
    e('v_and_b32 v2, 63, v0')
    trace(e, 6, 11)
    e(f'''v_lshlrev_b32 v10, 4, v2
    s_mul_i32 s30, {sW}, 640
    s_add_u32 s30, s30, {WS_MOD}
    s_add_u32 s32, s30, {2560-1024}
    s_lshl_b32 s33, {sW}, 11
    s_add_u32 m0, s33, 16384
    v_bfe_u32 v3, v0, 5, 1
    v_lshlrev_b32 v3, 5, v3
    buffer_load_dwordx4 v10, {WS}, s30 offen sc1 lds
    buffer_load_dwordx4 v10, {WS}, s32 offen offset:1024 sc1 lds
    v_add_u32 v3, s33, v3
    s_mul_i32 s30, {sT}, 40960
    s_mul_i32 s32, {sW}, 10240
    s_add_u32 s30, s30, s32
    s_add_u32 s30, s30, {WS_H}
    s_waitcnt vmcnt(0)''')
    def rd(j):
        b = 96 + 16*(j % 2)
        for k in range(2):
            e(f'ds_read_b128 v[{b+4*k}:{b+4*k+3}], v3 offset:{16384+64*j+16*k}')
            e(f'ds_read_b128 v[{b+8+4*k}:{b+8+4*k+3}], v3 offset:{16384+1024+64*j+16*k}')
    rd(0)
    for j in range(10):
        if j < 9: rd(j+1)
        e(f's_waitcnt lgkmcnt({4 if j < 9 else 0})')
        b = 96 + 16*(j % 2)
        for i in range(8): e(f'v_fma_f32 v{F+8*j+i}, v{F+8*j+i}, v{b+8+i}, v{b+i}')
        for i in range(4): e(f'v_cvt_pk_bf16_f32 v{X+4*j+i}, v{F+8*j+2*i}, v{F+8*j+2*i+1}')
        if j in (4, 8): e('s_add_u32 s30, s30, 4096')
        e(f'buffer_store_dwordx4 v[{X+4*j}:{X+4*j+3}], v10, {WS}, s30 offen offset:{1024*(j%4)} sc1')
    L = e.lab('lnf')
    e(f'''s_waitcnt vmcnt(0)
    s_barrier
    s_cmp_lg_u32 {sW}, 0
    s_cbranch_scc1 {L}''')
    count_in(e, D_H, 64, G_H, 12)
    trace(e, 7, 11)
    e(f'{L}:')
```

```python
from common import *

def f2u(x): return struct.unpack('<I', struct.pack('<f', x))[0]
SCALE_LOG2E = f2u(128 ** -0.5 * math.log2(math.e))

WS = 's[4:7]'
sH, sW, sA = 's25', 's26', 's27'
sSTEP, sUNIT, sNEAR, sSPIN = 's28', 's29', 's30', 's31'
sMP, sPubS, sPubF, sRstS, sRstF = 's32', 's33', 's34', 's35', 's36'
sVXst, sVXld, sTAG = 's37', 's38', 's39'
sPst, sPld, sPrst = 's40', 's41', 's42'
sK, sV, sKM = 's43', 's44', 's45'
sC = 's46'
sMPc, sSc, sFc, sVXo, sVXp, sPc = 's47', 's48', 's49', 's50', 's51', 's52'
sT0, sT1, sT2, sT3 = 's53', 's54', 's55', 's56'
sEB0 = 's[58:59]'
sEPUB = 's[60:61]'
sEKM = 's[12:13]'; sEVM = 's[14:15]'; sVM = 's16'; sPro = 's17'; sPro2 = 's18'; sPrst2 = 's19'; sV2 = 's20'; sPold = 's21'; sSEEN = 's22'; sFK = 's23'; sFR = 's2'

L_MEM, L_SX, L_SM, L_O, L_SEL, L_V = 0, 10240, 14336, 15360, 17408, 18432

vIDX = 1; vID = 2
vA16, vM16, vM4, vMrd, vMrd4, vPerm, vSwr, vSwr2, vOwr, vPst4, vPst1, vPub, vKld, vVld, vStg, vStg2 = range(4, 20)
vT = 20
vPL = 22
vVrd = 0
vA = 32
vACC = 52
vKX = 76; vVX = 84; vREM = 92
vSTG = 96

def vr(b, n=1): return f'v{b}' if n == 1 else f'v[{b}:{b+n-1}]'

def srd(e, s, name):
    e(f's_load_dwordx2 s[{s}:{s+1}], s[0:1], {KA[name]}')
def srd_fin(e, s, name):
    e(f's_mov_b32 s{s+2}, {SZ[name]}\ns_mov_b32 s{s+3}, 0x20000')

def interleave(e, mf, fill, per=1, start=0):
    fill = list(fill)
    for i, m in enumerate(mf):
        e(m)
        if i >= start:
            for _ in range(per):
                if fill: e(fill.pop(0))
    for f in fill: e(f)

class RCfg:
    fast = 1; stamps = 0; nsteps = 64; d1 = 0; d2 = 200; d3 = 0; standalone = 1; near = -1; rmode = 2; rp = 24; vl = 51; vchk = 2; KL = 2; gap = 120; mrst = 1; smax = 1; kpos = 0; vdpos = 1; prst = 1; nofl = 0; nok = 0; nov = 0; nokm = 0; kvfix = 0

def tiles_plan():
    lds = [('q','L',0), ('k','L',0), ('q','R',4), ('k','R',4), ('o','',3), ('o','',4)]
    allt = [(m,'L',c) for c in range(5) for m in 'vqk'] + [(m,'R',c) for c in range(5) for m in 'qk'] + [('o','',t) for t in range(5)]
    reg = [t for t in allt if t not in lds]
    loc = {}
    for i, t in enumerate(reg):
        loc[t] = ('a', 16*i) if i < 16 else ('v', 128 + 16*(i-16))
    order = reg + lds
    slot = {t: n % 10 for n, t in enumerate(order)}
    for i, t in enumerate(lds): loc[t] = ('v', vSTG + 16*(i % 2))
    return order, loc, slot, lds

def gen_R(e, cfg):
    order, loc, slot, lds = tiles_plan()
    def W(t, j):
        k, b = loc[t]; return f'{k}[{b+8*j}:{b+8*j+7}]'
    def stamp(i):
        if cfg.stamps == 1: e(f's_memtime s[{64+2*i}:{65+2*i}]')
        e(f'; MARK {i}')
    def nops(c):
        n = c // 4
        while n > 0:
            k = min(n, 16); e(f's_nop {k-1}'); n -= k
    srd(e, 8, 'wq'); srd(e, 12, 'wk'); srd(e, 16, 'wv'); srd(e, 20, 'wo')
    e(f'''
    v_and_b32 v0, 63, v0
    v_and_b32 v40, 15, v0            ; rho
    v_lshrrev_b32 v41, 4, v0         ; g
    v_lshlrev_b32 {vr(vA16)}, 4, v0
    s_waitcnt lgkmcnt(0)''')
    srd_fin(e, 8, 'wq'); srd_fin(e, 12, 'wk'); srd_fin(e, 16, 'wv'); srd_fin(e, 20, 'wo')
    e(f'''
    v_and_b32 v42, 1, v41
    v_lshrrev_b32 v43, 1, v41        ; rr>>1
    s_lshr_b32 {sT0}, {sW}, 1
    s_and_b32 {sT1}, {sW}, 1
    v_lshlrev_b32 v44, 2, v41
    v_xor_b32 v44, v44, v40
    v_lshlrev_b32 v44, 4, v44
    s_lshl_b32 {sT2}, {sH}, 8
    v_add_u32 v44, {sT2}, v44
    v_lshlrev_b32 v45, 6, v42
    v_lshl_add_u32 v45, v43, 1, v45
    s_lshl_b32 {sT2}, {sT0}, 2
    s_add_u32 {sT2}, {sT2}, {sT1}
    v_add_u32 v45, {sT2}, v45
    v_lshl_add_u32 v60, v45, 13, v44
    v_lshl_add_u32 v45, v43, 3, v42
    s_lshl_b32 {sT2}, {sT0}, 4
    s_lshl_b32 {sT3}, {sT1}, 2
    s_add_u32 {sT2}, {sT2}, {sT3}
    v_add_u32 v45, {sT2}, v45
    v_lshl_add_u32 v61, v45, 13, v44
    v_bfe_u32 v45, v0, 3, 1
    v_bfe_u32 v46, v0, 4, 1
    v_lshl_add_u32 v45, v46, 3, v45
    v_lshrrev_b32 v46, 5, v0
    v_lshl_add_u32 v45, v46, 2, v45
    s_lshl_b32 {sT2}, {sT0}, 6
    s_lshl_b32 {sT3}, {sT1}, 4
    s_add_u32 {sT2}, {sT2}, {sT3}
    v_add_u32 v45, {sT2}, v45
    v_mul_u32_u24 v45, 1280, v45
    v_and_b32 v46, 7, v0
    v_lshlrev_b32 v47, 1, v41
    v_xor_b32 v46, v46, v47
    v_lshl_add_u32 v45, v46, 4, v45
    s_mul_i32 {sT2}, {sH}, 163840
    s_mul_i32 {sT3}, {sA}, 640
    s_add_u32 {sT2}, {sT2}, {sT3}
    v_add_u32 v62, {sT2}, v45
    v_bfe_u32 v45, v0, 2, 2          ; rr
    v_and_b32 v46, 3, v0             ; cc
    v_xor_b32 v47, {sW}, v45
    v_lshl_add_u32 v47, v47, 2, v46
    v_lshlrev_b32 v47, 4, v47
    v_lshl_add_u32 v47, v45, 8, v47
    v_lshl_add_u32 v63, v41, 12, v47
    v_lshl_add_u32 v47, v42, 2, v45  ; (gB&1)*4+rr
    v_lshrrev_b32 v48, 1, v47
    v_xor_b32 v48, {sW}, v48
    v_lshlrev_b32 v48, 5, v48
    v_lshl_add_u32 v48, v46, 3, v48
    v_lshl_add_u32 v48, v47, 7, v48
    v_lshl_add_u32 v64, v43, 12, v48
    s_mul_i32 s57, {sA}, {320*8192}
    s_sub_u32 s62, {320*8192}, s57
    s_lshl_b32 s63, {sW}, 12
    v_add_u32 {vr(vStg)}, s63, {vr(vA16)}''')
    def dma(n):
        m, side, c = order[n]
        e(f's_add_u32 m0, s63, {slot[order[n]]*16384}')
        for t4 in range(4):
            if m == 'o':
                so = (32*(t4 >> 1) + 2*(t4 & 1))*1280 - 1024*t4 + 128*c
                e(f's_mov_b32 {sT0}, {so}')
                e(f'buffer_load_dwordx4 v62, s[20:23], {sT0} offen offset:{1024*t4} lds')
            else:
                rows = (16*c + 128*(t4 & 1) + 8*(t4 >> 1)) if c < 4 else (256 + 32*(t4 >> 1) + 2*(t4 & 1))
                so = rows*8192 - 1024*t4
                e(f's_add_u32 {sT0}, {"s57" if side == "L" else "s62"}, {so}')
                s = dict(q=8, k=12, v=16)[m]
                e(f'buffer_load_dwordx4 {"v60" if c < 4 else "v61"}, s[{s}:{s+3}], {sT0} offen offset:{1024*t4} lds')
    e(f'''    ; reducer unit
    s_mov_b32 {sUNIT}, -1
    s_cmp_eq_u32 {sW}, 0
    s_cselect_b32 {sUNIT}, {sH}, {sUNIT}
    s_and_b32 {sT0}, {sH}, 3
    s_lshl_b32 {sT0}, {sT0}, 2
    s_or_b32 {sT0}, {sT0}, {sW}
    s_lshr_b32 {sT1}, {sH}, 2
    s_add_u32 {sT1}, {sT1}, 32
    s_cmp_eq_u32 {sT0}, 1
    s_cselect_b32 {sUNIT}, {sT1}, {sUNIT}
    s_cmp_lt_i32 {sUNIT}, 0
    s_cselect_b32 {sT0}, {sH}, {sUNIT}
    s_lshl_b32 {sT0}, {sT0}, 7
    v_and_b32 v54, 7, v0
    v_lshlrev_b32 v55, 3, v54
    v_lshl_add_u32 v55, v42, 6, v55
    v_add_u32 {vr(vPub)}, {sT0}, v55
    s_mov_b32 s60, 0x00ff00ff
    s_mov_b32 s61, 0
    s_lshl_b32 {sT0}, {sA}, 5
    s_add_u32 {sT0}, {sT0}, {sH}
    s_lshl_b32 {sT0}, {sT0}, 8
    s_add_u32 {sFR}, {sT0}, {F_R}''')
    for n in range(10): dma(n)
    e(f'''
    v_bfe_u32 v45, v0, 1, 1          ; b
    v_and_b32 v46, 1, v0             ; i&1
    v_lshrrev_b32 v47, 2, v40        ; i>>1
    v_lshl_add_u32 v48, v47, 1, v46  ; i
    v_mov_b32 {vr(vIDX)}, 0x4444
    v_mov_b32 v49, 0xeeee
    v_cmp_eq_u32 vcc, 1, v45
    v_cndmask_b32 {vr(vIDX)}, {vr(vIDX)}, v49, vcc
    v_lshlrev_b32 v49, 4, v48
    v_lshl_add_u32 v50, v45, 7, v49
    v_lshl_add_u32 {vr(vPerm)}, v41, 8, v50
    s_lshl_b32 {sT0}, {sW}, 10
    v_add_u32 {vr(vSwr)}, {sT0}, {vr(vPerm)}
    s_lshl_b32 {sT0}, {sW}, 2
    s_add_u32 {sT0}, {sT0}, {L_SM}
    v_add_u32 {vr(vSwr2)}, {sT0}, {vr(vPerm)}
    v_lshl_add_u32 v50, v41, 7, v49
    s_lshl_b32 {sT0}, {sW}, 9
    v_add_u32 {vr(vOwr)}, {sT0}, v50
    v_lshlrev_b32 v50, 4, v45
    v_lshl_add_u32 v50, v46, 6, v50
    v_lshl_add_u32 v51, v42, 5, v50
    v_lshl_add_u32 v51, v47, 7, v51
    v_lshl_add_u32 {vr(vMrd)}, v43, 9, v51
    v_and_b32 v51, 1, v47
    v_lshl_add_u32 v51, v51, 5, v50
    v_lshrrev_b32 v52, 1, v47
    v_lshl_add_u32 v51, v52, 7, v51
    v_lshl_add_u32 {vr(vMrd4)}, v41, 8, v51
    s_mul_i32 {sT0}, {sW}, 1280
    v_add_u32 {vr(vM16)}, {sT0}, {vr(vA16)}
    s_add_u32 {sT0}, {sT0}, 1024
    v_lshlrev_b32 v51, 2, v0
    v_add_u32 {vr(vM4)}, {sT0}, v51
    v_lshl_add_u32 v51, v52, 2, v41
    s_lshl_b32 {sT0}, {sW}, 3
    v_add_u32 v51, {sT0}, v51
    v_and_b32 v53, 7, v0
    v_lshlrev_b32 v54, 4, v53
    v_lshl_add_u32 v51, v51, 12, v54
    s_lshl_b32 {sT1}, {sH}, 7
    v_add_u32 {vr(vPst4)}, {sT1}, v51
    s_lshl_b32 {sT0}, {sW}, 1
    s_add_u32 {sT0}, {sT0}, 32
    v_add_u32 v51, {sT0}, v43
    v_and_b32 v55, 31, v0
    v_lshlrev_b32 v55, 2, v55
    v_lshl_add_u32 v51, v51, 12, v55
    v_add_u32 {vr(vPst1)}, {sT1}, v51
    s_lshl_b32 {sT0}, {sW}, 11
    v_lshl_add_u32 v51, v41, 9, {sT0}
    v_lshl_add_u32 {vr(vVld)}, v40, 4, v51
    v_lshl_add_u32 v51, v52, 8, v51
    v_add_u32 {vr(vKld)}, v51, v54
    v_mov_b32 v55, 0x3f80
    v_lshlrev_b32 v56, 4, v46
    v_lshlrev_b32 v55, v56, v55
    v_cmp_eq_u32 vcc, v47, v41
    v_cndmask_b32 v55, 0, v55, vcc
    v_cmp_eq_u32 vcc, 0, v45
    v_cndmask_b32 {vr(vID)}, 0, v55, vcc
    v_cndmask_b32 {vr(vID+1)}, v55, 0, vcc
    v_mov_b32 v65, 0x3f80
    v_bfe_u32 v66, v0, 2, 1
    v_lshlrev_b32 v66, 4, v66
    v_lshlrev_b32 v65, v66, v65
    v_cmp_gt_u32 vcc, 8, v40
    v_cndmask_b32 v65, 0, v65, vcc
    v_and_b32 v66, 3, v0''')
    for j in range(4):
        e(f'v_cmp_eq_u32 vcc, {j}, v66\nv_cndmask_b32 v{56+j}, 0, v65, vcc')
    e(f'''
    s_mov_b32 s58, 0x33333333
    s_mov_b32 s59, 0x33333333
    s_mov_b32 {sC}, {SCALE_LOG2E}
    v_add_u32 {vr(vStg2)}, 0x10000, {vr(vStg)}''')
    def wb(t):
        base = slot[t]*16384; k, b = loc[t]
        e(f'v_add_u32 v66, {base}, {vr(vStg)}')
        for j in range(4): e(f'ds_write_b128 v66, {k}[{b+4*j}:{b+4*j+3}] offset:{1024*j}')
    last = 9
    for n in range(30):
        t = order[n]
        e(f's_waitcnt vmcnt({4*(last-n)})\ns_barrier')
        if n == 10 and not cfg.standalone: claim_check(e)
        if n >= 1 and n+9 < 30: dma(n+9); last = n+9
        if n >= 1 and order[n-1] in lds: wb(order[n-1])
        k, b = loc[t]
        e(f'v_add_u32 v65, {slot[t]*16384}, {"v64" if t[0] == "o" else "v63"}')
        for j in range(2):
            for t4 in range(4):
                off = 1024*t4 + (8192*j if t[0] == 'o' else 8*j)
                e(f'ds_read_b64_tr_b16 {k}[{b+8*j+2*t4}:{b+8*j+2*t4+1}], v65 offset:{off}')
        e('s_waitcnt lgkmcnt(0)')
        if n == 9 and not cfg.standalone: claim_issue(e)
    e('s_barrier')
    wb(order[29])
    e(f'ds_write_b128 {vr(vA16)}, v[56:59] offset:{L_SEL}')
    e(f'v_add_u32 {vr(vStg)}, {4*16384}, {vr(vStg)}\nv_add_u32 {vr(vStg2)}, {4*16384}, {vr(vStg2)}')
    def stage(i):
        out = []
        for t in lds[2*i:2*i+2]:
            o = (slot[t]-4)*16384; k, b = loc[t]
            for j in range(4):
                oo = o + 1024*j
                out.append(f'ds_read_b128 v[{b+4*j}:{b+4*j+3}], {vr(vStg if oo < 65536 else vStg2)} offset:{oo % 65536}')
        return out
    def body(fast):
        sc = '' if fast else ' sc1'
        e(f'''
        s_lshl_b32 {sT0}, {sA}, 14
        s_add_u32 {sSc}, {sT0}, {sNEAR}
        s_add_u32 {sSc}, {sSc}, {WS_M}''')
        if fast: e(f's_xor_b32 {sFc}, {sSc}, 8192')
        else: e(f's_mov_b32 {sFc}, {sSc}')
        e(f'''
        s_xor_b32 {sMPc}, {sSc}, 16384
        s_lshr_b32 {sT0}, {sH}, 1
        s_lshl_b32 {sT0}, {sT0}, 14
        s_and_b32 {sT1}, {sH}, 1
        s_lshl_b32 {sT1}, {sT1}, 12
        s_add_u32 {sT0}, {sT0}, {sT1}
        s_lshl_b32 {sT1}, {sW}, 10
        s_add_u32 {sT0}, {sT0}, {sT1}
        s_lshl_b32 {sT1}, {sA}, 18
        s_add_u32 {sT0}, {sT0}, {sT1}
        s_add_u32 {sT0}, {sT0}, {sNEAR}
        s_add_u32 {sVXo}, {sT0}, {WS_VX}
        s_xor_b32 {sVXp}, {sVXo}, {1 << 18}
        s_mul_i32 {sT0}, {sA}, 655360
        s_add_u32 {sPc}, {sT0}, {WS_P}
        s_lshl_b32 {sT0}, {sH}, 13
        s_add_u32 {sK}, {sT0}, {WS_K}
        s_add_u32 {sV}, {sT0}, {WS_V}
        s_lshl_b32 {sT0}, {sH}, 12
        s_lshl_b32 {sT1}, {sW}, 10
        s_add_u32 {sT0}, {sT0}, {sT1}
        s_add_u32 {sT1}, {sT0}, {WS_KM}
        s_lshr_b32 {sT0}, {sT0}, 1
        s_add_u32 {sT0}, {sT0}, {WS_VM}
        s_mov_b32 {sKM}, {sT1}
        s_mov_b32 {sVM}, {sT0}
        s_cmp_eq_u32 {sA}, 0
        s_cselect_b32 s14, -1, 0
        s_cselect_b32 s15, 0, -1
        s_and_b32 s12, s14, 0xcccccccc
        s_and_b32 s13, s15, 0xcccccccc
        s_lshl_b32 {sT0}, {sH}, 12
        s_lshl_b32 {sT1}, {sW}, 10
        s_add_u32 {sPro}, {sT0}, {sT1}
        s_lshl_b32 {sT0}, {sH}, 10
        s_lshl_b32 {sT1}, {sW}, 8
        s_add_u32 {sT0}, {sT0}, {sT1}
        s_add_u32 {sPro2}, {sT0}, {32*4096}
        s_add_u32 {sPst}, {sPc}, {3*163840}
        s_mov_b32 {sPold}, {sPst}
        s_mov_b32 {sSTEP}, 0''')
        def step_scalars():
            return f'''s_lshl_b32 {sT2}, {sUNIT}, 12
        s_add_u32 {sPld}, {sPst}, {sT2}
        s_add_u32 {sPrst}, {sPst}, {sPro}
        s_add_u32 {sPrst2}, {sPold}, {sPro2}
        s_mov_b32 {sPold}, {sPst}
        s_and_b32 {sT0}, {sSTEP}, 3
        s_mul_i32 {sT1}, {sT0}, 163840
        s_add_u32 {sPst}, {sPc}, {sT1}
        s_lshl_b32 {sT0}, {sT0}, 15
        s_add_u32 {sMP}, {sMPc}, {sT0}
        s_add_u32 {sPubS}, {sSc}, {sT0}
        s_add_u32 {sPubF}, {sFc}, {sT0}
        s_add_u32 {sT1}, {sT0}, {3 << 15}
        s_and_b32 {sT1}, {sT1}, {3 << 15}
        s_add_u32 {sRstS}, {sSc}, {sT1}
        s_add_u32 {sRstF}, {sFc}, {sT1}
        s_and_b32 {sT0}, {sSTEP}, 1
        s_lshl_b32 {sT1}, {sT0}, 19
        s_add_u32 {sVXst}, {sVXo}, {sT1}
        s_add_u32 {sVXld}, {sVXp}, {sT1}
        s_bfe_u32 {sTAG}, {sSTEP}, 0x10001'''.split('\n')
        kld = [f'buffer_load_dwordx4 {vr(vKX,4)}, {vr(vKld)}, {WS}, {sK} offen sc1',
               f'buffer_load_dwordx4 {vr(vKX+4,4)}, {vr(vKld)}, {WS}, {sK} offen offset:128 sc1']
        vdma = [f'buffer_load_dwordx4 {vr(vVld)}, {WS}, {sV} offen sc1 lds',
                f'buffer_load_dwordx4 {vr(vVld)}, {WS}, {sV2} offen offset:1024 sc1 lds']
        e(f'''s_lshl_b32 {sT0}, {sW}, 11
        s_add_u32 m0, {sT0}, {L_V}
        v_add_u32 {vr(vVrd)}, {sT0}, {vr(vA16)}
        s_sub_u32 {sV2}, {sV}, 768''')
        def kvwait(target):
            e(f'v_lshlrev_b32 v{vT}, 9, {vr(vA16)}')
            wait_flags(e, vT, sFK, 3, target, vT + 1, sleep=1)
            e(f'v_readlane_b32 {sSEEN}, v{vT+1}, 0\nv_readlane_b32 {sT3}, v{vT+1}, 1\ns_min_u32 {sSEEN}, {sSEEN}, {sT3}')
            e(f's_cmp_eq_u32 {sSEEN}, 64\ns_cselect_b32 {sSEEN}, 66, {sSEEN}\ns_sub_u32 {sSEEN}, {sSEEN}, 1')
        if not cfg.standalone:
            e(f's_lshl_b32 {sFK}, {sH}, 8\ns_add_u32 {sFK}, {sFK}, {F_K}')
            kvwait(1)
            trace(e, 3, 66)
        for l in kld + vdma: e(l)
        Lnp = e.lab('nopub0'); Lt4 = e.lab('pub0b'); Lgo = e.lab('pub0c')
        srd(e, 8, 'mem0')
        e(f'''
        s_waitcnt lgkmcnt(0)''')
        srd_fin(e, 8, 'mem0')
        e(f'''
        s_cmp_lt_i32 {sUNIT}, 0
        s_cbranch_scc1 {Lnp}
        s_mul_i32 {sT3}, {sA}, 640
        s_cmp_ge_u32 {sUNIT}, 32
        s_cbranch_scc1 {Lt4}
        s_and_b32 {sT0}, {sUNIT}, 3
        s_mul_i32 {sT0}, {sT0}, 2560
        s_lshr_b32 {sT1}, {sUNIT}, 2
        s_lshl_b32 {sT1}, {sT1}, 4
        s_add_u32 {sT0}, {sT0}, {sT1}
        s_add_u32 {sT0}, {sT0}, {sT3}
        v_mul_u32_u24 v44, 1280, v42
        v_lshl_add_u32 v44, v53, 1, v44
        buffer_load_ushort v45, v44, s[8:11], {sT0} offen
        buffer_load_ushort v46, v44, s[8:11], {sT0} offen offset:128
        buffer_load_ushort v47, v44, s[8:11], {sT0} offen offset:256
        buffer_load_ushort v48, v44, s[8:11], {sT0} offen offset:384
        s_waitcnt vmcnt(0)
        v_lshl_or_b32 v46, v46, 16, v45
        v_lshl_or_b32 v47, v48, 16, v47
        s_branch {Lgo}
        {Lt4}:
        s_and_b32 {sT0}, {sUNIT}, 1
        s_mul_i32 {sT0}, {sT0}, 5120
        s_sub_u32 {sT1}, {sUNIT}, 32
        s_lshr_b32 {sT1}, {sT1}, 1
        s_lshl_b32 {sT1}, {sT1}, 5
        s_add_u32 {sT0}, {sT0}, {sT1}
        s_add_u32 {sT0}, {sT0}, {sT3}
        s_add_u32 {sT0}, {sT0}, 512
        v_lshrrev_b32 v44, 2, v53
        v_lshl_add_u32 v44, v44, 1, v42
        v_mul_u32_u24 v44, 1280, v44
        v_and_b32 v45, 3, v53
        v_lshl_add_u32 v44, v45, 3, v44
        buffer_load_dwordx2 v[46:47], v44, s[8:11], {sT0} offen
        s_waitcnt vmcnt(0)
        {Lgo}:
        v_min_u32 v46, -2, v46
        v_min_u32 v47, -2, v47
        s_mov_b64 exec, {sEPUB}
        buffer_store_dwordx2 v[46:47], {vr(vPub)}, {WS}, {sSc} offen sc1''')
        if fast: e(f'buffer_store_dwordx2 v[46:47], {vr(vPub)}, {WS}, {sFc} offen')
        e(f's_mov_b64 exec, -1\n{Lnp}:')
        e('s_waitcnt lgkmcnt(0)\ns_barrier')
        if cfg.stamps:
            for i in range(84, 100): e(f's_mov_b32 s{i}, 0')
            e('s_memtime s[82:83]\ns_memtime s[64:65]\ns_memtime s[66:67]')

        Ldone = e.lab('rdone'); Labort = 'L_exit'
        q0, q1, k0, k1, v0, v1 = (vACC + 4*i for i in range(6))
        M = vT; M2 = vT + 1
        def mloads(rem, st=None):
            st = rem if st is None else st
            p = vPL + 6*st; so = sMP if rem else sPubF
            return [f'buffer_load_dwordx4 {vr(p,4)}, {vr(vM16)}, {WS}, {so} offen sc1',
                    f'buffer_load_dword {vr(vPL+4+st)}, {vr(vM4)}, {WS}, {so} offen sc1']
        tail = []
        def retry(R, body, L, cnt):
            tail.append(f"""{R}:
            s_sub_u32 {sSPIN}, {sSPIN}, 1
            s_cbranch_scc1 {Labort}
            {f's_add_u32 s{cnt}, s{cnt}, 1' if cfg.stamps in (1,2) else ''}
            {body}
            {f's_branch {L}' if L else ''}""")
        def mchk(rem, st=None):
            st = rem if st is None else st
            p = vPL + 6*st; q = vPL + 4 + st; o = L_MEM + (0 if rem else 5120)
            return [f'ds_write_b128 {vr(vM16)}, {vr(p,4)} offset:{o}',
                    f'ds_write_b32 {vr(vM4)}, {vr(q)} offset:{o}',
                    f'v_max3_u32 v{M}, v{p}, v{p+1}, v{p+2}',
                    f'v_max3_u32 v{M}, v{M}, v{p+3}, v{q}',
                    f'v_cmp_eq_u32 vcc, -1, v{M}']
        def aread(base, c): return f'ds_read_b128 {vr(vA+4*c,4)}, {vr(vMrd if c < 4 else vMrd4)} offset:{base+1024*c}'
        def smf(acc, c, t, j): return f'v_smfmac_f32_16x16x64_bf16 {vr(acc,4)}, {vr(vA+4*c,4)}, {W(t,j)}, {vr(vIDX)}'
        def zero(b, n): return [f'v_mov_b64 {vr(b+i,2)}, 0' for i in range(0, n, 2)]
        def em(l):
            for x in l: e(x)
        def prep():
            a = zero(vACC, 24); b = stage(0) + step_scalars()
            for i, x in enumerate(b):
                e(x)
                if i % 2 and a: e(a.pop(0))
            em(a)
        J = '\n'.join

        Lstep = e.lab('step')
        prep()
        e(f'{Lstep}:')
        e('; MARK 1')
        e(f"""v_mov_b64 {vr(vA,2)}, -1
        v_mov_b64 {vr(vA+2,2)}, -1
        buffer_store_dwordx4 {vr(vA,4)}, {vr(vA16)}, {WS}, {sPrst} offen{sc}
        s_mov_b64 exec, 0xffff
        buffer_store_dwordx4 {vr(vA,4)}, {vr(vA16)}, {WS}, {sPrst2} offen{sc}
        s_mov_b64 exec, -1""")
        nops(cfg.d2)
        em(mloads(0))
        Lok = e.lab('lok'); Lre = e.lab('lre')
        if cfg.KL == 2:
            nops(cfg.gap); em(mloads(0, 1))
            Lre2 = e.lab('lre2')
            e('s_waitcnt vmcnt(2)'); em(mchk(0)); e(f's_cbranch_vccnz {Lre}\n{Lok}:')
            retry(Lre, J(mloads(0,0) + ['s_waitcnt vmcnt(2)'] + mchk(0,1) + [f's_cbranch_vccz {Lok}'] + mloads(0,1) + ['s_waitcnt vmcnt(2)'] + mchk(0,0) + [f's_cbranch_vccz {Lok}']), Lre, 96)
        else:
            e('s_waitcnt vmcnt(0)'); em(mchk(0)); e(f's_cbranch_vccnz {Lre}\n{Lok}:')
            retry(Lre, J(mloads(0) + ['s_waitcnt vmcnt(0)'] + mchk(0) + [f's_cbranch_vccz {Lok}']), Lre, 96)
        if cfg.rmode == 0: em(mloads(1))
        e('s_waitcnt lgkmcnt(0)\ns_barrier')
        stamp(2)
        for c in range(5): e(aread(L_MEM + 5120, c))
        if cfg.rmode == 2: em(mloads(1))
        mf = []
        for c in range(5): mf += [smf(v0, c, ('v','L',c), 0), smf(v1, c, ('v','L',c), 1)]
        for c in range(5): mf += [smf(q0,c,('q','L',c),0), smf(k0,c,('k','L',c),0), smf(q1,c,('q','L',c),1), smf(k1,c,('k','L',c),1)]
        for c in range(5): mf += [smf(q0,c,('q','R',c),0), smf(k0,c,('k','R',c),0)]
        for c in range(5): mf += [smf(q1,c,('q','R',c),1), smf(k1,c,('k','R',c),1)]
        slots = [[] for _ in mf]
        def put(i, l, step=1):
            for x in l: slots[i].append(x); i += step
        for c in range(1, 5): put(2*c-1, [f's_waitcnt lgkmcnt({4-c})'])
        st1 = stage(1)
        st1 = [st1[i] for i in (0,1,4,5,2,3,6,7)]
        put(9, [f'ds_read_b128 {vr(vVX,4)}, {vr(vVrd)} offset:{L_V}', f'ds_read_b128 {vr(vVX+4,4)}, {vr(vVrd)} offset:{L_V+1024}', st1[0]])
        put(12, [f'v_add_f32 v{v0}, v{v0}, v{v0+2}\nv_add_f32 v{v0+1}, v{v0+1}, v{v0+3}', f'v_add_f32 v{v0+2}, v{v1}, v{v1+2}\nv_add_f32 v{v0+3}, v{v1+1}, v{v1+3}'])
        bf = [f'v_bfi_b32 v{v0+j}, 1, {sTAG}, v{v0+j}' for j in range(4)]
        put(14, [J(bf[:2]), J(bf[2:]), f'buffer_store_dwordx4 {vr(v0,4)}, {vr(vA16)}, {WS}, {sVXst} offen sc1'])
        put(17, st1[1:4])
        rp = cfg.rp
        Rok = e.lab('rok'); Rre = e.lab('rre')
        mc = mchk(1)
        put(rp, ['s_waitcnt vmcnt(1)\n' + mc[0], mc[1] + '\n' + mc[2], mc[3] + '\n' + mc[4]])
        bp = rp + 4
        put(bp, [f's_cbranch_vccnz {Rre}\n{Rok}:\ns_waitcnt lgkmcnt(0)\ns_barrier' + ('\ns_memtime s[70:71]' if cfg.stamps == 1 else '')])
        retry(Rre, J(mloads(1) + ['s_waitcnt vmcnt(0)'] + mc + [f's_cbranch_vccz {Rok}']), Rre, 97)
        pos = bp; rpos = []
        for c in range(5):
            pos = max(pos, 13 + 4*c)
            put(pos, [aread(L_MEM, c)]); rpos.append(pos)
            if pos < 29 and c >= 1: pos += 1
        for c in range(5): put(29 + 2*c, [f's_waitcnt lgkmcnt({4-c})'])
        put(20, [f's_add_u32 {sV}, {sV}, {0 if cfg.kvfix else 32*8192}', f's_add_u32 {sV2}, {sV2}, {0 if cfg.kvfix else 32*8192}'])
        Kok = e.lab('kok'); Kre = e.lab('kre')
        if not cfg.standalone:
            put(30, [f's_cmp_le_u32 {sSEEN}, {sSTEP}\ns_cbranch_scc1 {Kre}\n{Kok}:'])
        if cfg.vdpos == 1 and not cfg.nov: put(30, vdma, 2)
        if cfg.vdpos == 2 and not cfg.nov: put(30, vdma[:1])
        put(38, st1[4:8])
        X = vA; T = vPL; D0 = vPL + 6; D1 = vA + 4; XA = vA + 12; XB = vA + 16; MK = vT; MK1 = vT + 1
        put(42, [f'v_add_f32 v{q0}, v{q0}, v{q0+2}', f'v_add_f32 v{q0+1}, v{q0+1}, v{q0+3}', f'v_add_f32 v{k0}, v{k0}, v{k0+2}', f'v_add_f32 v{k0+1}, v{k0+1}, v{k0+3}',
                 f'v_cvt_pk_bf16_f32 v{T}, v{q0}, v{q0+1}', f'v_cvt_pk_bf16_f32 v{T+1}, v{k0}, v{k0+1}\ns_waitcnt lgkmcnt(0)', f'v_bfe_i32 v{MK1}, {vr(vIDX)}, 1, 1'])
        vld = f'buffer_load_dwordx4 {vr(vREM,4)}, {vr(vA16)}, {WS}, {sVXld} offen sc1'
        if cfg.vl < 50: put(cfg.vl, [vld])
        e('s_waitcnt lgkmcnt(4)')
        for m, f in zip(mf, slots):
            e(m); em(f)
        st2 = stage(2)
        dq = 'quad_perm:[0,1,0,1] row_mask:0xf bank_mask:0xf'
        S0, SM = q0, k0
        young = [0]
        def slow(cond, l):
            if cond: young[0] += len(l); return J(l)
            return ''
        PX = vA + 12; PM = vA + 8; VM0 = v1; VM1 = v1 + 2; ONE = vPL; NEG = vA + 10
        e(f"""v_mfma_f32_16x16x16_bf16 {vr(D0,4)}, {vr(T,2)}, {vr(vID,2)}, 0
        {vld if cfg.vl == 50 else ''}
        s_add_u32 {sK}, {sK}, {0 if cfg.kvfix else 32*8192}
        v_not_b32 v{MK}, v{MK1}
        v_mov_b32 v{PM+1}, 0
        v_mov_b32 v{VM0+1}, 0
        v_mov_b32 v{VM1+1}, 0
        v_add_f32 v{q1}, v{q1}, v{q1+2}
        v_add_f32 v{q1+1}, v{q1+1}, v{q1+3}
        v_pk_add_f32 {vr(k1,2)}, {vr(k1,2)}, {vr(k1+2,2)}
        v_cvt_pk_bf16_f32 v{T+2}, v{q1}, v{q1+1}
        v_cvt_pk_bf16_f32 v{T+3}, v{k1}, v{k1+1}
        v_cvt_pk_bf16_f32 v{X}, v{D0}, v{D0+1}
        v_cvt_pk_bf16_f32 v{X+1}, v{D0+2}, v{D0+3}
        v_mfma_f32_16x16x16_bf16 {vr(D1,4)}, {vr(T+2,2)}, {vr(vID,2)}, 0
        {vld if cfg.vl == 51 else ''}
        {st2[0]}
        {st2[1]}
        v_and_b32 v{XA}, v{X}, v{MK}
        v_and_b32 v{XA+1}, v{X+1}, v{MK}
        v_and_b32_dpp v{XB}, v{X}, v{MK1} {dq}
        v_and_b32_dpp v{XB+1}, v{X+1}, v{MK1} {dq}
        {st2[2]}
        {st2[3]}
        v_cvt_pk_bf16_f32 v{X+2}, v{D1}, v{D1+1}
        v_cvt_pk_bf16_f32 v{X+3}, v{D1+2}, v{D1+3}
        v_and_b32 v{XA+2}, v{X+2}, v{MK}
        v_and_b32 v{XA+3}, v{X+3}, v{MK}
        v_and_b32_dpp v{XB+2}, v{X+2}, v{MK1} {dq}
        v_and_b32_dpp v{XB+3}, v{X+3}, v{MK1} {dq}""")
        stamp(4)
        kmst = f'buffer_store_dwordx4 {vr(X,4)}, {vr(vA16)}, {WS}, {sKM} offen sc1'
        e(f"""v_mfma_f32_16x16x32_bf16 {vr(S0,4)}, {vr(vKX,4)}, {vr(XA,4)}, 0
        {vld if cfg.vl == 52 else 's_nop 0'}
        v_mfma_f32_16x16x32_bf16 {vr(S0,4)}, {vr(vKX+4,4)}, {vr(XB,4)}, {vr(S0,4)}
        v_mov_b64 {vr(NEG,2)}, -1
        v_mfma_f32_16x16x32_bf16 {vr(SM,4)}, {vr(X,4)}, {vr(X,4)}, 0
        {slow(cfg.vdpos == 0 and not cfg.nov, vdma)}
        {slow(cfg.vdpos == 2 and not cfg.nov, vdma[1:])}
        v_mov_b32 v{ONE}, 0x3f803f80
        ds_write_b128 {vr(vSwr)}, {vr(S0,4)} offset:{L_SX}
        s_mov_b64 exec, {sEB0}
        ds_write2_b32 {vr(vSwr2)}, v{SM+2}, v{SM+3} offset0:0 offset1:32
        s_mov_b64 exec, -1
        v_mov_b32 v{ONE+1}, 0x3f803f80
        {slow(cfg.kpos == 0 and not cfg.nok, kld)}
        v_mov_b32 v{ONE+2}, 0x3f803f80
        s_waitcnt lgkmcnt(0)
        v_mov_b32 v{ONE+3}, 0x3f803f80
        s_barrier""")
        stamp(5)
        R = [q0, q1, k0, k1]; RM = D1
        Vok = e.lab('vok'); Vre = e.lab('vre')
        C1 = vPL + 4; C2 = vPL + 5
        vchk = [f'v_bitop3_b32 v{C1}, v{vREM}, v{vREM+1}, {sTAG} bitop3:0x7e',
                f'v_bitop3_b32 v{C2}, v{vREM+2}, v{vREM+3}, {sTAG} bitop3:0x7e',
                f'v_bitop3_b32 v{C1}, v{C1}, v{C2}, 1 bitop3:0xa8',
                f'v_cmp_ne_u32 vcc, 0, v{C1}',
                f'v_add_f32 v{vREM}, v{v0}, v{vREM}\nv_add_f32 v{vREM+1}, v{v0+1}, v{vREM+1}',
                f'v_add_f32 v{vREM+2}, v{v0+2}, v{vREM+2}\nv_add_f32 v{vREM+3}, v{v0+3}, v{vREM+3}',
                f'v_cvt_pk_bf16_f32 v{VM0}, v{vREM}, v{vREM+1}',
                f'v_cvt_pk_bf16_f32 v{VM1}, v{vREM+2}, v{vREM+3}']
        retry(Vre, J([vld, 's_waitcnt vmcnt(0)'] + vchk + [f's_cbranch_vccz {Vok}']), Vre, 98)
        for w in range(4): e(f'ds_read_b128 {vr(R[w],4)}, {vr(vPerm)} offset:{L_SX+1024*w}')
        e(f'ds_read_b128 {vr(RM,4)}, {vr(vPerm)} offset:{L_SM}')
        e(f"""v_lshrrev_b32 v{vA+16}, 1, {vr(vA16)}
        s_mov_b64 exec, {sEKM}
        {slow(not cfg.nokm, [kmst])}
        s_mov_b64 exec, -1
        v_mov_b32 v{M}, 0""")
        if cfg.vchk == 1:
            e(f's_waitcnt vmcnt({young[0]})'); em(vchk)
        e(f"""s_waitcnt lgkmcnt(3)
        v_pk_add_f32 {vr(q0,2)}, {vr(q0,2)}, {vr(q1,2)}
        v_pk_add_f32 {vr(q0+2,2)}, {vr(q0+2,2)}, {vr(q1+2,2)}
        s_waitcnt lgkmcnt(2)
        v_pk_add_f32 {vr(q0,2)}, {vr(q0,2)}, {vr(k0,2)}
        v_pk_add_f32 {vr(q0+2,2)}, {vr(q0+2,2)}, {vr(k0+2,2)}
        s_waitcnt lgkmcnt(0)
        v_pk_add_f32 {vr(q0,2)}, {vr(q0,2)}, {vr(k1,2)}
        v_pk_add_f32 {vr(RM,2)}, {vr(RM,2)}, {vr(RM+2,2)}
        v_pk_add_f32 {vr(q0+2,2)}, {vr(q0+2,2)}, {vr(k1+2,2)}
        v_add_f32 v{RM}, v{RM}, v{RM+1}
        v_max3_f32 v{M}, v{q0}, v{q0+1}, v{q0+2}
        v_max3_f32 v{M}, v{M}, v{q0+3}, v{RM}
        {st2[4]}
        {st2[5]}
        v_max_f32_dpp v{M2}, v{M}, v{M} quad_perm:[2,3,0,1] row_mask:0xf bank_mask:0xf
        v_max_f32_dpp v{M}, v{M}, v{M} quad_perm:[2,3,0,1] row_mask:0xf bank_mask:0xf
        {st2[6]}
        {st2[7]}
        v_permlane16_swap_b32 v{M}, v{M2}
        v_max_f32 v{RM+1}, v{M}, v{M2}
        v_max_f32 v{M}, v{M}, v{M2}
        v_permlane32_swap_b32 v{M}, v{RM+1}
        v_max_f32 v{M}, v{M}, v{RM+1}
        v_mul_f32 v{M}, {sC}, v{M}
        v_fma_f32 v{q0}, v{q0}, {sC}, -v{M}
        v_fma_f32 v{q0+1}, v{q0+1}, {sC}, -v{M}
        v_fma_f32 v{q0+2}, v{q0+2}, {sC}, -v{M}
        v_fma_f32 v{q0+3}, v{q0+3}, {sC}, -v{M}
        v_fma_f32 v{RM}, v{RM}, {sC}, -v{M}
        v_exp_f32 v{q0}, v{q0}
        v_exp_f32 v{q0+1}, v{q0+1}
        v_exp_f32 v{q0+2}, v{q0+2}
        v_exp_f32 v{q0+3}, v{q0+3}
        v_cvt_pk_bf16_f32 v{PX}, v{q0}, v{q0+1}
        v_cvt_pk_bf16_f32 v{PX+1}, v{q0+2}, v{q0+3}
        v_exp_f32 v{RM}, v{RM}
        v_mov_b32_dpp v{PX+2}, v{PX} quad_perm:[2,3,2,3] row_mask:0xf bank_mask:0xf
        v_mov_b32_dpp v{PX+3}, v{PX+1} quad_perm:[2,3,2,3] row_mask:0xf bank_mask:0xf
        v_mov_b32_dpp v{RM+1}, v{RM} quad_perm:[2,3,2,3] row_mask:0xf bank_mask:0xf
        v_cvt_pk_bf16_f32 v{PM}, v{RM}, v{RM+1}""")
        stamp(6)
        O0, O1 = q0, q1; SUM = vA; OP = vPL + 6
        e(f'v_mfma_f32_16x16x32_bf16 {vr(O0,4)}, {vr(vVX,4)}, {vr(PX,4)}, 0')
        if cfg.vchk == 2:
            e(f's_waitcnt vmcnt({young[0]})'); em(vchk[:4])
        e(f'v_mfma_f32_16x16x32_bf16 {vr(O1,4)}, {vr(vVX+4,4)}, {vr(PX,4)}, 0')
        if cfg.vchk == 2: em(vchk[4:])
        e(f"""s_cbranch_vccnz {Vre}
        {Vok}:
        v_mfma_f32_16x16x16_bf16 {vr(O0,4)}, {vr(VM0,2)}, {vr(PM,2)}, {vr(O0,4)}
        v_mfma_f32_16x16x16_bf16 {vr(O1,4)}, {vr(VM1,2)}, {vr(PM,2)}, {vr(O1,4)}
        v_mfma_f32_16x16x16_bf16 {vr(SUM,4)}, {vr(PM,2)}, {vr(ONE,2)}, 0
        v_mov_b32 v{VM0+1}, v{VM1}
        {J(zero(vACC+8, 8))}
        s_mov_b64 exec, {sEB0}
        v_cvt_pk_bf16_f32 v{OP}, v{O0}, v{O0+1}
        v_cvt_pk_bf16_f32 v{OP+1}, v{O0+2}, v{O0+3}
        v_cvt_pk_bf16_f32 v{OP+2}, v{O1}, v{O1+1}
        v_cvt_pk_bf16_f32 v{OP+3}, v{O1+2}, v{O1+3}
        ds_write_b128 {vr(vOwr)}, {vr(OP,4)} offset:{L_O}
        s_mov_b64 exec, {sEVM}
        {f'buffer_store_dwordx2 {vr(VM0,2)}, v{vA+16}, {WS}, {sVM} offen sc1' if not cfg.nokm else ''}
        s_mov_b64 exec, -1
        v_mfma_f32_16x16x32_bf16 {vr(SUM,4)}, {vr(PX,4)}, {vr(ONE,4)}, {vr(SUM,4)}
        {zero(vACC+16, 4)[0]}
        s_cmp_eq_u32 {sSTEP}, {cfg.nsteps-1}
        s_cbranch_scc1 {Ldone}""")
        if cfg.mrst == 1:
            Lsk = e.lab('norst')
            Lot = Lsk
            if not cfg.standalone and not cfg.nofl:
                Lot = e.lab('fst')
                tail.append(f'{Lot}:\ns_cmp_lg_u32 {sW}, 3\ns_cbranch_scc1 {Lsk}\ns_mov_b64 exec, 1\nv_mov_b32 v{vT}, {sSTEP}\nbuffer_store_dword v{vT}, off, {WS}, {sFR} sc1\ns_mov_b64 exec, -1\ns_branch {Lsk}')
            e(f's_cmp_lt_i32 {sUNIT}, 0\ns_cbranch_scc1 {Lot}\ns_mov_b64 exec, {sEPUB}')
            e(f'buffer_store_dwordx2 {vr(NEG,2)}, {vr(vPub)}, {WS}, {sRstS} offen sc1')
            if fast: e(f'buffer_store_dwordx2 {vr(NEG,2)}, {vr(vPub)}, {WS}, {sRstF} offen')
            e(f's_mov_b64 exec, -1\n{Lsk}:')
        e(zero(vACC+16, 4)[1])
        e('s_waitcnt lgkmcnt(0)\ns_barrier')
        stamp(7)
        OA = vA + 12
        e(f'ds_read_b128 {vr(OA,4)}, {vr(vPerm)} offset:{L_O}\nds_read_b128 {vr(OA+4,4)}, {vr(vPerm)} offset:{L_O+1024}')
        z = zero(vACC, 8)
        e(f"""{z[0]}
        {kld[0] if cfg.kpos == 1 and not cfg.nok else 's_nop 0'}
        {z[1]}
        {kld[1] if cfg.kpos == 1 and not cfg.nok else 's_nop 0'}
        {z[2]}
        s_nop 0
        {z[3]}""")
        def wo(t, kap): return f'v_smfmac_f32_16x16x64_bf16 {vr(vACC+4*t,4)}, {vr(OA+4*kap,4)}, {W(("o","",t),kap)}, {vr(vIDX)}'
        PO = vPL; SEL = vREM
        def fin(t):
            a = vACC + 4*t
            return [f'v_pk_add_f32 {vr(a,2)}, {vr(a,2)}, {vr(a+2,2)}', f'v_pk_mul_f32 {vr(a,2)}, {vr(a,2)}, {vr(M,2)}', f'v_cvt_pk_bf16_f32 v{PO+t}, v{a}, v{a+1}']
        e(f'v_rcp_f32 v{M}, v{SUM}\nv_rcp_f32 v{M2}, v{SUM+1}')
        a0, a1, a2, a3 = (vACC + 4*t for t in range(4))
        e('s_waitcnt lgkmcnt(1)')
        e(wo(0, 0)); e('s_waitcnt lgkmcnt(0)'); e(wo(0, 1))
        e(f'ds_read_b128 {vr(SEL,4)}, {vr(vA16)} offset:{L_SEL}')
        e(wo(1, 0)); e(f's_add_u32 {sKM}, {sKM}, {32*4096}'); e(wo(1, 1)); e(f's_add_u32 {sVM}, {sVM}, {32*2048}')
        e(wo(2, 0)); e(f's_add_u32 {sSTEP}, {sSTEP}, 1'); e(wo(2, 1)); e(f'v_add_f32 v{a0}, v{a0}, v{a0+2}')
        e(wo(3, 0)); e(f'v_add_f32 v{a0+1}, v{a0+1}, v{a0+3}'); e(wo(3, 1)); e(f'v_add_f32 v{a1}, v{a1}, v{a1+2}')
        e(wo(4, 0)); e(f'v_add_f32 v{a1+1}, v{a1+1}, v{a1+3}'); e(wo(4, 1))
        e(f"""v_add_f32 v{a2}, v{a2}, v{a2+2}
        v_add_f32 v{a2+1}, v{a2+1}, v{a2+3}
        v_mul_f32 v{a0}, v{a0}, v{M}
        v_mul_f32 v{a0+1}, v{a0+1}, v{M2}
        v_cvt_pk_bf16_f32 v{PO}, v{a0}, v{a0+1}""")
        em([fin(3)[0], fin(1)[1], fin(2)[1], fin(3)[1], fin(1)[2], fin(2)[2], fin(3)[2], fin(4)[0], fin(4)[1]])
        e(f'buffer_store_dwordx4 {vr(PO,4)}, {vr(vPst4)}, {WS}, {sPst} offen{sc}')
        e(fin(4)[2])
        e(f'buffer_store_dword v{PO+4}, {vr(vPst1)}, {WS}, {sPst} offen{sc}')
        if cfg.stamps == 1: e('s_memtime s[80:81]')
        e('; MARK 8')
        if cfg.mrst == 0: e(f's_mov_b32 {sT3}, {sRstS}\ns_mov_b32 s57, {sRstF}')
        prep()
        Lnr = e.lab('nored'); Lr = e.lab('red'); Lrr = e.lab('redr')
        e(f's_cmp_lt_i32 {sUNIT}, 0\ns_cbranch_scc1 {Lnr}')
        nops(cfg.d1)
        RA = vA; RD = vA + 16
        rl = J(f'buffer_load_dwordx4 {vr(RA+4*j,4)}, {vr(vA16)}, {WS}, {sPld} offen offset:{1024*j} sc1' for j in range(4))
        e(rl)
        e(f'v_mov_b64 {vr(vPL+6,2)}, -1')
        e(f'{Lr}:\ns_waitcnt vmcnt(3) lgkmcnt(0)')
        e(f"""v_mfma_f32_16x16x32_bf16 {vr(RD,4)}, {vr(SEL,4)}, {vr(RA,4)}, 0
        v_max3_u32 v{M}, v{RA}, v{RA+1}, v{RA+2}""")
        for j in range(1, 4):
            r = RA + 4*j
            e(f"""s_waitcnt vmcnt({3-j})
            v_mfma_f32_16x16x32_bf16 {vr(RD,4)}, {vr(SEL,4)}, {vr(r,4)}, {vr(RD,4)}
            v_max3_u32 v{M}, v{M}, v{r-1}, v{r}
            v_max3_u32 v{M}, v{M}, v{r+1}, v{r+2}""")
        e(f"""v_max_u32 v{M}, v{M}, v{RA+15}
        v_cmp_eq_u32 vcc, -1, v{M}""")
        retry(Lrr, rl, Lr, 99)
        for j in range(4): e(f'v_add_f32_dpp v{RA+j}, v{RD+j}, v{RD+j} row_ror:8 row_mask:0xf bank_mask:0xf')
        e(f"""v_cvt_pk_bf16_f32 v{RA}, v{RA}, v{RA+1}
        v_cvt_pk_bf16_f32 v{RA+1}, v{RA+2}, v{RA+3}
        s_cbranch_vccnz {Lrr}
        s_mov_b64 exec, {sEPUB}
        buffer_store_dwordx2 {vr(RA,2)}, {vr(vPub)}, {WS}, {sPubS} offen sc1""")
        if fast: e(f'buffer_store_dwordx2 {vr(RA,2)}, {vr(vPub)}, {WS}, {sPubF} offen')
        if cfg.mrst == 0: e(f'buffer_store_dwordx2 {vr(vPL+6,2)}, {vr(vPub)}, {WS}, {sT3} offen sc1')
        if cfg.mrst == 0 and fast: e(f'buffer_store_dwordx2 {vr(vPL+6,2)}, {vr(vPub)}, {WS}, s57 offen')
        e(f's_mov_b64 exec, -1\n{Lnr}:')
        e('s_barrier')
        if cfg.stamps == 1:
            e('s_memtime s[100:101]\ns_waitcnt lgkmcnt(0)')
            for i in range(8): e(f's_sub_u32 {sT0}, s{66+2*i}, s{64+2*i}\ns_add_u32 s{84+i}, s{84+i}, {sT0}')
            e('s_mov_b32 s64, s80\ns_mov_b32 s66, s100')
        trace(e, 64, vT, sSTEP)
        e('; MARK 9')
        e(f's_branch {Lstep}')
        em(tail)
        if not cfg.standalone:
            e(f'{Kre}:\ns_add_u32 {sT2}, {sSTEP}, 2')
            kvwait(sT2)
            e(f's_branch {Kok}')
        e(f'{Ldone}:')
        if not cfg.standalone:
            e(f's_waitcnt vmcnt(0)\ns_barrier'); trace(e, 4, vT); e(f's_cmp_lg_u32 {sW}, 3\ns_cbranch_scc1 {Ldone}x'); set_flag(e, sFR, 64, vT); e(f'{Ldone}x:')
        if cfg.stamps:
            if cfg.stamps != 3: e('s_memtime s[80:81]\ns_waitcnt lgkmcnt(0)\ns_sub_u32 s92, s80, s82\ns_sub_u32 s93, s82, s24')
            e(f"""s_waitcnt lgkmcnt(0)
            s_lshl_b32 {sT0}, {sA}, 5
            s_add_u32 {sT0}, {sT0}, {sH}
            s_lshl_b32 {sT0}, {sT0}, 2
            s_add_u32 {sT0}, {sT0}, {sW}
            s_lshl_b32 {sT0}, {sT0}, 6
            s_add_u32 {sT0}, {sT0}, {WS_DBG}""")
            for i in range(16): e(f'v_mov_b32 v{vA+4+i}, s{84+i if cfg.stamps != 3 else 64+2*i}')
            e('s_mov_b64 exec, 1')
            for j in range(4): e(f'buffer_store_dwordx4 {vr(vA+4+4*j,4)}, {vr(vA16)}, {WS}, {sT0} offen offset:{16*j}')
        e('s_waitcnt vmcnt(0)\ns_branch L_exit')

    e(f's_mov_b32 {sNEAR}, {cfg.near}')
    if cfg.standalone:
        body(cfg.fast)
    else:
        trace(e, 1, 66)
        gsync(e, 66, 49)
        if cfg.near < 0: e(f'v_readlane_b32 {sNEAR}, v67, 4\ns_and_b32 {sNEAR}, {sNEAR}, 2\ns_lshl_b32 {sNEAR}, {sNEAR}, 12')
        trace(e, 2, 66)
        LS = e.lab('rslow')
        e(f's_cmp_eq_u32 {sFAST}, 0\ns_cbranch_scc1 {LS}')
        body(1)
        e(f'{LS}:')
        body(0)
```

```python
from common import *
from role_pre import gen_mod, gen_ln_load, gen_ln, sT
sCU = sIDX
sTEAM, sS, sN = 's27', 's29', 's30'
sT0, sT1, sT2, sT3 = 's32', 's33', 's34', 's35'
sFWO, sFLN, sFM1, sFB = 's36', 's37', 's38', 's39'
sO, sAP, sAPr, sX, sX1, sY, sYr, sHID, sHIDr, sHIDt, sX1r, sOUT = 's40','s41','s42','s43','s44','s45','s46','s47','s48','s49','s50','s51'
NTEAM = 3
sPRE = 's28'
sB = 's53'
def WO(k, t): r = 4*(5*k + t); return ('a', r)
def W1(k): return ('a', 160 + 4*k)
def W2(k, t):
    i = 3*k + t
    return ('a', 240 + 4*i) if i < 4 else ('v', 104 + 4*(i-4))
def R4(x): return f'{x[0]}[{x[1]}:{x[1]+3}]'
vA16, vA4, vQF, vRW, vRR, vAPs, vYs, vHs, vOs, vX1, vT = 1, 2, 3, 4, 5, 6, 7, 8, 9, 10, 11
A = 16; ACC = 64
L_RED, L_Y, L_PAR, L_X = 0, 40960, 81920, 94208

def stage_rows(e, srdn, ppr, ninstr, rowbytes, step_rows, sbase):
    grp = 5 if ppr in (5, 10) else 1
    for j in range(grp):
        e(f'v_add_u32 v20, {64*j}, v17')
        if ppr == 2: e('v_lshrrev_b32 v21, 1, v20')
        else: e(f'v_mul_u32_u24 v21, {6554 if ppr == 10 else 13108}, v20\nv_lshrrev_b32 v21, 16, v21')
        e(f'''v_mul_u32_u24 v22, {ppr}, v21
        v_sub_u32 v22, v20, v22
        v_mul_u32_u24 v21, {rowbytes}, v21
        v_lshl_add_u32 v{24+j}, v22, 4, v21''')
    for n in range(ninstr):
        e(f's_add_u32 m0, s52, {1024*n}')
        if n % grp == 0: e(f's_add_u32 {sT0}, {sbase}, {(n//grp)*step_rows*rowbytes}')
        e(f'buffer_load_dwordx4 v{24 + n % grp}, s[{srdn}:{srdn+3}], {sT0} offen lds')

def gen_T(e, cfg):
    e(f'''s_sub_u32 {sTEAM}, {sGRP}, 5
    s_lshl_b32 {sT}, {sTEAM}, 5
    s_add_u32 {sT}, {sT}, {sCU}
    s_lshl_b32 {sT0}, {sT}, 2
    s_add_u32 {sFWO}, {sT0}, {F_WO}
    s_add_u32 {sFLN}, {sT0}, {F_LN}
    s_add_u32 {sFM1}, {sT0}, {F_M1}
    s_sub_u32 s29, {sT}, 64
    s_sub_u32 {sT1}, {sT}, 4
    s_cmp_ge_u32 {sT}, 64
    s_cselect_b32 s29, s29, {sT1}''')
    L1 = e.lab('t1'); L2 = e.lab('t2'); L3 = e.lab('t3'); L4 = e.lab('t4'); L5 = e.lab('t5'); L6 = e.lab('t6')
    e(f's_cmp_ge_u32 {sT}, 64\ns_cbranch_scc1 {L3}')
    gen_ln_load(e)
    claim_issue(e)
    gen_ln(e)
    e(f's_mov_b32 {sOWN}, 1\ns_cmp_lt_u32 {sT}, 36\ns_cbranch_scc1 {L5}\n{L3}:')
    gen_mod(e)
    e(f'{L5}:\ns_lshl_b32 {sT0}, {sW}, 7\ns_add_u32 {sT0}, {sT0}, {sT}\ns_cmp_lg_u32 {sT0}, 95\ns_cbranch_scc1 {L6}')
    coordinate(e, 10)
    e(f'{L6}:')
    if cfg.get('stop') == 'pre':
        e('s_branch L_exit'); return
    if cfg.get('tdelay', 1): wait_go(e, 8, 10, sleep=8)
    srd(e, 8, 'wo'); srd(e, 12, 'w1'); srd(e, 16, 'w2')
    e(f'''v_and_b32 v17, 63, v0
    v_lshlrev_b32 v{vA16}, 4, v17
    v_lshlrev_b32 v{vA4}, 2, v17
    v_and_b32 v18, 15, v17           ; rho
    v_lshrrev_b32 v19, 4, v17        ; g
    v_bfe_u32 v30, v17, 2, 2         ; rr
    v_and_b32 v31, 3, v17            ; cc
    s_mul_i32 s52, {sW}, 40960
    s_lshr_b32 s53, {sCU}, 3
    s_and_b32 s54, {sCU}, 7
    s_lshr_b32 s55, {sCU}, 4
    s_and_b32 s56, {sCU}, 15
    s_min_u32 s57, {sCU}, 26
    s_waitcnt lgkmcnt(0)
    s_barrier''')
    srd_fin(e, 8, 'wo'); srd_fin(e, 12, 'w1'); srd_fin(e, 16, 'w2')
    e(f'''s_lshl_b32 {sT1}, s53, 2
    s_add_u32 {sT1}, {sT1}, {sW}
    s_mul_i32 {sT1}, {sT1}, {256*1280}
    s_mul_i32 {sT2}, s54, 160
    s_add_u32 {sT1}, {sT1}, {sT2}''')
    stage_rows(e, 8, 10, 40, 1280, 32, sT1)
    e(f'''v_lshl_add_u32 v32, v19, 3, v30
    v_mul_u32_u24 v33, 160, v32
    v_lshl_add_u32 v33, v31, 3, v33
    v_add_u32 v33, s52, v33''')
    for k in range(8):
        e(f's_waitcnt vmcnt({35-5*k})')
        for t in range(5):
            for u in range(2):
                r = WO(k, t); e(f'ds_read_b64_tr_b16 {r[0]}[{r[1]+2*u}:{r[1]+2*u+1}], v33 offset:{5120*k + 640*u + 32*t}')
        e('s_waitcnt lgkmcnt(0)')
    e(f'''s_mul_i32 {sT1}, {sW}, {448*1280}
    s_mul_i32 {sT2}, s56, 80
    s_add_u32 {sT1}, {sT1}, {sT2}''')
    stage_rows(e, 16, 5, 35, 1280, 64, sT1)
    e(f'''v_lshl_add_u32 v33, v19, 2, v30
    v_mul_u32_u24 v33, 80, v33
    v_add_u32 v33, s52, v33
    v_and_b32 v34, 1, v31
    v_lshl_add_u32 v34, v34, 3, v33
    v_lshl_add_u32 v33, v31, 3, v33''')
    for k in range(14):
        if k % 2 == 0: e(f's_waitcnt vmcnt({30-5*(k//2)})')
        for t in range(3):
            for u in range(2):
                r = W2(k, t); e(f'ds_read_b64_tr_b16 {r[0]}[{r[1]+2*u}:{r[1]+2*u+1}], {"v33" if t < 2 else "v34"} offset:{2560*k + 1280*u + 32*t}')
        e('s_waitcnt lgkmcnt(0)')
    e(f'''s_lshl_b32 {sT1}, s57, 7
    s_lshl_b32 {sT2}, {sW}, 5
    s_add_u32 {sT1}, {sT1}, {sT2}''')
    stage_rows(e, 12, 2, 20, 3456, 32, sT1)
    e(f'''v_lshlrev_b32 v33, 5, v32
    v_lshl_add_u32 v33, v31, 3, v33
    v_add_u32 v33, s52, v33''')
    for k in range(20):
        e(f's_waitcnt vmcnt({19-k})')
        for u in range(2):
            r = W1(k); e(f'ds_read_b64_tr_b16 {r[0]}[{r[1]+2*u}:{r[1]+2*u+1}], v33 offset:{1024*k + 128*u}')
        if k % 4 == 3: e('s_waitcnt lgkmcnt(0)')
    srd(e, 8, 'b1'); srd(e, 12, 'b2'); srd(e, 16, 'x'); srd(e, 20, 'out')
    gsync(e, vT, 37)
    e('s_waitcnt lgkmcnt(0)\ns_barrier')
    srd_fin(e, 8, 'b1'); srd_fin(e, 12, 'b2'); srd_fin(e, 16, 'x'); srd_fin(e, 20, 'out')
    Lp = e.lab('par')
    e(f'''s_cmp_lg_u32 {sW}, 0
    s_cbranch_scc1 {Lp}''')
    for j in range(10):
        e(f's_mov_b32 m0, {L_PAR + 1024*j}\ns_mov_b32 {sT0}, {WS_MOD + 5120 + 1024*j}')
        e(f'buffer_load_dwordx4 v{vA16}, {WS}, {sT0} offen sc1 lds')
    e(f'''v_lshlrev_b32 v20, 1, v17
    s_lshl_b32 {sT0}, s57, 7
    s_mul_i32 {sT1}, s56, 80
    buffer_load_ushort v21, v20, s[8:11], {sT0} offen
    buffer_load_ushort v22, v20, s[12:15], {sT1} offen
    v_add_u32 v20, {L_PAR + 10240}, v{vA4}
    s_waitcnt vmcnt(0)
    v_lshlrev_b32 v21, 16, v21
    v_lshlrev_b32 v22, 16, v22
    ds_write_b32 v20, v21
    ds_write_b32 v20, v22 offset:256
    s_waitcnt lgkmcnt(0)
    {Lp}:''')
    e(f'''s_lshl_b32 {sT0}, s53, 3
    s_lshl_b32 {sT1}, {sW}, 1
    s_add_u32 {sT0}, {sT0}, {sT1}
    v_add_u32 v{vQF}, {sT0}, v17
    v_lshlrev_b32 v{vQF}, 8, v{vQF}
    s_lshl_b32 {sO}, {sT0}, 12
    s_add_u32 {sO}, {sO}, {WS_O}
    s_mul_i32 {sT0}, {sW}, 10240
    v_add_u32 v{vRW}, {sT0}, v{vA16}
    v_lshrrev_b32 v20, 2, v17
    v_lshlrev_b32 v21, 4, v20
    v_lshl_add_u32 v21, v31, 8, v21
    s_lshl_b32 {sT0}, {sW}, 10
    v_add_u32 v{vRR}, {sT0}, v21
    v_mul_u32_u24 v21, 10240, v20
    v_lshl_add_u32 v{vAPs}, v31, 4, v21
    s_mul_i32 {sAP}, s53, 2560
    s_mul_i32 {sT0}, s54, 320
    s_add_u32 {sAP}, {sAP}, {sT0}
    s_add_u32 {sAP}, {sAP}, {WS_AP}
    s_mul_i32 {sAPr}, {sCU}, 10240
    s_add_u32 {sAPr}, {sAPr}, {WS_AP}
    s_mul_i32 {sX}, {sCU}, 1280
    s_mul_i32 {sX1}, {sCU}, 2560
    s_add_u32 {sX1}, {sX1}, {WS_X1}
    s_mul_i32 {sY}, s55, 20480
    s_lshl_b32 {sT0}, s56, 4
    s_add_u32 {sY}, {sY}, {sT0}
    s_add_u32 {sY}, {sY}, {WS_Y}
    v_lshlrev_b32 v21, 2, v31
    v_lshl_add_u32 v{vYs}, v20, 8, v21
    s_and_b32 {sT0}, {sW}, 1
    s_lshl_b32 {sT0}, {sT0}, 3
    v_add_u32 v{vHs}, {sT0}, v{vA16}
    s_lshr_b32 {sT0}, {sW}, 1
    s_lshl_b32 {sT1}, s57, 1
    s_add_u32 {sT0}, {sT0}, {sT1}
    s_lshl_b32 {sHID}, {sT0}, 10
    s_add_u32 {sHID}, {sHID}, {WS_HID}
    s_mul_i32 {sHIDr}, s55, {54*1024}
    s_mul_i32 {sT0}, {sW}, {14*1024}
    s_add_u32 {sHIDr}, {sHIDr}, {sT0}
    s_add_u32 {sHIDr}, {sHIDr}, {WS_HID}
    s_cmp_eq_u32 {sW}, 3
    s_cselect_b32 {sHIDt}, 10, 12
    s_lshl_b32 {sHIDt}, {sHIDt}, 10
    v_mul_u32_u24 v21, 1280, v20
    v_lshl_add_u32 v{vOs}, v31, 3, v21
    v_lshlrev_b32 v{vX1}, 1, v{vOs}
    s_mul_i32 {sOUT}, s55, {16*1280}
    s_mul_i32 {sT0}, s56, 80
    s_add_u32 {sOUT}, {sOUT}, {sT0}
    s_lshl_b32 {sT0}, {sW}, 5
    s_add_u32 {sOUT}, {sOUT}, {sT0}
    s_lshl_b32 {sX1r}, {sOUT}, 1
    s_add_u32 {sX1r}, {sX1r}, {WS_X1}
    s_and_b32 {sT0}, {sW}, 1
    s_mul_i32 {sT0}, {sT0}, 20480
    s_lshr_b32 {sT1}, {sW}, 1
    s_lshl_b32 {sT1}, {sT1}, 10
    s_add_u32 {sYr}, {sT0}, {sT1}
    s_lshl_b32 {sFB}, {sTEAM}, 7
    s_mov_b32 {sPRE}, 0
    s_mov_b32 {sS}, {sTEAM}
    s_mov_b32 s58, 0x33333333
    s_cmp_eq_u32 {sW}, 2
    s_cselect_b32 s58, s58, -1
    s_mov_b32 s59, s58
    s_barrier''')
    trace(e, 3, vT)
    LS = e.lab('tslow')
    e(f's_cmp_eq_u32 {sFAST}, 0\ns_cbranch_scc1 {LS}')
    loop(e, '', cfg)
    e(f'{LS}:')
    loop(e, ' sc1', cfg)

def lane_sum2(e, a, b, t):
    for m in ('quad_perm:[1,0,3,2]', 'quad_perm:[2,3,0,1]', 'row_half_mirror', 'row_mirror'):
        e(f'v_add_f32_dpp v{a}, v{a}, v{a} {m} row_mask:0xf bank_mask:0xf\nv_add_f32_dpp v{b}, v{b}, v{b} {m} row_mask:0xf bank_mask:0xf')
    for sw in ('v_permlane16_swap_b32', 'v_permlane32_swap_b32'):
        e(f'''v_mov_b32 v{t}, v{a}
        v_mov_b32 v{t+1}, v{b}
        {sw} v{a}, v{t}
        {sw} v{b}, v{t+1}
        v_add_f32 v{a}, v{a}, v{t}
        v_add_f32 v{b}, v{b}, v{t+1}''')

def norm(e, X, a, b, t):
    e(f'v_add_f32 v{a}, v{X}, v{X+1}\nv_mul_f32 v{b}, v{X}, v{X}\nv_fmac_f32 v{b}, v{X+1}, v{X+1}')
    for i in range(2, 10): e(f'v_add_f32 v{a}, v{a}, v{X+i}\nv_fmac_f32 v{b}, v{X+i}, v{X+i}')
    lane_sum2(e, a, b, t)
    e(f'''v_mul_f32 v{a}, {f2u(1/640)}, v{a}
    v_mul_f32 v{b}, {f2u(1/640)}, v{b}
    v_fma_f32 v{b}, -v{a}, v{a}, v{b}
    v_max_f32 v{b}, 0, v{b}
    v_add_f32 v{b}, {f2u(1e-5)}, v{b}
    v_rsq_f32 v{b}, v{b}
    v_mul_f32 v{a}, v{a}, v{b}''')

def loop(e, sc, cfg):
    L = e.lab('team')
    def pt(i):
        if cfg.get('tprof'): e(f's_memtime s[{64+2*i}:{65+2*i}]')
    def obase(seg):
        e(f's_lshl_b32 {sT0}, {seg}, 18\ns_add_u32 s8, {sT0}, {sO}\ns_add_u32 s9, s8, 4096\ns_add_u32 s10, s8, {1 << 17}\ns_add_u32 s11, s9, {1 << 17}')
    def old(i):
        mt, k = divmod(i, 8)
        return f'buffer_load_dwordx4 {vr(A+4*(i%12),4)}, v{vA16}, {WS}, s{8 + 2*mt + k//4} offen offset:{1024*(k%4)} sc1'
    def ofetch(seg):
        obase(seg)
        e(f"""s_mul_i32 {sT0}, {seg}, 40960
        s_add_u32 {sT0}, {sT0}, {sX}
        s_lshl_b32 {sT3}, {sW}, 10
        s_add_u32 {sT0}, {sT0}, {sT3}
        s_add_u32 m0, {sT3}, {L_X}
        s_nop 0
        buffer_load_dwordx4 v{vA16}, s[16:19], {sT0} offen lds""")
        for i in range(12): e(old(i))
    G = e.lab('wog')
    e(f"""{L}:
    s_add_u32 {sN}, {sS}, 1
    s_mov_b32 {sB}, {sS if cfg.get('fresh') else sTEAM}
    s_cmp_lg_u32 {sPRE}, 0
    s_cbranch_scc1 {G}
    s_mov_b32 {sT0}, {F_QA}""")
    pt(0)
    wait_flags(e, vQF, sT0, 3, sN, vT, sleep=1)
    ofetch(sS)
    e(f'{G}:')
    trace(e, 64, vT, sS)
    pt(1)
    issued = 12
    for i in range(16):
        mt, k = divmod(i, 8)
        e(f's_waitcnt vmcnt({issued-1-i})')
        for t in range(5):
            a = vr(ACC + 4*(5*mt + t), 4)
            e(f'v_mfma_f32_16x16x32_bf16 {a}, {R4(WO(k,t))}, {vr(A+4*(i%12),4)}, {"0" if k == 0 else a}')
        if issued < 16: e(old(issued)); issued += 1
        if 9 <= i < 14: e(f'ds_write_b128 v{vRW}, {vr(ACC+4*(i-9),4)} offset:{L_RED+1024*(i-9)}')
    pt(2)
    e(f's_mul_i32 {sT0}, {sB}, {32*10240}\ns_add_u32 {sT1}, {sT0}, {sAP}')
    for i in range(5, 10): e(f'ds_write_b128 v{vRW}, {vr(ACC+4*i,4)} offset:{L_RED+1024*i}')
    e('s_waitcnt lgkmcnt(0)\ns_barrier')
    Lk = e.lab('wo2')
    def rrd(j):
        for w in range(4): e(f'ds_read_b128 {vr(A+16*j+4*w,4)}, v{vRR} offset:{L_RED + 10240*w + 4096*j}')
    def rfin(j):
        b = A + 16*j
        e(f'''s_add_u32 {sT2}, {sW}, {4*j}
        s_cmp_ge_u32 {sT2}, 5
        s_cselect_b32 {sT3}, {16*10240 - 5*64}, 0
        s_lshl_b32 {sT2}, {sT2}, 6
        s_add_u32 {sT2}, {sT2}, {sT3}
        s_add_u32 {sT2}, {sT2}, {sT1}''')
        for h in (0, 2):
            e(f'''v_pk_add_f32 {vr(b+h,2)}, {vr(b+h,2)}, {vr(b+4+h,2)}
            v_pk_add_f32 {vr(b+8+h,2)}, {vr(b+8+h,2)}, {vr(b+12+h,2)}
            v_pk_add_f32 {vr(b+h,2)}, {vr(b+h,2)}, {vr(b+8+h,2)}''')
        e(f'buffer_store_dwordx4 {vr(b,4)}, v{vAPs}, {WS}, {sT2} offen{sc}')
    pt(3)
    rrd(0); rrd(1); rrd(2)
    e('s_waitcnt lgkmcnt(8)'); rfin(0)
    e(f's_waitcnt lgkmcnt(4)'); rfin(1)
    e(f's_waitcnt lgkmcnt(0)\ns_cmp_ge_u32 {sW}, 2\ns_cbranch_scc1 {Lk}')
    rfin(2)
    Lln = e.lab('lnskip')
    e(f'''{Lk}:
    s_waitcnt vmcnt(0)
    s_barrier
    s_cmp_lg_u32 {sW}, 0
    s_cbranch_scc1 {Lln}''')
    set_flag(e, sFWO, sN, vT, sc)
    trace(e, 128, vT, sS)
    pt(4)
    P = A; XB = A + 40; GA = ACC; SB = ACC + 10; CB = ACC + 20; a_, b_, t_ = ACC + 30, ACC + 31, ACC + 32
    e(f'''s_mul_i32 {sT1}, {sB}, 40960
    v_lshlrev_b32 v{vT+1}, 1, v{vA4}
    v_add_u32 v{vT+2}, {L_PAR}, v{vT+1}
    v_add_u32 v{vT+3}, {L_X}, v{vA4}''')
    for j in range(5): e(f'ds_read_b32 v{XB+j}, v{vT+3} offset:{256*j}')
    e('s_waitcnt lgkmcnt(0)')
    for n, b in enumerate((GA, SB, CB)):
        for j in range(5): e(f'ds_read_b64 {vr(b+2*j,2)}, v{vT+2} offset:{2560*n + 512*j}')
    e(f's_add_u32 {sT2}, {sFB}, {F_WO}')
    wait_flags(e, vA4, sT2, 0xffffffff, sN, vT)
    pt(5)
    e(f's_add_u32 s60, {sT0}, {sAPr}\ns_add_u32 s61, s60, 2560\ns_add_u32 s62, s60, 5120\ns_add_u32 s63, s60, 7680')
    for j in range(5):
        for g in range(4): e(f'buffer_load_dwordx2 {vr(P+10*g+2*j,2)}, v{vT+1}, {WS}, s{60+g} offen offset:{512*j} sc1')
    e(f's_lshl_b32 {sT2}, {sT1}, 1\ns_add_u32 {sT2}, {sT2}, {sX1}\ns_waitcnt lgkmcnt(0)')
    for j in range(5):
        p = P + 2*j
        e(f'''s_waitcnt vmcnt({16-4*j+j})
        v_pk_add_f32 {vr(p,2)}, {vr(p,2)}, {vr(p+10,2)}
        v_pk_add_f32 {vr(p+20,2)}, {vr(p+20,2)}, {vr(p+30,2)}
        v_lshlrev_b32 v{p+10}, 16, v{XB+j}
        v_and_b32 v{p+11}, 0xffff0000, v{XB+j}
        v_pk_add_f32 {vr(p,2)}, {vr(p,2)}, {vr(p+20,2)}
        v_pk_fma_f32 {vr(p,2)}, {vr(p,2)}, {vr(GA+2*j,2)}, {vr(p+10,2)}
        buffer_store_dwordx2 {vr(p,2)}, v{vT+1}, {WS}, {sT2} offen offset:{512*j}{sc}''')
    H2 = P + 10
    pt(6)
    norm(e, P, a_, b_, t_)
    for i in range(10): e(f'v_fma_f32 v{H2+i}, v{P+i}, v{b_}, -v{a_}')
    for j in range(5): e(f'v_pk_fma_f32 {vr(H2+2*j,2)}, {vr(H2+2*j,2)}, {vr(CB+2*j,2)}, {vr(SB+2*j,2)}')
    norm(e, H2, a_, b_, t_)
    e(f's_add_u32 {sT2}, {sT1}, {sY}')
    for j in range(5):
        e(f'''v_fma_f32 v{H2+2*j}, v{H2+2*j}, v{b_}, -v{a_}
        v_fma_f32 v{H2+2*j+1}, v{H2+2*j+1}, v{b_}, -v{a_}
        v_cvt_pk_bf16_f32 v{XB+j}, v{H2+2*j}, v{H2+2*j+1}
        buffer_store_dword v{XB+j}, v{vYs}, {WS}, {sT2} offen{sc}''')
        if j < 4: e(f's_add_u32 {sT2}, {sT2}, 4096')
    pt(7)
    e('s_waitcnt vmcnt(0)')
    set_flag(e, sFLN, sN, vT, sc)
    trace(e, 192, vT, sS)
    e(f's_add_u32 {sT2}, {sFB}, {F_LN}')
    wait_flags(e, vA4, sT2, 0xffffffff, sN, vT)
    Lm2 = e.lab('m1skip')
    e(f'''{Lln}:
    s_barrier
    s_mul_i32 {sT1}, {sB}, 40960
    s_cmp_ge_u32 {sCU}, 27
    s_cbranch_scc1 {Lm2}''')
    pt(8)
    e(f's_add_u32 {sT2}, {sT1}, {sYr}')
    for j in range(10):
        if j % 2 == 0: e(f's_add_u32 m0, {sYr}, {L_Y + 2048*j}\ns_add_u32 s60, {sT2}, {WS_Y + 2048*j}')
        e(f'buffer_load_dwordx4 v{vA16}, {WS}, s60 offen offset:{2048*(j%2)} sc1 lds')
    e(f'''v_lshrrev_b32 v{vT+1}, 8, v{vA16}
    v_lshlrev_b32 v{vT+1}, 4, v{vT+1}
    s_lshl_b32 {sT3}, {sW}, 6
    s_add_u32 {sT3}, {sT3}, {L_PAR + 10240}
    v_add_u32 v{vT+1}, {sT3}, v{vT+1}
    ds_read_b128 {vr(ACC+8,4)}, v{vT+1}
    v_add_u32 v{vT+2}, {L_Y}, v{vA16}
    s_mul_i32 {sT2}, {sB}, {108*1024}
    s_add_u32 s60, {sT2}, {sHID}
    s_add_u32 s61, s60, {54*1024}
    s_waitcnt vmcnt(6) lgkmcnt(0)
    s_barrier''')
    D = 8
    pt(9)
    def yrd(i): k, mt = divmod(i, 2); return f'ds_read_b128 {vr(A+4*(i%(D+2)),4)}, v{vT+2} offset:{20480*mt + 1024*k}'
    for i in range(D): e(yrd(i))
    for i in range(40):
        k, mt = divmod(i, 2)
        if i + D in (16, 28): e(f's_waitcnt vmcnt({3 if i + D == 16 else 0})\ns_barrier')
        if i + D < 40: e(yrd(i+D))
        e(f's_waitcnt lgkmcnt({min(D, 39-i)})')
        a = vr(ACC+4*mt, 4)
        e(f'v_mfma_f32_16x16x32_bf16 {a}, {R4(W1(k))}, {vr(A+4*(i%(D+2)),4)}, {vr(ACC+8,4) if k == 0 else a}')
    pt(10)
    c0 = -2*math.sqrt(2/math.pi)*math.log2(math.e)
    e(f's_mov_b32 s62, {f2u(c0*0.044715)}\nv_mov_b32 v{vT+1}, {f2u(c0)}')
    U = ACC + 12
    for i in range(8): e(f'v_mul_f32 v{U+i}, v{ACC+i}, v{ACC+i}')
    for i in range(8): e(f'v_fma_f32 v{U+i}, v{U+i}, s62, v{vT+1}')
    for i in range(8): e(f'v_mul_f32 v{U+i}, v{U+i}, v{ACC+i}')
    for i in range(8): e(f'v_exp_f32 v{U+i}, v{U+i}')
    for i in range(8): e(f'v_add_f32 v{U+i}, 1.0, v{U+i}')
    for i in range(8): e(f'v_rcp_f32 v{U+i}, v{U+i}')
    for i in range(8): e(f'v_mul_f32 v{U+i}, v{U+i}, v{ACC+i}')
    for i in range(4): e(f'v_cvt_pk_bf16_f32 v{ACC+i}, v{U+2*i}, v{U+2*i+1}')
    Lf = e.lab('m1f')
    pt(11)
    e(f'''buffer_store_dwordx2 {vr(ACC,2)}, v{vHs}, {WS}, s60 offen{sc}
    buffer_store_dwordx2 {vr(ACC+2,2)}, v{vHs}, {WS}, s61 offen{sc}
    s_waitcnt vmcnt(0)
    s_barrier
    s_cmp_lg_u32 {sW}, 0
    s_cbranch_scc1 {Lm2}''')
    set_flag(e, sFM1, sN, vT, sc)
    trace(e, 256, vT, sS)
    pt(12)
    AC2 = 72; X1 = 84; B2 = 88; GB = 92
    e(f'''{Lm2}:
    s_lshl_b32 {sT2}, {sT1}, 1
    s_add_u32 {sT2}, {sT2}, {sX1r}
    buffer_load_dwordx4 {vr(X1,4)}, v{vX1}, {WS}, {sT2} offen sc1
    v_and_b32 v{vT+1}, 48, v{vA16}
    s_lshl_b32 {sT3}, {sW}, 6
    v_add_u32 v{vT+1}, {sT3}, v{vT+1}
    s_mul_i32 {sT3}, s56, 160
    v_add_u32 v{vT+2}, {sT3}, v{vT+1}
    v_add_u32 v{vT+1}, {L_PAR}, v{vT+1}
    v_add_u32 v{vT+2}, {L_PAR}, v{vT+2}
    ds_read_b128 {vr(B2,4)}, v{vT+1} offset:{10240+256}
    ds_read_b128 {vr(GB,4)}, v{vT+2} offset:7680
    s_add_u32 {sT2}, {sFB}, {F_M1}''')
    wait_flags(e, vA4, sT2, (1 << 27) - 1, sN, vT)
    pt(13)
    e(f'''s_mul_i32 {sT2}, {sB}, {108*1024}
    s_add_u32 s60, {sT2}, {sHIDr}
    s_add_u32 s61, s60, 4096
    s_add_u32 s62, s60, 8192
    s_add_u32 s63, s60, {sHIDt}''')
    for k in range(14): e(f'buffer_load_dwordx4 {vr(A+4*k,4)}, v{vA16}, {WS}, s{60+k//4} offen offset:{1024*(k%4)} sc1')
    e(f"""s_mov_b32 {sT0}, {F_QA}
    s_mov_b64 exec, 3
    buffer_load_dword v{vT}, v{vQF}, {WS}, {sT0} offen sc1
    s_mov_b64 exec, -1""")
    for k in range(14):
        e(f's_waitcnt vmcnt({14-k})')
        for t in range(3):
            a = vr(AC2+4*t, 4)
            e(f'v_mfma_f32_16x16x32_bf16 {a}, {R4(W2(k,t))}, {vr(A+4*k,4)}, {"0" if k == 0 else a}')
    pt(14)
    e(f"""s_mul_i32 {sT1}, {sS}, 40960
    s_add_u32 {sT2}, {sT1}, {sOUT}
    s_add_u32 s12, {sS}, {NTEAM}
    s_mov_b32 {sPRE}, 0""")
    for t in range(3): e(f'ds_write_b128 v{vRW}, {vr(AC2+4*t,4)} offset:{L_RED+1024*t}')
    Le = e.lab('m2e'); Lnp = e.lab('nopre')
    e(f"""s_mov_b64 exec, 3
    s_waitcnt vmcnt(0)
    v_cmp_ge_u32 vcc, s12, v{vT}
    s_mov_b64 exec, -1
    s_cbranch_vccnz {Lnp}""")
    if cfg.get('pre', 1):
        ofetch('s12')
        e(f's_mov_b32 {sPRE}, 1')
    e(f"""{Lnp}:
    s_waitcnt lgkmcnt(0)
    s_barrier
    s_cmp_eq_u32 {sW}, 3
    s_cbranch_scc1 {Le}""")
    E = 64
    for w in range(4): e(f'ds_read_b128 {vr(E+4*w,4)}, v{vRR} offset:{L_RED + 10240*w}')
    e('s_waitcnt lgkmcnt(0)')
    for h in (0, 2):
        e(f"""v_pk_add_f32 {vr(E+h,2)}, {vr(E+h,2)}, {vr(E+4+h,2)}
        v_pk_add_f32 {vr(E+8+h,2)}, {vr(E+8+h,2)}, {vr(E+12+h,2)}
        v_pk_add_f32 {vr(E+h,2)}, {vr(E+h,2)}, {vr(B2+h,2)}
        v_pk_add_f32 {vr(E+h,2)}, {vr(E+h,2)}, {vr(E+8+h,2)}
        v_pk_fma_f32 {vr(E+h,2)}, {vr(E+h,2)}, {vr(GB+h,2)}, {vr(X1+h,2)}""")
    e(f'''v_cvt_pk_bf16_f32 v{vT+1}, v{E}, v{E+1}
    v_cvt_pk_bf16_f32 v{vT+2}, v{E+2}, v{E+3}
    s_mov_b64 exec, s[58:59]
    buffer_store_dwordx2 {vr(vT+1,2)}, v{vOs}, s[20:23], {sT2} offen
    s_mov_b64 exec, -1
    {Le}:
    s_barrier''')
    trace(e, 320, vT, sS)
    pt(15)
    if cfg.get('tprof'):
        X = e.lab('tp')
        e(f's_cmp_lg_u32 {sS}, {cfg["tprof"]}\ns_cbranch_scc1 {X}\ns_waitcnt lgkmcnt(0)')
        for i in range(16): e(f'v_mov_b32 v{E+i}, s{64+2*i}')
        e(f's_lshl_b32 {sT0}, {sCU}, 2\ns_add_u32 {sT0}, {sT0}, {sW}\ns_lshl_b32 {sT0}, {sT0}, 6\ns_add_u32 {sT0}, {sT0}, {WS_DBG}\ns_mov_b64 exec, 1')
        for j in range(4): e(f'buffer_store_dwordx4 {vr(E+4*j,4)}, off, {WS}, {sT0} offset:{16*j}')
        e(f's_mov_b64 exec, -1\n{X}:')
    e(f'''
    s_add_u32 {sS}, {sS}, {NTEAM}
    s_cmp_lt_u32 {sS}, 64
    s_cbranch_scc1 {L}
    s_branch L_exit''')
```

```python
import sys
from asmlib import Asm
from common import *
from role_r import gen_R, RCfg
from role_g import gen_KV, gen_QA
from role_t import gen_T
NAME = 'adaLN_cond__memory_aug_recurrent_mem_tr__mixer_channel_mlp__prompt_kernel'
REF = 'adaLN_cond__memory_aug_recurrent_mem_tr__mixer_channel_mlp__prompt.s'
def gen(head='', **kw):
    rc = RCfg(); rc.standalone = 0
    for k, v in kw.items():
        if hasattr(rc, k): setattr(rc, k, v)
    e = Asm()
    TRACE[0] = kw.get('trace', 0); DIAG[0] = kw.get('diag', 0)
    e(f'''s_cmp_lt_u32 s2, 256
    s_cbranch_scc1 L_start
    L_exit:
    s_endpgm
    L_start:
    s_load_dwordx2 s[4:5], s[0:1], {KA['ws']}
    s_load_dwordx2 {DBG}, s[0:1], {KA['dbg']}
    v_lshrrev_b32 v1, 6, v0
    v_readfirstlane_b32 {sW}, v1
    s_mov_b32 s6, {WS_BYTES}
    s_mov_b32 s7, 0x20000
    s_mov_b32 {sSPIN}, {kw.get('spin', 100000)}
    s_waitcnt lgkmcnt(0)''')
    e(f'''s_getreg_b32 {sGRP}, hwreg(HW_REG_XCC_ID, 0, 3)
    s_lshr_b32 {sIDX}, s2, 3
    s_mov_b32 {sOWN}, 0''')
    trace(e, 0, 1)
    if DIAG[0]: e('s_memrealtime s[100:101]\ns_waitcnt lgkmcnt(0)\ns_mov_b32 s94, s100')
    e('L_dispatch:')
    e(f'''s_cmp_ge_u32 {sGRP}, 5
    s_cbranch_scc1 L_team
    s_cmp_eq_u32 {sGRP}, 4
    s_cbranch_scc1 L_qa
    s_cmp_eq_u32 {sGRP}, 3
    s_cbranch_scc1 L_v
    s_cmp_eq_u32 {sGRP}, 2
    s_cbranch_scc1 L_k
    s_mov_b32 s27, {sGRP}''')
    gen_R(e, rc)
    reclaim(e)
    e('L_k:'); gen_KV(e, 'k')
    e('L_v:'); gen_KV(e, 'v')
    e('L_qa:'); gen_QA(e, kw)
    e('L_team:'); gen_T(e, kw)
    if kw.get('slow'):
        e.lines = [(f's_mov_b32 {sFAST}, 0' if l.startswith(f's_cselect_b32 {sFAST},') else l) for l in e.lines]
    e.lines = [l for l in e.lines if not l.startswith('; MARK')]
    body = e.finalize()
    return f'''{head}; @launch grid=(256,1,1) block=(256,1,1) lds=163840
.amdgcn_target "amdgcn-amd-amdhsa--gfx950"
.text
.globl {NAME}
.p2align 8
.type {NAME},@function
{NAME}:
{body}.section .rodata,"a"
.p2align 6
.amdhsa_kernel {NAME}
  .amdhsa_next_free_vgpr 512
  .amdhsa_next_free_sgpr 102
  .amdhsa_accum_offset 256
  .amdhsa_group_segment_fixed_size 0
  .amdhsa_kernarg_size 136
  .amdhsa_user_sgpr_count 2
  .amdhsa_user_sgpr_kernarg_segment_ptr 1
  .amdhsa_system_sgpr_workgroup_id_x 1
.end_amdhsa_kernel
'''
if __name__ == '__main__':
    head = ''.join(l for l in open(REF + '.ref') if l.startswith(';') and '@launch' not in l and 'Override' not in l and 'grid=ceil' not in l)
    open(sys.argv[1] if len(sys.argv) > 1 else REF, 'w').write(gen(head))
```

```python
import re

TRANS = ('v_exp_f32','v_log_f32','v_rcp_f32','v_rsq_f32','v_sqrt_f32','v_sin_f32','v_cos_f32','v_rcp_iflag_f32')

def regs_of(tok):
    tok = tok.strip()
    tok = tok.lstrip('-')
    m = re.fullmatch(r'abs\((.*)\)', tok) or re.fullmatch(r'\|(.*)\|', tok)
    if m: tok = m.group(1)
    m = re.fullmatch(r'([vas])(\d+)', tok)
    if m: return {(m.group(1), int(m.group(2)))}
    m = re.fullmatch(r'([vas])\[(\d+):(\d+)\]', tok)
    if m: return {(m.group(1), i) for i in range(int(m.group(2)), int(m.group(3))+1)}
    if tok == 'vcc': return {('s','vcc')}
    if tok in ('vcc_lo','vcc_hi'): return {('s','vcc')}
    if tok == 'm0': return {('s','m0')}
    if tok in ('exec','exec_lo','exec_hi'): return {('s','exec')}
    return set()

class Ins:
    __slots__ = ('text','mn','ops','mods','kind','w','r','passes','srcC','srcAB','data','label','target','ws','dpp','lds')
    def __init__(self, text):
        self.text = text
        t = text.split(';')[0].strip()
        self.label = None; self.target = None; self.kind = 'none'; self.w = set(); self.r = set()
        self.passes = 0; self.srcC = set(); self.srcAB = set(); self.data = set(); self.ws = 0; self.dpp = False; self.lds = False
        self.mn = ''; self.ops = []; self.mods = ''
        if not t or t.startswith('.'):
            if t.endswith(':'): self.label = t[:-1]; self.kind = 'label'
            return
        if t.endswith(':'):
            self.label = t[:-1]; self.kind = 'label'; return
        parts = t.split(None, 1)
        mn = parts[0]; rest = parts[1] if len(parts) > 1 else ''
        mn = re.sub(r'_(e32|e64)$', '', mn)
        self.mn = mn; self.ws = 1
        toks = [x.strip() for x in rest.split(',')] if rest else []
        rest2 = re.sub(r'\[(\d+),(\d+)(?:,(\d+))?(?:,(\d+))?\]', '[]', rest)
        toks = [x.strip() for x in rest2.split(',')] if rest2 else []
        if toks:
            last = toks[-1].split(None, 1)
            toks[-1] = last[0]; self.mods = last[1] if len(last) > 1 else ''
        self.ops = toks
        R = [regs_of(x) for x in toks]
        U = lambda l: set().union(*l) if l else set()
        if mn == 's_nop':
            self.kind = 'salu'; self.ws = int(toks[0], 0) + 1
        elif mn.startswith('s_cbranch') or mn == 's_branch':
            self.kind = 'branch'; self.target = toks[0]
        elif mn == 's_endpgm':
            self.kind = 'end'
        elif mn.startswith('s_'):
            self.kind = 'salu'
            if mn.startswith('s_cmp') or mn.startswith('s_bitcmp') or mn in ('s_waitcnt','s_barrier','s_setprio','s_sleep'):
                self.r = U(R)
            else:
                self.w = R[0] if R else set(); self.r = U(R[1:])
                if 'saveexec' in mn: self.w = self.w | {('s','exec')}
        elif mn.startswith('v_mfma') or mn.startswith('v_smfmac'):
            self.kind = 'mfma'
            self.passes = 8 if ('32x32' in mn or mn == 'v_mfma_f32_16x16x4_f32') else 4
            self.w = R[0]
            if mn.startswith('v_smfmac'):
                self.srcC = R[0]; self.srcAB = R[1] | R[2] | R[3]
            else:
                self.srcC = R[3]; self.srcAB = R[1] | R[2]
            self.r = self.srcC | self.srcAB
        elif mn.startswith('v_'):
            self.kind = 'valu'
            self.dpp = mn.endswith('_dpp') or 'quad_perm' in self.mods or 'row_' in self.mods
            if mn == 'v_nop': pass
            elif mn.startswith('v_permlane') or mn == 'v_swap_b32':
                self.w = R[0] | R[1]; self.r = R[0] | R[1]
            elif '_co_' in mn and not mn.startswith('v_cmp'):
                self.w = R[0] | R[1]; self.r = U(R[2:])
            else:
                self.w = R[0]; self.r = U(R[1:])
                if mn.startswith('v_fmac') or mn.startswith('v_dot2c') or mn.startswith('v_writelane') or self.dpp: self.r = self.r | R[0]
                if mn.startswith('v_cmpx'): self.w = self.w | {('s','exec')}
        elif mn.startswith('buffer_') or mn.startswith('global_'):
            self.kind = 'vmem'
            self.lds = ' lds' in (' ' + self.mods) or '_lds_' in mn
            if mn in ('buffer_inv','buffer_wbl2'): return
            if self.lds: self.r = U(R) | {('s','m0')}
            elif 'load' in mn: self.w = R[0]; self.r = U(R[1:])
            elif 'atomic' in mn:
                self.r = U(R)
                if 'sc0' in self.mods.split(): self.w = R[0]
            else:
                self.r = U(R)
                self.data = R[0] if mn.startswith('buffer_') else R[1]
        elif mn.startswith('ds_'):
            self.kind = 'ds'
            if mn.startswith('ds_read') or 'permute' in mn or 'swizzle' in mn or '_rtn' in mn: self.w = R[0]; self.r = U(R[1:])
            else: self.r = U(R)
        else:
            raise ValueError('unknown instruction: ' + text)

def need(p, c):
    n = 0
    vw = {x for x in p.w if x[0] in 'va'}
    sw = {x for x in p.w if x[0] == 's'}
    if p.kind == 'valu':
        if c.kind == 'mfma' and vw & c.r: n = max(n, 2)
        if c.kind == 'valu':
            if vw & c.r:
                if c.dpp or c.mn.startswith('v_permlane'): n = max(n, 2)
                if c.mn.startswith('v_readlane') or c.mn.startswith('v_readfirstlane'): n = max(n, 1)
                if p.mn in TRANS and c.mn not in TRANS: n = max(n, 1)
                if p.mn in TRANS: n = max(n, 1)
                if 'op_sel' in p.mods and not p.mn.startswith('v_pk_'): n = max(n, 1)
                if 'dst_sel' in p.mods: n = max(n, 1)
            if sw & c.r:
                n = max(n, 4 if c.mn.startswith('v_readlane') or c.mn.startswith('v_writelane') else 2)
            if ('s','exec') in sw: n = max(n, 5 if c.dpp else 4)
        if c.kind == 'vmem' and sw & c.r: n = max(n, 5)
        if c.kind == 'mfma' and ('s','exec') in sw: n = max(n, 4)
        if c.kind == 'salu' and sw & c.r: n = max(n, 1)
        if p.mn in TRANS and c.kind in ('vmem','ds') and vw & c.r: n = max(n, 1)
    elif p.kind == 'mfma':
        big = 12 if p.passes == 8 else 8
        if c.kind == 'mfma':
            if vw & c.srcAB: n = max(n, big)
            if vw & c.srcC and (vw != c.srcC or p.mn != c.mn): n = max(n, big - 2)
            if vw & c.w and not (vw & c.srcC) and p.mn != c.mn: n = max(n, big)
        elif c.kind in ('valu','vmem','ds'):
            if vw & (c.r | c.w): n = max(n, big)
            if c.kind == 'valu' and p.srcC & c.w: n = max(n, 7 if p.passes == 8 else 3)
    elif p.kind == 'vmem':
        if len(p.data) >= 3 and p.data & c.w: n = max(n, 2)
    elif p.kind == 'salu':
        if ('s','m0') in sw and c.kind == 'vmem' and c.lds: n = max(n, 1)
    return n

class Asm:
    def __init__(self):
        self.lines = []; self.uid = 0
    def __call__(self, s):
        for l in s.split('\n'):
            l = l.strip()
            if l: self.lines.append(l)
    def lab(self, stem):
        self.uid += 1; return f'L_{stem}_{self.uid}'
    def resolve_waits(self):
        out = []
        for i, l in enumerate(self.lines):
            if l != '@wl': out.append(l); continue
            j = i + 1
            while Ins(self.lines[j]).kind in ('none', 'label'): j += 1
            want = Ins(self.lines[j]).r
            n = 0; need_n = None; bound = 99
            for p in reversed(out):
                x = Ins(p)
                if x.mn == 's_waitcnt':
                    m = re.search(r'lgkmcnt\((\d+)\)', p)
                    if m:
                        bound = min(bound, n + int(m.group(1)))
                        if int(m.group(1)) == 0: break
                if x.kind == 'ds':
                    if n >= bound: break
                    if x.w & want: need_n = n; break
                    n += 1
            if need_n is not None: out.append(f's_waitcnt lgkmcnt({need_n})')
        self.lines = out
    def finalize(self, verbose=False):
        self.resolve_waits()
        ins = [Ins(l) for l in self.lines]
        out = []; inserted = 0
        MAXD = 12
        def build():
            tgt = {}
            for i, x in enumerate(ins):
                if x.kind == 'branch': tgt.setdefault(x.target, []).append(i)
            return tgt
        tgt = build()
        pad = [0]*len(ins)
        for i, c in enumerate(ins):
            if c.kind in ('none','label','end','branch') or c.mn == 's_nop': continue
            worst = 0
            stack = [(i-1, 0)]; seen = set()
            while stack:
                j, d = stack.pop()
                while j >= 0 and d < MAXD:
                    if (j, d) in seen: break
                    seen.add((j, d))
                    p = ins[j]
                    if p.kind == 'label':
                        for b in tgt.get(p.label, []): stack.append((b - 1, d + 1 + pad[b]))
                        j -= 1
                        k = j
                        while k >= 0 and ins[k].kind == 'none': k -= 1
                        if k >= 0 and (ins[k].mn == 's_branch' or ins[k].kind == 'end'): break
                        continue
                    if p.kind == 'none': j -= 1; continue
                    r = need(p, c) - d
                    if r > worst: worst = r
                    d += p.ws + pad[j]
                    j -= 1
            pad[i] = worst
        for i, c in enumerate(ins):
            if pad[i]:
                out.append(f'    s_nop {pad[i]-1}'); inserted += pad[i]
                if verbose: print('pad', pad[i], 'before', c.text)
            out.append(c.text if c.kind in ('label','none') else '    ' + c.text)
        self.inserted = inserted
        return '\n'.join(out) + '\n'
```

```python
from layout import *
import struct, math
def f2u(x): return struct.unpack('<I', struct.pack('<f', x))[0]
WS = 's[4:7]'
sGRP, sIDX, sW = 's24', 's25', 's26'
sSPIN = 's31'
sFAST = 's3'
J = '\n'.join
def vr(b, n=1): return f'v{b}' if n == 1 else f'v[{b}:{b+n-1}]'
def srd(e, s, name): e(f's_load_dwordx2 s[{s}:{s+1}], s[0:1], {KA[name]}')
def srd_fin(e, s, name): e(f's_mov_b32 s{s+2}, {SZ[name]}\ns_mov_b32 s{s+3}, 0x20000')
def spin(e): e(f's_sub_u32 {sSPIN}, {sSPIN}, 1\ns_cbranch_scc1 L_exit')

F_K, F_V, F_R, F_QA = (WS_FLAG + 8192*i for i in (0, 1, 2, 4))
F_WO, F_LN, F_M1 = (WS_FLAG + 40960 + 1024*i for i in range(3))
D_MIX, D_MODA, D_MODB, D_H, D_ARM = 32, 36, 40, 44, 48
G_GO, G_MODA, G_MODB, G_H, G_NEAR, G_ARM = 128, 132, 136, 140, 144, 148
DBG = 's[96:97]'
sOWN = 's98'

def wait_flags(e, vaddr, soff, mask, target, vtmp, sleep=0):
    L = e.lab('wf'); D = e.lab('wfd')
    e(f's_mov_b64 exec, {mask}' if not isinstance(mask, int) or mask in (-1,) or 0 <= mask <= 64 else f's_mov_b32 exec_lo, {mask & 0xffffffff}\ns_mov_b32 exec_hi, {mask >> 32}')
    e(f'''{L}:
    buffer_load_dword v{vtmp}, v{vaddr}, {WS}, {soff} offen sc1
    s_waitcnt vmcnt(0)
    v_cmp_gt_u32 vcc, {target}, v{vtmp}
    s_cbranch_vccz {D}''')
    if sleep: e(f's_sleep {sleep}')
    spin(e)
    e(f's_branch {L}\n{D}:\ns_mov_b64 exec, -1')

def set_flag(e, soff, val, vtmp, sc=' sc1'):
    e(f'''s_mov_b64 exec, 1
    v_mov_b32 v{vtmp}, {val}
    buffer_store_dword v{vtmp}, off, {WS}, {soff}{sc}
    s_mov_b64 exec, -1''')

L_CL = 163832
vCL = 254
def claim_issue(e):
    L = e.lab('ci')
    e(f'''s_or_b32 s99, {sW}, {sOWN}
    s_cbranch_scc1 {L}
    s_lshl_b32 s99, {sGRP}, 2
    s_lshl_b32 s95, 1, {sIDX}
    s_atomic_or s95, {DBG}, s99 glc
    {L}:''')

def claim_check(e, at=L_CL):
    L = e.lab('cc'); W = e.lab('ccw')
    e(f'''s_cmp_lg_u32 {sOWN}, 0
    s_cbranch_scc1 {L}
    v_mov_b32 v{vCL}, {at}
    s_cmp_lg_u32 {sW}, 0
    s_cbranch_scc1 {W}
    s_waitcnt lgkmcnt(0)
    v_mov_b32 v{vCL+1}, s95
    ds_write_b32 v{vCL}, v{vCL+1}
    s_waitcnt lgkmcnt(0)
    {W}:
    s_barrier
    ds_read_b32 v{vCL+1}, v{vCL}
    s_waitcnt lgkmcnt(0)
    v_readfirstlane_b32 s99, v{vCL+1}
    s_barrier
    s_bitcmp1_b32 s99, {sIDX}
    s_cbranch_scc1 L_reclaim
    {L}:''')

def reclaim(e):
    L = e.lab('cl'); D = e.lab('cld'); N = e.lab('cln'); W = e.lab('clw'); A = e.lab('cla')
    e(f'''L_reclaim:
    s_waitcnt vmcnt(0)
    s_cmp_lg_u32 {sW}, 0
    s_cbranch_scc1 {W}
    s_mov_b64 exec, 1
    {L}:
    s_ff0_i32_b32 {sIDX}, s99
    s_cmp_lt_i32 {sIDX}, 0
    s_cbranch_scc0 {A}
    s_add_u32 {sGRP}, {sGRP}, 1
    s_and_b32 {sGRP}, {sGRP}, 7
    s_mov_b32 {sIDX}, 0
    v_mov_b32 v2, 0
    v_mov_b32 v3, 1
    global_atomic_or v2, v3, {DBG} offset:{D_MIX}
    s_waitcnt vmcnt(0)
    s_add_u32 {sOWN}, {sOWN}, 1
    s_cmp_lt_u32 {sOWN}, 8
    s_cbranch_scc1 {A}
    s_mov_b32 {sGRP}, 8
    s_branch {D}
    {A}:
    s_lshl_b32 s99, {sGRP}, 2
    v_mov_b32 v2, s99
    s_lshl_b32 s99, 1, {sIDX}
    v_mov_b32 v3, s99
    global_atomic_or v3, v2, v3, {DBG} sc0
    s_waitcnt vmcnt(0)
    v_readfirstlane_b32 s99, v3
    s_bitcmp1_b32 s99, {sIDX}
    s_cbranch_scc1 {L}
    {D}:
    v_mov_b32 v2, {sGRP}
    v_mov_b32 v3, {sIDX}
    ds_write_b64 v{vCL}, v[2:3]
    s_mov_b64 exec, -1
    s_waitcnt lgkmcnt(0)
    {W}:
    s_barrier
    ds_read_b64 v[2:3], v{vCL}
    s_lshl_b32 s99, {sW}, 6
    v_mbcnt_lo_u32_b32 v0, -1, 0
    v_mbcnt_hi_u32_b32 v0, -1, v0
    v_add_u32 v0, s99, v0
    s_waitcnt lgkmcnt(0)
    v_readfirstlane_b32 {sGRP}, v2
    v_readfirstlane_b32 {sIDX}, v3
    s_cmp_ge_u32 {sGRP}, 8
    s_cbranch_scc1 L_exit
    s_and_b32 {sIDX}, {sIDX}, 31
    s_mov_b32 {sOWN}, 1
    s_barrier
    s_branch L_dispatch''')

def count_in(e, cnt, n, go, v):
    L = e.lab('ci')
    e(f'''s_mov_b64 exec, 1
    v_mov_b32 v{v}, 0
    v_mov_b32 v{v+1}, 1
    global_atomic_add v{v+2}, v{v}, v{v+1}, {DBG} offset:{cnt} sc0
    s_waitcnt vmcnt(0)
    v_cmp_ne_u32 vcc, {n-1}, v{v+2}
    s_cbranch_vccnz {L}
    global_store_dword v{v}, v{v+1}, {DBG} offset:{go} sc1
    {L}:
    s_mov_b64 exec, -1''')

def wait_go(e, mask, v, sleep=2):
    L = e.lab('gs'); D = e.lab('gsd')
    e(f'''v_mbcnt_lo_u32_b32 v{v}, -1, 0
    v_lshlrev_b32 v{v}, 2, v{v}
    s_mov_b64 exec, {mask}
    {L}:
    global_load_dword v{v+1}, v{v}, {DBG} offset:128 sc1
    s_waitcnt vmcnt(0)
    v_cmp_eq_u32 vcc, 0, v{v+1}
    s_cbranch_vccz {D}
    s_sleep {sleep}''')
    spin(e)
    e(f's_branch {L}\n{D}:\ns_mov_b64 exec, -1')

def gsync(e, v, mask):
    wait_go(e, mask, v)
    e(f'''v_readlane_b32 s99, v{v+1}, 0
    s_cmp_eq_u32 s99, 1
    s_cselect_b32 {sFAST}, 1, 0''')

def coordinate(e, v):
    L = e.lab('co'); D = e.lab('cod')
    e(f'''v_mbcnt_lo_u32_b32 v{v}, -1, 0
    v_lshlrev_b32 v{v}, 2, v{v}
    s_mov_b64 exec, 0xff
    {L}:
    global_load_dword v{v+1}, v{v}, {DBG} sc1
    s_waitcnt vmcnt(0)
    v_cmp_ne_u32 vcc, -1, v{v+1}
    s_cbranch_vccz {D}
    s_sleep 8''')
    spin(e)
    e(f'''s_branch {L}
    {D}:
    s_mov_b64 exec, 1
    global_atomic_or v{v+1}, v{v}, v{v}, {DBG} offset:{D_MIX} sc0
    s_waitcnt vmcnt(0)
    v_add_u32 v{v+1}, 1, v{v+1}
    global_store_dword v{v}, v{v+1}, {DBG} offset:{G_GO} sc1
    s_mov_b64 exec, -1''')

def probe_near(e, v):
    L = e.lab('pn')
    e(f'''s_mov_b64 exec, 1
    v_mov_b32 v{v}, 0
    s_mov_b32 s40, -1
    s_mov_b32 s41, -1
    s_mov_b32 s42, 0
    {L}:''')
    for c in range(2):
        P = e.lab('pp')
        e(f'''s_lshl_b32 s43, s42, 8
        s_add_u32 s43, s43, {8192*c}
        s_mov_b32 s44, 0
        buffer_store_dword v{v}, off, {WS}, s43 sc1
        {P}:
        s_add_u32 s44, s44, 1
        s_getreg_b32 s45, hwreg(HW_REG_IB_STS, 0, 4)
        s_cmp_lt_u32 s44, 4000
        s_cselect_b32 s45, s45, 0
        s_cmp_lg_u32 s45, 0
        s_cbranch_scc1 {P}
        s_min_u32 s{40+c}, s{40+c}, s44''')
    e(f'''s_add_u32 s42, s42, 1
    s_cmp_lt_u32 s42, 4
    s_cbranch_scc1 {L}
    s_cmp_lt_u32 s40, s41
    s_cselect_b32 s42, 1, 2
    s_lshl_b32 s40, s40, 8
    s_lshl_b32 s41, s41, 20
    s_or_b32 s42, s42, s40
    s_or_b32 s42, s42, s41
    v_mov_b32 v{v+1}, s42
    global_store_dword v{v}, v{v+1}, {DBG} offset:{G_NEAR} sc1
    s_mov_b64 exec, -1''')

TRACE = [0]
WS_TR = 0x8000000
def trace(e, slot, v, idx=None):
    if not TRACE[0] or (TRACE[0] == 3 and idx and slot != 320): return
    L = e.lab('tr')
    e(f'''s_cmp_lg_u32 {sW}, 0
    s_cbranch_scc1 {L}
    {'s_memrealtime' if TRACE[0] != 2 else 's_memtime'} s[100:101]
    s_waitcnt lgkmcnt(0)
    s_lshl_b32 s101, {sGRP}, 5
    s_add_u32 s101, s101, {sIDX}
    s_lshl_b32 s101, s101, 9
    s_add_u32 s101, s101, {slot}
    {f's_add_u32 s101, s101, {idx}' if idx else ''}
    s_lshl_b32 s101, s101, 2
    s_add_u32 s101, s101, {WS_TR}
    s_mov_b64 exec, 1
    v_mov_b32 v{v}, s100
    buffer_store_dword v{v}, off, {WS}, s101
    s_mov_b64 exec, -1
    {L}:''')
```

```python
from common import *
sH = sIDX
sS, sBUF, sHS, sOUT, sFL, sT0, sT1 = 's28', 's29', 's30', 's32', 's33', 's34', 's35'
vA16, vRD = 2, 3
HB = 40960

def load_weights(e, name, kind, claim=True):
    srd(e, 8, name)
    e(f'''v_and_b32 v1, 63, v0
    v_lshlrev_b32 v{vA16}, 4, v1
    v_and_b32 v4, 15, v1
    v_lshrrev_b32 v5, 4, v1
    v_lshlrev_b32 v6, 2, v5
    v_xor_b32 v6, v6, v4
    v_lshlrev_b32 v6, 4, v6
    v_lshl_add_u32 v6, v5, 13, v6
    s_lshl_b32 {sT0}, {sH}, 8
    s_lshl_b32 {sT1}, {sW}, 17
    s_add_u32 {sT0}, {sT0}, {sT1}
    v_add_u32 v6, {sT0}, v6
    s_lshl_b32 {sT1}, {sW}, 12
    s_waitcnt lgkmcnt(0)''')
    srd_fin(e, 8, name)
    for n in range(10):
        e(f's_add_u32 m0, {sT1}, {n*16384}')
        for t in range(4):
            e(f's_mov_b32 {sT0}, {(64*n + 4*t)*8192 - 1024*t}')
            e(f'buffer_load_dwordx4 v6, s[8:11], {sT0} offen offset:{1024*t} lds')
    e(f'''v_bfe_u32 v7, v1, 2, 2           ; rr
    v_and_b32 v8, 3, v1              ; cc
    v_and_b32 v9, 1, v5              ; G&1
    v_lshrrev_b32 v10, 1, v5         ; kh''')
    if kind == 'v':
        e('v_mov_b32 v11, v8\nv_mov_b32 v12, v9')
    else:
        e('v_and_b32 v11, 1, v8\nv_lshl_add_u32 v11, v9, 1, v11\nv_lshrrev_b32 v12, 1, v8')
    e(f'''v_xor_b32 v13, {sW}, v7
    v_lshl_add_u32 v11, v13, 2, v11
    v_lshlrev_b32 v11, 4, v11
    v_lshl_add_u32 v11, v12, 3, v11
    v_lshl_add_u32 v11, v7, 8, v11
    v_lshl_add_u32 v11, v10, 11, v11''')
    for n in range(10):
        e(f's_waitcnt vmcnt({4*(9-n)})\ns_barrier')
        e(f'v_add_u32 v12, {n*16384}, v11')
        for k in range(4):
            for t in range(2):
                a = 4*(4*n + k) + 2*t
                e(f'ds_read_b64_tr_b16 a[{a}:{a+1}], v12 offset:{4096*k + 1024*t}')
        e('s_waitcnt lgkmcnt(0)')
        if n == 7 and claim: claim_issue(e)
    if claim: claim_check(e, 0)

def h_dma():
    out = []
    for j in range(10):
        x = f's_add_u32 m0, {sBUF}, {1024*j}\ns_add_u32 {sT0}, {sHS}, {1024*j}\n' if j % 4 == 0 else ''
        out.append(x + f'buffer_load_dwordx4 v{vA16}, {WS}, {sT0} offen offset:{1024*(j%4)} sc1 lds')
    out.append(f'''s_add_u32 {sHS}, {sHS}, {HB}
    s_add_u32 {sBUF}, {sBUF}, {HB}
    s_sub_u32 {sT0}, {sBUF}, {3*HB}
    s_cselect_b32 {sBUF}, {sBUF}, {sT0}''')
    return out

def start_h(e, mask=40):
    trace(e, 1, 4)
    wait_go(e, mask, 4)
    trace(e, 3, 4)
    e(f'''s_barrier
    s_mul_i32 {sBUF}, {sW}, 10240
    s_add_u32 {sHS}, {sBUF}, {WS_H}
    s_mov_b32 {sS}, 0
    s_mov_b32 s36, 0''')
    e(J(h_dma() + h_dma()))

def gemm(e, kind, ACC, FR, extra=(), every=1):
    D = 5; extra = list(extra)
    e(f'v_add_u32 v{vRD}, s36, v{vA16}')
    def rd(k): return f'ds_read_b128 {vr(FR+4*(k%(D+2)),4)}, v{vRD} offset:{1024*k}'
    for k in range(D): e(rd(k))
    e(f'''s_add_u32 s36, s36, {HB}
    s_cmp_eq_u32 s36, {3*HB}
    s_cselect_b32 s36, 0, s36''')
    for k in range(40):
        if k + D < 40: e(rd(k+D))
        e(f's_waitcnt lgkmcnt({min(D, 39-k)})')
        w = f'a[{4*k}:{4*k+3}]'; f = vr(FR+4*(k%(D+2)), 4)
        a, b = (f, w) if kind == 'v' else (w, f)
        e(f'v_mfma_f32_32x32x16_bf16 {vr(ACC,16)}, {a}, {b}, {"0" if k == 0 else vr(ACC,16)}')
        if extra and k % every == 0: e(extra.pop(0))
    assert not extra

def gen_KV(e, kind):
    F = F_K if kind == 'k' else F_V
    e(f's_lshl_b32 {sFL}, {sH}, 8\ns_add_u32 {sFL}, {sFL}, {F}')
    load_weights(e, 'wk' if kind == 'k' else 'wv', kind)
    if kind == 'k':
        P = e.lab('nopr')
        e(f's_or_b32 {sT0}, {sH}, {sW}\ns_cbranch_scc1 {P}')
        probe_near(e, 4)
        e(f'{P}:')
    start_h(e)
    ACC = 16; FR = 32; PK = 8
    e(f'''s_lshl_b32 {sOUT}, {sH}, 13
    s_lshl_b32 {sT0}, {sW}, 11
    s_add_u32 {sOUT}, {sOUT}, {sT0}
    s_add_u32 {sOUT}, {sOUT}, {WS_K if kind == 'k' else WS_V}
    s_waitcnt vmcnt(10)''')
    L = e.lab('kv'); N = e.lab('kvn'); E = e.lab('kve')
    e(f'''s_mov_b32 {sT1}, 0
    {L}:
    s_barrier
    s_cmp_lg_u32 {sW}, 0
    s_cbranch_scc1 {N}''')
    set_flag(e, sFL, sT1, 1)
    trace(e, 64, 1, sS)
    e(f'{N}:')
    gemm(e, kind, ACC, FR, h_dma(), 3)
    for i in range(8): e(f'v_cvt_pk_bf16_f32 v{PK+i}, v{ACC+2*i}, v{ACC+2*i+1}')
    e(f'''buffer_store_dwordx4 {vr(PK,4)}, v{vA16}, {WS}, {sOUT} offen sc1
    buffer_store_dwordx4 {vr(PK+4,4)}, v{vA16}, {WS}, {sOUT} offen offset:1024 sc1
    s_add_u32 {sOUT}, {sOUT}, {32*8192}
    s_mov_b32 {sT1}, {sS}
    s_add_u32 {sS}, {sS}, 1
    s_cmp_gt_u32 {sS}, 2
    s_cbranch_scc1 {E}
    s_waitcnt vmcnt(0)
    s_mov_b32 {sT1}, {sS}
    {E}:
    s_cmp_lt_u32 {sS}, 64
    s_waitcnt vmcnt(12)
    s_cbranch_scc1 {L}
    s_waitcnt vmcnt(0)
    s_barrier''')
    set_flag(e, sFL, 64, 1)
    trace(e, 4, 1)
    e('s_branch L_exit')

def gen_QA(e, cfg={}):
    def pt(i):
        if cfg.get('qprof'): e(f's_memtime s[{64+2*i}:{65+2*i}]')
    sKV, sKM, sVM, sC, sN = 's37', 's38', 's39', 's40', 's41'
    e(f's_lshl_b32 {sFL}, {sH}, 8\ns_add_u32 {sFL}, {sFL}, {F_QA}')
    claim_issue(e); claim_check(e)
    La = e.lab('arm')
    e(f'''v_mov_b64 v[8:9], -1
    v_mov_b64 v[10:11], -1
    v_mov_b64 v[12:13], 0
    v_lshlrev_b32 v6, 4, v0
    v_lshlrev_b32 v7, 3, v0
    s_lshl_b32 {sT0}, {sH}, 11
    s_add_u32 {sT0}, {sT0}, {WS_FLAG}
    buffer_store_dwordx2 v[12:13], v7, {WS}, {sT0} offen sc1
    s_lshl_b32 {sT0}, {sH}, 12
    s_add_u32 {sT0}, {sT0}, {WS_M}
    buffer_store_dwordx4 v[8:11], v6, {WS}, {sT0} offen sc1
    s_mul_i32 {sT0}, {sH}, {18*4096}
    s_add_u32 {sT0}, {sT0}, {WS_VX}''')
    for j in range(18): e(f'buffer_store_dwordx4 v[8:11], v6, {WS}, {sT0} offen sc1\ns_add_u32 {sT0}, {sT0}, 4096')
    e(f's_waitcnt vmcnt(0)\ns_barrier\ns_cmp_lg_u32 {sW}, 0\ns_cbranch_scc1 {La}')
    count_in(e, D_ARM, 32, G_ARM, 8)
    e(f'{La}:')
    load_weights(e, 'wq', 'q', False)
    start_h(e)
    LQ = 3*HB
    vQw, vQr, vK, vV, vFL, vF, vVM, vLF = 4, 5, 6, 7, 8, 9, 10, 11
    vKr, vVr = 170, 171
    BIAS = 12
    ACC = 20; FR = 36
    KX = 64; VX = 96; KM = 112; VM = 128; Q = 136
    S = 152; PX = 164; PM = 168; ONE = 172; O = 176; SUM = 192; T = 196; OP = 200
    e(f'''v_and_b32 v20, 15, v1            ; rho
    v_lshrrev_b32 v21, 4, v1         ; g
    s_and_b32 {sT0}, {sW}, 1
    s_lshr_b32 {sT1}, {sW}, 1        ; e half
    s_lshl_b32 s42, {sW}, 11
    s_add_u32 s42, s42, {LQ}
    v_add_u32 v{vQw}, s42, v{vA16}
    v_lshlrev_b32 v22, 9, v21
    v_lshl_add_u32 v23, v20, 4, v22
    s_lshl_b32 s42, {sT0}, 8
    s_add_u32 s42, s42, {LQ}
    v_add_u32 v{vQr}, s42, v23
    s_lshl_b32 s42, {sW}, 11
    v_add_u32 v{vV}, s42, v23
    v_add_u32 v22, s42, v22
    s_lshl_b32 s47, {sW}, 10
    s_lshl_b32 s48, {sW}, 12
    v_add_u32 v{vKr}, {LQ + 8192 + 256}, v{vA16}
    s_lshl_b32 s42, {sT1}, 13
    v_add_u32 v{vVr}, s42, v{vKr}
    v_lshrrev_b32 v24, 3, v20
    v_lshl_add_u32 v24, v24, 8, v22
    v_and_b32 v25, 7, v20
    v_lshl_add_u32 v{vK}, v25, 4, v24
    s_lshl_b32 s42, {sT1}, 10
    v_lshl_add_u32 v{vVM}, v1, 3, s42
    s_lshl_b32 {sOUT}, {sT0}, 17
    s_lshl_b32 s42, {sH}, 12
    s_add_u32 {sOUT}, {sOUT}, s42
    s_add_u32 {sKM}, s42, {WS_KM}
    s_lshr_b32 s42, s42, 1
    s_add_u32 {sVM}, s42, {WS_VM}
    s_lshl_b32 s42, {sT1}, 11
    s_add_u32 {sOUT}, {sOUT}, s42
    s_add_u32 {sOUT}, {sOUT}, {WS_O}
    s_lshl_b32 {sKV}, {sH}, 13
    s_add_u32 {sKV}, {sKV}, {WS_K}
    s_mov_b32 {sC}, {f2u(128 ** -0.5 * math.log2(math.e))}
    s_lshl_b32 s42, {sT0}, 4
    v_add_u32 v20, s42, v20
    v_lshrrev_b32 v22, 1, v21
    v_and_b32 v23, 1, v21
    v_lshlrev_b32 v23, 2, v23
    v_lshl_add_u32 v22, v22, 4, v23
    v_mov_b32 v24, {f2u(-1e30)}''')
    for kt in range(2):
        for r in range(4):
            e(f'v_add_u32 v23, {8*kt+r}, v22\nv_cmp_gt_u32 vcc, v23, v20\nv_cndmask_b32 v{BIAS+4*kt+r}, 0, v24, vcc')
    e(f'''v_lshlrev_b32 v{vFL}, 13, v1
    s_lshl_b32 s43, {sH}, 8
    s_add_u32 s43, s43, {F_K}''')
    for i in range(4): e(f'v_mov_b32 v{ONE+i}, 0x3f803f80\nv_mov_b32 v{VM+2*i+1}, 0')
    e(f'v_mov_b32 v{PM+1}, 0\ns_mov_b32 s44, 0')
    LF = LQ + 8192
    M, M2 = FR, FR+1
    LK = LF + 256
    def fetch():
        ld = [f's_add_u32 m0, s47, {LK + 16384}\ns_add_u32 s45, {sKM}, s47\nbuffer_load_dwordx4 v{vA16}, {WS}, s45 offen sc1 lds']
        for kk in range(2): ld.append(f'buffer_load_dwordx2 {vr(T+2*kk,2)}, v{vVM}, {WS}, {sVM} offen offset:{512*kk} sc1')
        ld.append(f's_add_u32 m0, s48, {LK}\ns_sub_u32 s45, {sKV}, {1024-128}\nbuffer_load_dwordx4 v{vK}, {WS}, {sKV} offen sc1 lds')
        ld.append(f'buffer_load_dwordx4 v{vK}, {WS}, s45 offen offset:1024 sc1 lds')
        ld.append(f's_add_u32 s45, {sKV}, {WS_V - WS_K - 2048}\nbuffer_load_dwordx4 v{vV}, {WS}, s45 offen offset:2048 sc1 lds')
        ld.append(f's_add_u32 s45, {sKV}, {WS_V - WS_K - 3072 + 256}\nbuffer_load_dwordx4 v{vV}, {WS}, s45 offen offset:3072 sc1 lds')
        return ld
    def qout(young):
        for i in range(8): e(f'v_cvt_pk_bf16_f32 v{FR+i}, v{ACC+2*i}, v{ACC+2*i+1}')
        e(f"""ds_write_b128 v{vQw}, {vr(FR,4)}
        ds_write_b128 v{vQw}, {vr(FR+4,4)} offset:1024
        s_waitcnt vmcnt({young}) lgkmcnt(0)
        s_barrier""")
    qrd = [f'ds_read_b128 {vr(Q+4*kap,4)}, v{vQr} offset:{2048*kap}' for kap in range(4)]
    def attend(last):
        for kap in range(4):
            for kt in range(2): e(f'ds_read_b128 {vr(KX+8*kap+4*kt,4)}, v{vKr} offset:{4096*kap + 1024*kt}')
            e(f'ds_read_b128 {vr(KM+4*kap,4)}, v{vKr} offset:{16384 + 1024*kap}')
        for kap in range(4):
            for kt in range(2):
                e(f'@wl\nv_mfma_f32_16x16x32_bf16 {vr(S+4*kt,4)}, {vr(KX+8*kap+4*kt,4)}, {vr(Q+4*kap,4)}, {vr(BIAS+4*kt,4) if kap == 0 else vr(S+4*kt,4)}')
            e(f'@wl\nv_mfma_f32_16x16x32_bf16 {vr(S+8,4)}, {vr(KM+4*kap,4)}, {vr(Q+4*kap,4)}, {"0" if kap == 0 else vr(S+8,4)}')
            e(f'v_mov_b32 v{VM+2*kap}, v{T+kap}')
        for i in range(4): e(f'ds_read_b128 {vr(VX+4*i,4)}, v{vVr} offset:{4096*(i//2) + 2048 + 1024*(i%2)}')
        e(f"""s_add_u32 {sKV}, {sKV}, {32*8192}
        s_add_u32 {sKM}, {sKM}, {32*4096}
        s_add_u32 {sVM}, {sVM}, {32*2048}""")
        if not last: e(J(qrd)); pt(4)
        e(f"""v_max3_f32 v{M}, v{S}, v{S+1}, v{S+2}
        v_max3_f32 v{M}, v{M}, v{S+3}, v{S+4}
        v_max3_f32 v{M}, v{M}, v{S+5}, v{S+6}
        v_max3_f32 v{M}, v{M}, v{S+7}, v{S+10}
        v_max_f32 v{M2}, v{M}, v{S+11}
        v_max_f32 v{M}, v{M}, v{S+11}
        v_permlane16_swap_b32 v{M}, v{M2}
        v_max_f32 v{M2+1}, v{M}, v{M2}
        v_max_f32 v{M}, v{M}, v{M2}
        v_permlane32_swap_b32 v{M}, v{M2+1}
        v_max_f32 v{M}, v{M}, v{M2+1}
        v_mul_f32 v{M}, {sC}, v{M}""")
        sv = [S+i for i in range(8)] + [S+10, S+11]
        for x in sv: e(f'v_fma_f32 v{x}, v{x}, {sC}, -v{M}')
        for x in sv: e(f'v_exp_f32 v{x}, v{x}')
        for i in range(4): e(f'v_cvt_pk_bf16_f32 v{PX+i}, v{S+2*i}, v{S+2*i+1}')
        e(f"""v_cvt_pk_bf16_f32 v{PM}, v{S+10}, v{S+11}
        v_mfma_f32_16x16x32_bf16 {vr(SUM,4)}, {vr(ONE,4)}, {vr(PX,4)}, 0""")
        for i in range(4): e(f'@wl\nv_mfma_f32_16x16x32_bf16 {vr(O+4*i,4)}, {vr(VX+4*i,4)}, {vr(PX,4)}, 0')
        e(f'v_mfma_f32_16x16x16_bf16 {vr(SUM,4)}, {vr(ONE,2)}, {vr(PM,2)}, {vr(SUM,4)}')
        for i in range(4): e(f'v_mfma_f32_16x16x16_bf16 {vr(O+4*i,4)}, {vr(VM+2*i,2)}, {vr(PM,2)}, {vr(O+4*i,4)}')
        if not last: pt(5)
        if not last:
            W = e.lab('qaw')
            e(f"""s_cmp_lg_u32 {sW}, 0
            s_cbranch_scc1 {W}
            s_waitcnt vmcnt(1)
            ds_write_b32 v{vLF}, v{vF}
            {W}:""")
        if not last: pt(6)
        e(f'v_rcp_f32 v{M}, v{SUM}')
        for i in range(8): e(f'v_pk_mul_f32 {vr(O+2*i,2)}, {vr(O+2*i,2)}, {vr(M,2)} op_sel_hi:[1,0]')
        for i in range(8): e(f'v_cvt_pk_bf16_f32 v{OP+i}, v{O+2*i}, v{O+2*i+1}')
        e(f"""buffer_store_dwordx4 {vr(OP,4)}, v{vA16}, {WS}, {sOUT} offen sc1
        buffer_store_dwordx4 {vr(OP+4,4)}, v{vA16}, {WS}, {sOUT} offen offset:1024 sc1
        s_add_u32 {sOUT}, {sOUT}, {2*32*4096}""")
    e(f"""v_lshlrev_b32 v{vLF}, 2, v1
    v_add_u32 v{vLF}, {LF}, v{vLF}
    v_mov_b32 v{vF}, 0
    ds_write_b32 v{vLF}, v{vF}
    s_waitcnt vmcnt(10)
    s_barrier""")
    gemm(e, 'q', ACC, FR, h_dma(), 3)
    qout(10)
    e(J(qrd))
    L = e.lab('qa'); G = e.lab('qag'); N = e.lab('qan'); N2 = e.lab('qan2'); Z = e.lab('qaz')
    e(f'{L}:'); pt(0)
    e(f"""s_waitcnt lgkmcnt(0)
    s_barrier
    ds_read_b32 v{vF}, v{vLF}
    s_add_u32 {sN}, {sS}, 1
    s_mov_b64 exec, 15
    s_waitcnt lgkmcnt(0)
    v_cmp_gt_u32 vcc, {sN}, v{vF}
    s_mov_b64 exec, -1
    s_cbranch_vccz {G}
    s_waitcnt vmcnt(0)
    s_barrier
    s_cmp_lg_u32 {sW}, 0
    s_cbranch_scc1 {N}""")
    set_flag(e, sFL, sS, vF)
    wait_flags(e, vFL, 's43', 15, sN, vF, sleep=1)
    e(f'{N}:\ns_barrier\n{G}:')
    trace(e, 192, vF, sS)
    pt(1)
    e(f's_cmp_eq_u32 {sS}, 63\ns_cbranch_scc1 {Z}')
    gemm(e, 'q', ACC, FR, fetch() + h_dma(), 2)
    pt(2)
    qout(10)
    pt(3)
    e(f"""s_cmp_lg_u32 {sW}, 0
    s_cbranch_scc1 {N2}
    s_mov_b64 exec, 15
    buffer_load_dword v{vF}, v{vFL}, {WS}, s43 offen sc1""")
    trace(e, 64, M, sS)
    set_flag(e, sFL, sS, M)
    e(f'{N2}:')
    attend(False)
    pt(7)
    if cfg.get('qprof'):
        X = e.lab('tp')
        e(f's_cmp_lg_u32 {sS}, {cfg["qprof"]}\ns_cbranch_scc1 {X}\ns_waitcnt lgkmcnt(0)')
        for i in range(16): e(f'v_mov_b32 v{220+i}, s{64+2*i}')
        e(f's_lshl_b32 {sT0}, {sH}, 2\ns_add_u32 {sT0}, {sT0}, {sW}\ns_lshl_b32 {sT0}, {sT0}, 6\ns_add_u32 {sT0}, {sT0}, {WS_DBG}\ns_mov_b64 exec, 1')
        for j in range(4): e(f'buffer_store_dwordx4 {vr(220+4*j,4)}, off, {WS}, {sT0} offset:{16*j}')
        e(f's_mov_b64 exec, -1\n{X}:')
    e(f's_mov_b32 {sS}, {sN}\ns_branch {L}\n{Z}:')
    e(J(fetch()))
    e('s_waitcnt vmcnt(0) lgkmcnt(0)\ns_barrier')
    attend(True)
    e(f's_waitcnt vmcnt(0)\ns_barrier\ns_cmp_lg_u32 {sW}, 0\ns_cbranch_scc1 L_exit')
    set_flag(e, sFL, 64, vF)
    trace(e, 4, vF)
    e('s_branch L_exit')
```

```python
from common import *

def f2u(x): return struct.unpack('<I', struct.pack('<f', x))[0]
SCALE_LOG2E = f2u(128 ** -0.5 * math.log2(math.e))

WS = 's[4:7]'
sH, sW, sA = 's25', 's26', 's27'
sSTEP, sUNIT, sNEAR, sSPIN = 's28', 's29', 's30', 's31'
sMP, sPubS, sPubF, sRstS, sRstF = 's32', 's33', 's34', 's35', 's36'
sVXst, sVXld, sTAG = 's37', 's38', 's39'
sPst, sPld, sPrst = 's40', 's41', 's42'
sK, sV, sKM = 's43', 's44', 's45'
sC = 's46'
sMPc, sSc, sFc, sVXo, sVXp, sPc = 's47', 's48', 's49', 's50', 's51', 's52'
sT0, sT1, sT2, sT3 = 's53', 's54', 's55', 's56'
sEB0 = 's[58:59]'
sEPUB = 's[60:61]'
sEKM = 's[12:13]'; sEVM = 's[14:15]'; sVM = 's16'; sPro = 's17'; sPro2 = 's18'; sPrst2 = 's19'; sV2 = 's20'; sEX = 's[62:63]'; sSEEN = 's22'; sFK = 's23'; sFR = 's2'; sK2 = 's21'; sXo = 's57'; sXd = 's35'; sFP = 's[10:11]'; sSN = 's[8:9]'

L_MEM, L_SX, L_SM, L_O, L_SEL, L_KV = 0, 10240, 14336, 15360, 17408, 18432

vIDX = 1; vID = 2
vA16, vM16, vM4, vMrd, vMrd4, vPerm, vSwr, vSwr2, vOwr, vPst4, vPst1, vPub, vKld, vVld, vStg, vStg2 = range(4, 20)
vT = 20
vPL = 22
vVrd = 0
vA = 32
vACC = 52
vKX = 76; vVX = 84; vREM = 92
vSTG = 96

def vr(b, n=1): return f'v{b}' if n == 1 else f'v[{b}:{b+n-1}]'

def srd(e, s, name):
    e(f's_load_dwordx2 s[{s}:{s+1}], s[0:1], {KA[name]}')
def srd_fin(e, s, name):
    e(f's_mov_b32 s{s+2}, {SZ[name]}\ns_mov_b32 s{s+3}, 0x20000')

def interleave(e, mf, fill, per=1, start=0):
    fill = list(fill)
    for i, m in enumerate(mf):
        e(m)
        if i >= start:
            for _ in range(per):
                if fill: e(fill.pop(0))
    for f in fill: e(f)

class RCfg:
    fast = 1; stamps = 0; nsteps = 64; standalone = 1; near = -1; cap = 40
    d1 = 100; d2 = 120; gap = 120; gapA = 140; KA = 2; rmode = 2; rp = 24; vl = 51; vchk = 2; vd = 30; smax = 1; prp = 33
    nokv = 0; nokm = 0

def tiles_plan():
    lds = [('q','L',0), ('k','L',0), ('q','R',0), ('k','R',0), ('o','',3), ('o','',4)]
    allt = [(m,'L',c) for c in range(5) for m in 'vqk'] + [(m,'R',c) for c in range(5) for m in 'qk'] + [('o','',t) for t in range(5)]
    reg = [t for t in allt if t not in lds]
    loc = {}
    for i, t in enumerate(reg):
        loc[t] = ('a', 16*i) if i < 16 else ('v', 128 + 16*(i-16))
    order = reg + lds
    slot = {t: n % 10 for n, t in enumerate(order)}
    for i, t in enumerate(lds): loc[t] = ('v', vSTG + 16*(i % 2))
    return order, loc, slot, lds

def gen_R(e, cfg):
    order, loc, slot, lds = tiles_plan()
    def W(t, j):
        k, b = loc[t]; return f'{k}[{b+8*j}:{b+8*j+7}]'
    def stamp(i):
        if cfg.stamps == 1: e(f's_memtime s[{64+2*i}:{65+2*i}]')
        e(f'; MARK {i}')
    def mk(i):
        if cfg.stamps == 4: e(f's_memtime s[{64+2*i}:{65+2*i}]')
    def nops(c):
        n = c // 4
        while n > 0:
            k = min(n, 16); e(f's_nop {k-1}'); n -= k
    srd(e, 8, 'wq'); srd(e, 12, 'wk'); srd(e, 16, 'wv'); srd(e, 20, 'wo')
    e(f'''
    v_and_b32 v0, 63, v0
    v_and_b32 v40, 15, v0            ; rho
    v_lshrrev_b32 v41, 4, v0         ; g
    v_lshlrev_b32 {vr(vA16)}, 4, v0
    s_waitcnt lgkmcnt(0)''')
    srd_fin(e, 8, 'wq'); srd_fin(e, 12, 'wk'); srd_fin(e, 16, 'wv'); srd_fin(e, 20, 'wo')
    e(f'''
    v_and_b32 v42, 1, v41
    v_lshrrev_b32 v43, 1, v41        ; rr>>1
    s_lshr_b32 {sT0}, {sW}, 1
    s_and_b32 {sT1}, {sW}, 1
    v_lshlrev_b32 v44, 2, v41
    v_xor_b32 v44, v44, v40
    v_lshlrev_b32 v44, 4, v44
    s_lshl_b32 {sT2}, {sH}, 8
    v_add_u32 v44, {sT2}, v44
    v_lshlrev_b32 v45, 6, v42
    v_lshl_add_u32 v45, v43, 1, v45
    s_lshl_b32 {sT2}, {sT0}, 2
    s_add_u32 {sT2}, {sT2}, {sT1}
    v_add_u32 v45, {sT2}, v45
    v_lshl_add_u32 v60, v45, 13, v44
    v_lshl_add_u32 v45, v43, 3, v42
    s_lshl_b32 {sT2}, {sT0}, 4
    s_lshl_b32 {sT3}, {sT1}, 2
    s_add_u32 {sT2}, {sT2}, {sT3}
    v_add_u32 v45, {sT2}, v45
    v_lshl_add_u32 v61, v45, 13, v44
    v_bfe_u32 v45, v0, 3, 1
    v_bfe_u32 v46, v0, 4, 1
    v_lshl_add_u32 v45, v46, 3, v45
    v_lshrrev_b32 v46, 5, v0
    v_lshl_add_u32 v45, v46, 2, v45
    s_lshl_b32 {sT2}, {sT0}, 6
    s_lshl_b32 {sT3}, {sT1}, 4
    s_add_u32 {sT2}, {sT2}, {sT3}
    v_add_u32 v45, {sT2}, v45
    v_mul_u32_u24 v45, 1280, v45
    v_and_b32 v46, 7, v0
    v_lshlrev_b32 v47, 1, v41
    v_xor_b32 v46, v46, v47
    v_lshl_add_u32 v45, v46, 4, v45
    s_mul_i32 {sT2}, {sH}, 163840
    s_mul_i32 {sT3}, {sA}, 640
    s_add_u32 {sT2}, {sT2}, {sT3}
    v_add_u32 v62, {sT2}, v45
    v_bfe_u32 v45, v0, 2, 2          ; rr
    v_and_b32 v46, 3, v0             ; cc
    v_xor_b32 v47, {sW}, v45
    v_lshl_add_u32 v47, v47, 2, v46
    v_lshlrev_b32 v47, 4, v47
    v_lshl_add_u32 v47, v45, 8, v47
    v_lshl_add_u32 v63, v41, 12, v47
    v_lshl_add_u32 v47, v42, 2, v45  ; (gB&1)*4+rr
    v_lshrrev_b32 v48, 1, v47
    v_xor_b32 v48, {sW}, v48
    v_lshlrev_b32 v48, 5, v48
    v_lshl_add_u32 v48, v46, 3, v48
    v_lshl_add_u32 v48, v47, 7, v48
    v_lshl_add_u32 v64, v43, 12, v48
    s_mul_i32 s57, {sA}, {320*8192}
    s_sub_u32 s62, {320*8192}, s57
    s_lshl_b32 s63, {sW}, 12
    v_add_u32 {vr(vStg)}, s63, {vr(vA16)}''')
    def dma(n):
        m, side, c = order[n]
        e(f's_add_u32 m0, s63, {slot[order[n]]*16384}')
        for t4 in range(4):
            if m == 'o':
                so = (32*(t4 >> 1) + 2*(t4 & 1))*1280 - 1024*t4 + 128*c
                e(f's_mov_b32 {sT0}, {so}')
                e(f'buffer_load_dwordx4 v62, s[20:23], {sT0} offen offset:{1024*t4} lds')
            else:
                rows = (16*c + 128*(t4 & 1) + 8*(t4 >> 1)) if c < 4 else (256 + 32*(t4 >> 1) + 2*(t4 & 1))
                so = rows*8192 - 1024*t4
                e(f's_add_u32 {sT0}, {"s57" if side == "L" else "s62"}, {so}')
                s = dict(q=8, k=12, v=16)[m]
                e(f'buffer_load_dwordx4 {"v60" if c < 4 else "v61"}, s[{s}:{s+3}], {sT0} offen offset:{1024*t4} lds')
    e(f'''    ; reducer unit
    s_mov_b32 {sUNIT}, -1
    s_cmp_eq_u32 {sW}, 0
    s_cselect_b32 {sUNIT}, {sH}, {sUNIT}
    s_and_b32 {sT0}, {sH}, 3
    s_lshl_b32 {sT0}, {sT0}, 2
    s_or_b32 {sT0}, {sT0}, {sW}
    s_lshr_b32 {sT1}, {sH}, 2
    s_add_u32 {sT1}, {sT1}, 32
    s_cmp_eq_u32 {sT0}, 1
    s_cselect_b32 {sUNIT}, {sT1}, {sUNIT}
    s_cmp_lt_i32 {sUNIT}, 0
    s_cselect_b32 {sT0}, {sH}, {sUNIT}
    s_lshl_b32 {sT0}, {sT0}, 7
    v_and_b32 v54, 7, v0
    v_lshlrev_b32 v55, 3, v54
    v_lshl_add_u32 v55, v42, 6, v55
    v_add_u32 {vr(vPub)}, {sT0}, v55
    s_mov_b32 s60, 0x00ff00ff
    s_mov_b32 s61, 0
    s_lshl_b32 {sT0}, {sA}, 5
    s_add_u32 {sT0}, {sT0}, {sH}
    s_lshl_b32 {sT0}, {sT0}, 8
    s_add_u32 {sFR}, {sT0}, {F_R}''')
    for n in range(10): dma(n)
    e(f'''
    v_bfe_u32 v45, v0, 1, 1          ; b
    v_and_b32 v46, 1, v0             ; i&1
    v_lshrrev_b32 v47, 2, v40        ; i>>1
    v_lshl_add_u32 v48, v47, 1, v46  ; i
    v_mov_b32 {vr(vIDX)}, 0x4444
    v_mov_b32 v49, 0xeeee
    v_cmp_eq_u32 vcc, 1, v45
    v_cndmask_b32 {vr(vIDX)}, {vr(vIDX)}, v49, vcc
    v_lshlrev_b32 v49, 4, v48
    v_lshl_add_u32 v50, v45, 7, v49
    v_lshl_add_u32 {vr(vPerm)}, v41, 8, v50
    s_lshl_b32 {sT0}, {sW}, 10
    v_add_u32 {vr(vSwr)}, {sT0}, {vr(vPerm)}
    s_lshl_b32 {sT0}, {sW}, 2
    s_add_u32 {sT0}, {sT0}, {L_SM}
    v_add_u32 {vr(vSwr2)}, {sT0}, {vr(vPerm)}
    v_lshl_add_u32 v50, v41, 7, v49
    s_lshl_b32 {sT0}, {sW}, 9
    v_add_u32 {vr(vOwr)}, {sT0}, v50
    v_lshlrev_b32 v50, 4, v45
    v_lshl_add_u32 v50, v46, 6, v50
    v_lshl_add_u32 v51, v42, 5, v50
    v_lshl_add_u32 v51, v47, 7, v51
    v_lshl_add_u32 {vr(vMrd)}, v43, 9, v51
    v_and_b32 v51, 1, v47
    v_lshl_add_u32 v51, v51, 5, v50
    v_lshrrev_b32 v52, 1, v47
    v_lshl_add_u32 v51, v52, 7, v51
    v_lshl_add_u32 {vr(vMrd4)}, v41, 8, v51
    s_mul_i32 {sT0}, {sW}, 1280
    v_add_u32 {vr(vM16)}, {sT0}, {vr(vA16)}
    s_add_u32 {sT0}, {sT0}, 1024
    v_lshlrev_b32 v51, 2, v0
    v_add_u32 {vr(vM4)}, {sT0}, v51
    v_lshl_add_u32 v51, v52, 2, v41
    s_lshl_b32 {sT0}, {sW}, 3
    v_add_u32 v51, {sT0}, v51
    v_and_b32 v53, 7, v0
    v_lshlrev_b32 v54, 4, v53
    v_lshl_add_u32 v51, v51, 12, v54
    s_lshl_b32 {sT1}, {sH}, 7
    v_add_u32 {vr(vPst4)}, {sT1}, v51
    s_lshl_b32 {sT0}, {sW}, 1
    s_add_u32 {sT0}, {sT0}, 32
    v_add_u32 v51, {sT0}, v43
    v_and_b32 v55, 31, v0
    v_lshlrev_b32 v55, 2, v55
    v_lshl_add_u32 v51, v51, 12, v55
    v_add_u32 {vr(vPst1)}, {sT1}, v51
    s_lshl_b32 {sT0}, {sW}, 11
    v_lshl_add_u32 v51, v41, 9, {sT0}
    v_lshl_add_u32 {vr(vVld)}, v40, 4, v51
    v_lshl_add_u32 v51, v52, 8, v51
    v_add_u32 {vr(vKld)}, v51, v54
    v_mov_b32 v55, 0x3f80
    v_lshlrev_b32 v56, 4, v46
    v_lshlrev_b32 v55, v56, v55
    v_cmp_eq_u32 vcc, v47, v41
    v_cndmask_b32 v55, 0, v55, vcc
    v_cmp_eq_u32 vcc, 0, v45
    v_cndmask_b32 {vr(vID)}, 0, v55, vcc
    v_cndmask_b32 {vr(vID+1)}, v55, 0, vcc
    v_mov_b32 v65, 0x3f80
    v_bfe_u32 v66, v0, 2, 1
    v_lshlrev_b32 v66, 4, v66
    v_lshlrev_b32 v65, v66, v65
    v_cmp_gt_u32 vcc, 8, v40
    v_cndmask_b32 v65, 0, v65, vcc
    v_and_b32 v66, 3, v0''')
    for j in range(4):
        e(f'v_cmp_eq_u32 vcc, {j}, v66\nv_cndmask_b32 v{56+j}, 0, v65, vcc')
    e(f'''
    s_mov_b32 s58, 0x33333333
    s_mov_b32 s59, 0x33333333
    s_mov_b32 {sC}, {SCALE_LOG2E}
    v_add_u32 {vr(vStg2)}, 0x10000, {vr(vStg)}''')
    def wb(t):
        base = slot[t]*16384; k, b = loc[t]
        e(f'v_add_u32 v66, {base}, {vr(vStg)}')
        for j in range(4): e(f'ds_write_b128 v66, {k}[{b+4*j}:{b+4*j+3}] offset:{1024*j}')
    last = 9
    for n in range(30):
        t = order[n]
        e(f's_waitcnt vmcnt({4*(last-n)})\ns_barrier')
        if n == 10 and not cfg.standalone: claim_check(e)
        if n >= 1 and n+9 < 30: dma(n+9); last = n+9
        if n >= 1 and order[n-1] in lds: wb(order[n-1])
        k, b = loc[t]
        e(f'v_add_u32 v65, {slot[t]*16384}, {"v64" if t[0] == "o" else "v63"}')
        for j in range(2):
            for t4 in range(4):
                off = 1024*t4 + (8192*j if t[0] == 'o' else 8*j)
                e(f'ds_read_b64_tr_b16 {k}[{b+8*j+2*t4}:{b+8*j+2*t4+1}], v65 offset:{off}')
        e('s_waitcnt lgkmcnt(0)')
        if n == 9 and not cfg.standalone: claim_issue(e)
    e('s_barrier')
    wb(order[29])
    e(f'ds_write_b128 {vr(vA16)}, v[56:59] offset:{L_SEL}')
    e(f'v_add_u32 {vr(vStg)}, {4*16384}, {vr(vStg)}\nv_add_u32 {vr(vStg2)}, {4*16384}, {vr(vStg2)}')
    def stage(i):
        out = []
        for t in lds[2*i:2*i+2]:
            o = (slot[t]-4)*16384; k, b = loc[t]
            for j in range(4):
                oo = o + 1024*j
                out.append(f'ds_read_b128 v[{b+4*j}:{b+4*j+3}], {vr(vStg if oo < 65536 else vStg2)} offset:{oo % 65536}')
        return out
    def body(fast):
        sc = '' if fast else ' sc1'
        e(f'''
        s_lshl_b32 {sT0}, {sA}, 14
        s_add_u32 {sSc}, {sT0}, {sNEAR}
        s_add_u32 {sSc}, {sSc}, {WS_M}''')
        if fast: e(f's_xor_b32 {sFc}, {sSc}, 8192')
        else: e(f's_mov_b32 {sFc}, {sSc}')
        e(f'''
        s_xor_b32 {sMPc}, {sSc}, 16384
        s_lshr_b32 {sT0}, {sH}, 1
        s_lshl_b32 {sT0}, {sT0}, 14
        s_and_b32 {sT1}, {sH}, 1
        s_lshl_b32 {sT1}, {sT1}, 12
        s_add_u32 {sT0}, {sT0}, {sT1}
        s_lshl_b32 {sT1}, {sW}, 10
        s_add_u32 {sT0}, {sT0}, {sT1}
        s_lshl_b32 {sT1}, {sA}, 18
        s_add_u32 {sT0}, {sT0}, {sT1}
        s_add_u32 {sT0}, {sT0}, {sNEAR}
        s_add_u32 {sVXo}, {sT0}, {WS_VX}
        s_xor_b32 {sVXp}, {sVXo}, {1 << 18}
        s_mul_i32 {sT0}, {sA}, 655360
        s_add_u32 {sPc}, {sT0}, {WS_P}
        s_lshl_b32 {sT0}, {sH}, 13
        s_add_u32 {sK}, {sT0}, {WS_K}
        s_add_u32 {sV}, {sT0}, {WS_V}
        s_lshl_b32 {sT0}, {sH}, 12
        s_lshl_b32 {sT1}, {sW}, 10
        s_add_u32 {sT0}, {sT0}, {sT1}
        s_add_u32 {sT1}, {sT0}, {WS_KM}
        s_lshr_b32 {sT0}, {sT0}, 1
        s_add_u32 {sT0}, {sT0}, {WS_VM}
        s_mov_b32 {sKM}, {sT1}
        s_mov_b32 {sVM}, {sT0}
        s_cmp_eq_u32 {sA}, 0
        s_cselect_b32 s14, -1, 0
        s_cselect_b32 s15, 0, -1
        s_and_b32 s12, s14, 0xcccccccc
        s_and_b32 s13, s15, 0xcccccccc
        s_lshl_b32 {sT0}, {sH}, 12
        s_lshl_b32 {sT1}, {sW}, 10
        s_add_u32 {sPro}, {sT0}, {sT1}
        s_lshl_b32 {sT0}, {sH}, 10
        s_lshl_b32 {sT1}, {sW}, 8
        s_add_u32 {sT0}, {sT0}, {sT1}
        s_add_u32 {sPro2}, {sT0}, {32*4096}
        s_add_u32 {sPst}, {sPc}, {3*163840}
        s_mov_b32 {sSTEP}, 0''')
        def step_scalars():
            return f'''s_add_u32 {sPrst}, {sPst}, {sPro}
        s_add_u32 {sPrst2}, {sPst}, {sPro2}
        s_and_b32 {sT0}, {sSTEP}, 3
        s_mul_i32 {sT1}, {sT0}, 163840
        s_add_u32 {sPst}, {sPc}, {sT1}
        s_lshl_b32 {sT0}, {sT0}, 15
        s_add_u32 {sMP}, {sMPc}, {sT0}
        s_add_u32 {sPubS}, {sSc}, {sT0}
        s_add_u32 {sPubF}, {sFc}, {sT0}
        s_xor_b32 {sT1}, {sT0}, {2 << 15}
        s_add_u32 {sRstF}, {sFc}, {sT1}
        s_add_u32 {sT1}, {sT0}, {3 << 15}
        s_and_b32 {sT1}, {sT1}, {3 << 15}
        s_add_u32 {sT1}, {sSc}, {sT1}
        s_cmp_lt_i32 {sUNIT}, 0
        s_cselect_b32 {sXo}, {sFR}, {sT1}
        s_cselect_b32 {sXd}, {sSTEP}, -1
        s_and_b32 {sT0}, {sSTEP}, 1
        s_lshl_b32 {sT1}, {sT0}, 19
        s_add_u32 {sVXst}, {sVXo}, {sT1}
        s_add_u32 {sVXld}, {sVXp}, {sT1}
        s_bfe_u32 {sTAG}, {sSTEP}, 0x10001'''.split('\n')
        vdma = [f'buffer_load_dwordx4 {vr(vVld)}, {WS}, {sV} offen sc1 lds',
                f'buffer_load_dwordx4 {vr(vVld)}, {WS}, {sV2} offen offset:1024 sc1 lds']
        kdma = [f'buffer_load_dwordx4 {vr(vKld)}, {WS}, {sK} offen offset:2048 sc1 lds',
                f'buffer_load_dwordx4 {vr(vKld)}, {WS}, {sK2} offen offset:3072 sc1 lds']
        e(f'''s_lshl_b32 {sT0}, {sW}, 12
        s_add_u32 m0, {sT0}, {L_KV}
        v_add_u32 {vr(vVrd)}, {sT0}, {vr(vA16)}
        s_sub_u32 {sV2}, {sV}, 768
        s_sub_u32 {sK2}, {sK}, {3072-128}
        s_sub_u32 {sK}, {sK}, 2048''')
        def kvwait(target):
            e(f'v_lshlrev_b32 v{vT}, 9, {vr(vA16)}')
            wait_flags(e, vT, sFK, 3, target, vT + 1, sleep=1)
            e(f'v_readlane_b32 {sSEEN}, v{vT+1}, 0\nv_readlane_b32 {sT3}, v{vT+1}, 1\ns_min_u32 {sSEEN}, {sSEEN}, {sT3}')
            e(f's_cmp_eq_u32 {sSEEN}, 64\ns_cselect_b32 {sSEEN}, 66, {sSEEN}\ns_sub_u32 {sSEEN}, {sSEEN}, 1')
        if not cfg.standalone:
            e(f's_lshl_b32 {sFK}, {sH}, 8\ns_add_u32 {sFK}, {sFK}, {F_K}')
            kvwait(1)
            trace(e, 3, 66)
        for l in kdma + vdma: e(l)
        Lnp = e.lab('nopub0'); Lt4 = e.lab('pub0b'); Lgo = e.lab('pub0c')
        srd(e, 8, 'mem0')
        e(f'''
        s_waitcnt lgkmcnt(0)''')
        srd_fin(e, 8, 'mem0')
        e(f'''
        s_cmp_lt_i32 {sUNIT}, 0
        s_cbranch_scc1 {Lnp}
        s_mul_i32 {sT3}, {sA}, 640
        s_cmp_ge_u32 {sUNIT}, 32
        s_cbranch_scc1 {Lt4}
        s_and_b32 {sT0}, {sUNIT}, 3
        s_mul_i32 {sT0}, {sT0}, 2560
        s_lshr_b32 {sT1}, {sUNIT}, 2
        s_lshl_b32 {sT1}, {sT1}, 4
        s_add_u32 {sT0}, {sT0}, {sT1}
        s_add_u32 {sT0}, {sT0}, {sT3}
        v_mul_u32_u24 v44, 1280, v42
        v_lshl_add_u32 v44, v53, 1, v44
        buffer_load_ushort v45, v44, s[8:11], {sT0} offen
        buffer_load_ushort v46, v44, s[8:11], {sT0} offen offset:128
        buffer_load_ushort v47, v44, s[8:11], {sT0} offen offset:256
        buffer_load_ushort v48, v44, s[8:11], {sT0} offen offset:384
        s_waitcnt vmcnt(0)
        v_lshl_or_b32 v46, v46, 16, v45
        v_lshl_or_b32 v47, v48, 16, v47
        s_branch {Lgo}
        {Lt4}:
        s_and_b32 {sT0}, {sUNIT}, 1
        s_mul_i32 {sT0}, {sT0}, 5120
        s_sub_u32 {sT1}, {sUNIT}, 32
        s_lshr_b32 {sT1}, {sT1}, 1
        s_lshl_b32 {sT1}, {sT1}, 5
        s_add_u32 {sT0}, {sT0}, {sT1}
        s_add_u32 {sT0}, {sT0}, {sT3}
        s_add_u32 {sT0}, {sT0}, 512
        v_lshrrev_b32 v44, 2, v53
        v_lshl_add_u32 v44, v44, 1, v42
        v_mul_u32_u24 v44, 1280, v44
        v_and_b32 v45, 3, v53
        v_lshl_add_u32 v44, v45, 3, v44
        buffer_load_dwordx2 v[46:47], v44, s[8:11], {sT0} offen
        s_waitcnt vmcnt(0)
        {Lgo}:
        v_min_u32 v46, -2, v46
        v_min_u32 v47, -2, v47
        s_mov_b64 exec, {sEPUB}
        buffer_store_dwordx2 v[46:47], {vr(vPub)}, {WS}, {sSc} offen sc1''')
        if fast: e(f'buffer_store_dwordx2 v[46:47], {vr(vPub)}, {WS}, {sFc} offen')
        e(f's_mov_b64 exec, -1\n{Lnp}:')
        e('s_waitcnt lgkmcnt(0)\ns_barrier')
        if cfg.stamps:
            for i in range(84, 100): e(f's_mov_b32 s{i}, 0')
            e('s_memtime s[82:83]\ns_memtime s[64:65]\ns_memtime s[66:67]')

        Ldone = e.lab('rdone'); Labort = 'L_exit'
        q0, q1, k0, k1, v0, v1 = (vACC + 4*i for i in range(6))
        M = vT; M2 = vT + 1
        e(f"""s_cmp_eq_u32 {sW}, 3
        s_cselect_b32 {sT0}, {sFR}, {WS_BYTES}
        s_mov_b32 {sFR}, {sT0 if not cfg.standalone else WS_BYTES}
        s_cmp_lt_i32 {sUNIT}, 0
        s_cselect_b32 s62, 1, s60
        s_mov_b32 s63, 0
        s_cselect_b64 vcc, -1, 0
        v_cndmask_b32 {vr(vPub)}, {vr(vPub)}, 0, vcc""")
        if not cfg.standalone: e(f's_add_u32 s10, s4, {sFK}\ns_addc_u32 s11, s5, 0\ns_mov_b64 {sSN}, 0')
        def mloads(rem, st=None):
            st = rem if st is None else st
            p = vPL + 6*st; so = sMP if rem else sPubF
            return [f'buffer_load_dwordx4 {vr(p,4)}, {vr(vM16)}, {WS}, {so} offen sc1',
                    f'buffer_load_dword {vr(vPL+4+st)}, {vr(vM4)}, {WS}, {so} offen sc1']
        def dump():
            e(f"""s_lshl_b32 {sT0}, {sA}, 5
            s_add_u32 {sT0}, {sT0}, {sH}
            s_lshl_b32 {sT0}, {sT0}, 2
            s_add_u32 {sT0}, {sT0}, {sW}
            s_lshl_b32 {sT0}, {sT0}, 6
            s_add_u32 {sT0}, {sT0}, {WS_DBG}""")
            for i in range(16): e(f'v_mov_b32 v{vA+4+i}, s{84+i if cfg.stamps < 3 else 64+2*i}')
            e('s_mov_b64 exec, 1')
            for j in range(4): e(f'buffer_store_dwordx4 {vr(vA+4+4*j,4)}, {vr(vA16)}, {WS}, {sT0} offen offset:{16*j}')
        tail = []
        def retry(R, body, L, cnt):
            tail.append(f"""{R}:
            s_sub_u32 {sSPIN}, {sSPIN}, 1
            s_cbranch_scc1 {Labort}
            {f's_add_u32 s{cnt}, s{cnt}, 1' if cfg.stamps in (1,2) else ''}
            {body}
            {f's_branch {L}' if L else ''}""")
        def mchk(rem, st=None):
            st = rem if st is None else st
            p = vPL + 6*st; q = vPL + 4 + st; o = L_MEM + (0 if rem else 5120)
            return [f'ds_write_b128 {vr(vM16)}, {vr(p,4)} offset:{o}',
                    f'ds_write_b32 {vr(vM4)}, {vr(q)} offset:{o}',
                    f'v_max3_u32 v{M}, v{p}, v{p+1}, v{p+2}',
                    f'v_max3_u32 v{M}, v{M}, v{p+3}, v{q}',
                    f'v_cmp_eq_u32 vcc, -1, v{M}']
        def aread(base, c): return f'ds_read_b128 {vr(vA+4*c,4)}, {vr(vMrd if c < 4 else vMrd4)} offset:{base+1024*c}'
        def smf(acc, c, t, j): return f'@wl\nv_smfmac_f32_16x16x64_bf16 {vr(acc,4)}, {vr(vA+4*c,4)}, {W(t,j)}, {vr(vIDX)}'
        def zero(b, n): return [f'v_mov_b64 {vr(b+i,2)}, 0' for i in range(0, n, 2)]
        def em(l):
            for x in l: e(x)
        def paced(l, cyc):
            k = max(0, (cyc // 4 - len(l)) // max(len(l), 1))
            for x in l:
                e(x)
                if k: e(f's_nop {k-1}')
        def m4(i): return f's_memtime s[{64+2*i}:{65+2*i}]' if cfg.stamps == 4 else ''

        Lstep = e.lab('step')
        em(stage(0)); em(step_scalars())
        e(f'{Lstep}:')
        e('; MARK 1')
        z = zero(vACC, 24)
        paced(z[:6], cfg.d2)
        mk(5)
        em(mloads(0))
        paced(z[6:], cfg.gap)
        em(mloads(0, 1))
        Lok = e.lab('lok'); Lre = e.lab('lre')
        e('s_waitcnt vmcnt(2)'); mk(6); em(mchk(0))
        e(f's_waitcnt lgkmcnt(0)\ns_cbranch_vccnz {Lre}\n{Lok}:')
        W0 = 's_waitcnt lgkmcnt(0)'
        retry(Lre, J(mloads(0,0) + ['s_waitcnt vmcnt(2)'] + mchk(0,1) + [W0, f's_cbranch_vccz {Lok}'] + mloads(0,1) + ['s_waitcnt vmcnt(2)'] + mchk(0,0) + [W0, f's_cbranch_vccz {Lok}']), Lre, 96)
        mk(7)
        if cfg.rmode == 0: em(mloads(1))
        e('s_barrier')
        stamp(2); mk(8)
        for c in range(5): e(aread(L_MEM + 5120, c))
        if cfg.rmode == 2: em(mloads(1))
        if not cfg.standalone:
            e(f"""s_min_u32 s8, s8, s9
            s_cmp_eq_u32 s8, 64
            s_cselect_b32 s8, 66, s8
            s_sub_u32 s8, s8, 1
            s_max_i32 {sSEEN}, {sSEEN}, s8""")
        mf = []
        for c in range(5): mf += [smf(v0, c, ('v','L',c), 0), smf(v1, c, ('v','L',c), 1)]
        for c in range(5): mf += [smf(q0,c,('q','L',c),0), smf(k0,c,('k','L',c),0), smf(q1,c,('q','L',c),1), smf(k1,c,('k','L',c),1)]
        for c in range(5): mf += [smf(q0,c,('q','R',c),0), smf(k0,c,('k','R',c),0)]
        for c in range(5): mf += [smf(q1,c,('q','R',c),1), smf(k1,c,('k','R',c),1)]
        slots = [[] for _ in mf]
        def put(i, l, step=1):
            for x in l: slots[i].append(x); i += step
        half = lambda st: [st[i] for i in (0,1,4,5,2,3,6,7)]
        st1 = half(stage(1)); st2 = half(stage(2))
        kvrd = [f'ds_read_b128 {vr(r,4)}, {vr(vVrd)} offset:{L_KV+1024*j}' for j, r in enumerate((vVX, vVX+4, vKX, vKX+4))]
        inc = 0 if cfg.nokv else 32*8192
        put(0, [f's_add_u32 {x}, {x}, {inc}' for x in (sV, sV2, sK, sK2)], 2)
        put(8, kvrd)
        put(12, [f'v_add_f32 v{v0}, v{v0}, v{v0+2}\nv_add_f32 v{v0+1}, v{v0+1}, v{v0+3}', f'v_add_f32 v{v0+2}, v{v1}, v{v1+2}\nv_add_f32 v{v0+3}, v{v1+1}, v{v1+3}'])
        bf = [f'v_bfi_b32 v{v0+j}, 1, {sTAG}, v{v0+j}' for j in range(4)]
        put(14, [J(bf[:2]), J(bf[2:]), f'buffer_store_dwordx4 {vr(v0,4)}, {vr(vA16)}, {WS}, {sVXst} offen sc1'])
        rp = cfg.rp
        n1 = min(8, rp - 17)
        put(17, st1[:n1])
        Rok = e.lab('rok'); Rre = e.lab('rre')
        mc = mchk(1)
        put(rp, [J(['s_waitcnt vmcnt(1)', m4(9), mc[0]]), J(mc[1:3]), J(mc[3:5])])
        bp = rp + 4
        put(bp, [J([W0, f's_cbranch_vccnz {Rre}', f'{Rok}:', 's_barrier', 's_memtime s[70:71]' if cfg.stamps == 1 else m4(10)])])
        retry(Rre, J(mloads(1) + ['s_waitcnt vmcnt(0)'] + mc + [W0, f's_cbranch_vccz {Rok}']), Rre, 97)
        pos = bp
        for c in range(5):
            pos = max(pos, 13 + 4*c)
            put(pos, [aread(L_MEM, c)])
            if pos < 29 and c >= 1: pos += 1
        put(29, st1[n1:], 0)
        Kok = e.lab('kok'); Kre = e.lab('kre')
        if not cfg.standalone:
            put(29, [f's_cmp_le_u32 {sSEEN}, {sSTEP}\ns_cbranch_scc1 {Kre}\n{Kok}:'])
        NEG = vPL + 6
        if cfg.vd < 50: put(cfg.vd, vdma)
        put(30, [f'v_mov_b64 {vr(NEG,2)}, -1', f'v_mov_b64 {vr(NEG+2,2)}, -1', f'v_mov_b32 v{M}, {sXd}', f'v_mov_b32 v{M2}, {sXd}'])
        put(cfg.prp, [f'buffer_store_dwordx4 {vr(NEG,4)}, {vr(vA16)}, {WS}, {sPrst} offen{sc}',
                      f's_mov_b64 exec, 0xffff\nbuffer_store_dwordx4 {vr(NEG,4)}, {vr(vA16)}, {WS}, {sPrst2} offen{sc}\ns_mov_b64 exec, -1',
                      f's_mov_b64 exec, {sEX}\nbuffer_store_dwordx2 {vr(M,2)}, {vr(vPub)}, {WS}, {sXo} offen sc1\ns_mov_b64 exec, -1'], 2)
        put(38, st2[:4])
        X = vA; T = vPL; D0 = vPL + 6; D1 = vA + 4; XA = vA + 12; XB = vA + 16; MK = vT; MK1 = vT + 1
        put(42, [f'v_add_f32 v{q0}, v{q0}, v{q0+2}', f'v_add_f32 v{q0+1}, v{q0+1}, v{q0+3}', f'v_add_f32 v{k0}, v{k0}, v{k0+2}', f'v_add_f32 v{k0+1}, v{k0+1}, v{k0+3}',
                 f'v_cvt_pk_bf16_f32 v{T}, v{q0}, v{q0+1}', f'v_cvt_pk_bf16_f32 v{T+1}, v{k0}, v{k0+1}', f'v_bfe_i32 v{MK1}, {vr(vIDX)}, 1, 1'])
        vld = f'buffer_load_dwordx4 {vr(vREM,4)}, {vr(vA16)}, {WS}, {sVXld} offen sc1'
        if cfg.vl < 50: put(cfg.vl, [vld])
        for m, f in zip(mf, slots):
            e(m); em(f)
        dq = 'quad_perm:[0,1,0,1] row_mask:0xf bank_mask:0xf'
        S0, SM = q0, k0
        PX = vA + 12; PM = vA + 8; VM0 = v1; VM1 = v1 + 2; ONE = vPL; A8 = vA + 10
        kmst = f'buffer_store_dwordx4 {vr(X,4)}, {vr(vA16)}, {WS}, {sKM} offen sc1' if not cfg.nokm else 's_nop 0'
        young = 2 + (2 if cfg.vd >= 50 else 0) + (0 if cfg.nokm else 1)
        e(f"""v_mfma_f32_16x16x16_bf16 {vr(D0,4)}, {vr(T,2)}, {vr(vID,2)}, 0
        {vld if cfg.vl == 50 else ''}
        {J(st2[4:])}
        v_not_b32 v{MK}, v{MK1}
        v_add_f32 v{q1}, v{q1}, v{q1+2}
        v_add_f32 v{q1+1}, v{q1+1}, v{q1+3}
        v_pk_add_f32 {vr(k1,2)}, {vr(k1,2)}, {vr(k1+2,2)}
        v_cvt_pk_bf16_f32 v{T+2}, v{q1}, v{q1+1}
        v_cvt_pk_bf16_f32 v{T+3}, v{k1}, v{k1+1}
        v_cvt_pk_bf16_f32 v{X}, v{D0}, v{D0+1}
        v_cvt_pk_bf16_f32 v{X+1}, v{D0+2}, v{D0+3}
        v_mfma_f32_16x16x16_bf16 {vr(D1,4)}, {vr(T+2,2)}, {vr(vID,2)}, 0
        {vld if cfg.vl == 51 else ''}
        v_and_b32 v{XA}, v{X}, v{MK}
        v_and_b32 v{XA+1}, v{X+1}, v{MK}
        v_and_b32_dpp v{XB}, v{X}, v{MK1} {dq}
        v_and_b32_dpp v{XB+1}, v{X+1}, v{MK1} {dq}
        v_mov_b32 v{PM+1}, 0
        v_mov_b32 v{VM0+1}, 0
        v_mov_b32 v{VM1+1}, 0
        v_cvt_pk_bf16_f32 v{X+2}, v{D1}, v{D1+1}
        v_cvt_pk_bf16_f32 v{X+3}, v{D1+2}, v{D1+3}
        v_and_b32 v{XA+2}, v{X+2}, v{MK}
        v_and_b32 v{XA+3}, v{X+3}, v{MK}
        v_and_b32_dpp v{XB+2}, v{X+2}, v{MK1} {dq}
        v_and_b32_dpp v{XB+3}, v{X+3}, v{MK1} {dq}""")
        stamp(4); mk(11)
        e(f"""v_mfma_f32_16x16x32_bf16 {vr(S0,4)}, {vr(vKX,4)}, {vr(XA,4)}, 0
        {vld if cfg.vl == 52 else 's_nop 0'}
        v_mfma_f32_16x16x32_bf16 {vr(S0,4)}, {vr(vKX+4,4)}, {vr(XB,4)}, {vr(S0,4)}
        v_lshrrev_b32 v{A8}, 1, {vr(vA16)}
        v_mfma_f32_16x16x32_bf16 {vr(SM,4)}, {vr(X,4)}, {vr(X,4)}, 0
        s_mov_b64 exec, {sEKM}
        {kmst}
        s_mov_b64 exec, -1
        v_mov_b32 v{ONE}, 0x3f803f80
        ds_write_b128 {vr(vSwr)}, {vr(S0,4)} offset:{L_SX}
        s_mov_b64 exec, {sEB0}
        ds_write2_b32 {vr(vSwr2)}, v{SM+2}, v{SM+3} offset0:0 offset1:32
        s_mov_b64 exec, -1
        v_mov_b32 v{ONE+1}, 0x3f803f80
        {J(kdma)}
        v_mov_b32 v{ONE+2}, 0x3f803f80
        s_waitcnt lgkmcnt(0)
        s_barrier""")
        stamp(5); mk(12)
        R = [q0, q1, k0, k1]; RM = D1
        Vok = e.lab('vok'); Vre = e.lab('vre')
        C1 = vPL + 4; C2 = vPL + 5
        vchk = [f'v_bitop3_b32 v{C1}, v{vREM}, v{vREM+1}, {sTAG} bitop3:0x7e',
                f'v_bitop3_b32 v{C2}, v{vREM+2}, v{vREM+3}, {sTAG} bitop3:0x7e',
                f'v_bitop3_b32 v{C1}, v{C1}, v{C2}, 1 bitop3:0xa8',
                f'v_cmp_ne_u32 vcc, 0, v{C1}',
                f'v_add_f32 v{vREM}, v{v0}, v{vREM}', f'v_add_f32 v{vREM+1}, v{v0+1}, v{vREM+1}',
                f'v_add_f32 v{vREM+2}, v{v0+2}, v{vREM+2}', f'v_add_f32 v{vREM+3}, v{v0+3}, v{vREM+3}',
                f'v_cvt_pk_bf16_f32 v{VM0}, v{vREM}, v{vREM+1}',
                f'v_cvt_pk_bf16_f32 v{VM1}, v{vREM+2}, v{vREM+3}']
        retry(Vre, J([vld, 's_waitcnt vmcnt(0)'] + vchk + [f's_cbranch_vccz {Vok}']), Vre, 98)
        for w in range(4): e(f'ds_read_b128 {vr(R[w],4)}, {vr(vPerm)} offset:{L_SX+1024*w}')
        e(f'ds_read_b128 {vr(RM,4)}, {vr(vPerm)} offset:{L_SM}')
        e(f'v_mov_b32 v{ONE+3}, 0x3f803f80')
        if cfg.vd >= 50: em(vdma)
        vw = f's_waitcnt vmcnt({young})'
        early = cfg.vchk == 1
        e(f"""@wl
        v_pk_add_f32 {vr(q0,2)}, {vr(q0,2)}, {vr(q1,2)}
        v_pk_add_f32 {vr(q0+2,2)}, {vr(q0+2,2)}, {vr(q1+2,2)}
        @wl
        v_pk_add_f32 {vr(q0,2)}, {vr(q0,2)}, {vr(k0,2)}
        v_pk_add_f32 {vr(q0+2,2)}, {vr(q0+2,2)}, {vr(k0+2,2)}
        s_waitcnt lgkmcnt(0)
        v_pk_add_f32 {vr(q0,2)}, {vr(q0,2)}, {vr(k1,2)}
        v_pk_add_f32 {vr(RM,2)}, {vr(RM,2)}, {vr(RM+2,2)}
        v_pk_add_f32 {vr(q0+2,2)}, {vr(q0+2,2)}, {vr(k1+2,2)}
        v_add_f32 v{RM}, v{RM}, v{RM+1}""")
        zz = zero(q1, 12)
        mx = f"""v_max3_f32 v{M}, v{q0}, v{q0+1}, v{q0+2}
        v_max3_f32 v{M}, v{M}, v{q0+3}, v{RM}
        {zz[0]}
        {zz[1]}
        v_max_f32_dpp v{M2}, v{M}, v{M} quad_perm:[2,3,0,1] row_mask:0xf bank_mask:0xf
        v_max_f32_dpp v{M}, v{M}, v{M} quad_perm:[2,3,0,1] row_mask:0xf bank_mask:0xf
        {zz[2]}
        {zz[3]}
        v_permlane16_swap_b32 v{M}, v{M2}
        v_max_f32 v{RM+1}, v{M}, v{M2}
        v_max_f32 v{M}, v{M}, v{M2}
        {zz[4]}
        {zz[5]}
        v_permlane32_swap_b32 v{M}, v{RM+1}
        v_max_f32 v{M}, v{M}, v{RM+1}
        v_mul_f32 v{M}, {sC}, v{M}
        v_fma_f32 v{q0}, v{q0}, {sC}, -v{M}
        v_fma_f32 v{q0+1}, v{q0+1}, {sC}, -v{M}
        v_fma_f32 v{q0+2}, v{q0+2}, {sC}, -v{M}
        v_fma_f32 v{q0+3}, v{q0+3}, {sC}, -v{M}
        v_fma_f32 v{RM}, v{RM}, {sC}, -v{M}"""
        e(mx)
        e(f"""v_exp_f32 v{q0}, v{q0}
        v_exp_f32 v{q0+1}, v{q0+1}
        v_exp_f32 v{q0+2}, v{q0+2}
        v_exp_f32 v{q0+3}, v{q0+3}
        v_cvt_pk_bf16_f32 v{PX}, v{q0}, v{q0+1}
        v_cvt_pk_bf16_f32 v{PX+1}, v{q0+2}, v{q0+3}
        v_exp_f32 v{RM}, v{RM}
        v_mov_b32_dpp v{PX+2}, v{PX} quad_perm:[2,3,2,3] row_mask:0xf bank_mask:0xf
        v_mov_b32_dpp v{PX+3}, v{PX+1} quad_perm:[2,3,2,3] row_mask:0xf bank_mask:0xf
        v_mov_b32_dpp v{RM+1}, v{RM} quad_perm:[2,3,2,3] row_mask:0xf bank_mask:0xf
        v_cvt_pk_bf16_f32 v{PM}, v{RM}, v{RM+1}""")
        stamp(6); mk(13)
        O0, O1 = vKX, vKX + 4; SUM = vA; OP = vPL + 6
        z0 = zero(q0, 4); z4 = zero(v0, 4)
        e(f"""v_mfma_f32_16x16x32_bf16 {vr(O0,4)}, {vr(vVX,4)}, {vr(PX,4)}, 0
        {vw}
        {J(vchk[:2])}
        v_mfma_f32_16x16x32_bf16 {vr(O1,4)}, {vr(vVX+4,4)}, {vr(PX,4)}, 0
        {J(vchk[2:])}
        s_cbranch_vccnz {Vre}
        {Vok}:
        {m4(14)}
        v_mfma_f32_16x16x16_bf16 {vr(O0,4)}, {vr(VM0,2)}, {vr(PM,2)}, {vr(O0,4)}
        v_mfma_f32_16x16x16_bf16 {vr(O1,4)}, {vr(VM1,2)}, {vr(PM,2)}, {vr(O1,4)}
        v_mov_b32 v{VM0+1}, v{VM1}
        {J(z0 + z4)}
        s_cmp_eq_u32 {sSTEP}, {cfg.nsteps-1}
        s_mov_b64 exec, {sEB0}
        v_cvt_pk_bf16_f32 v{OP}, v{O0}, v{O0+1}
        v_cvt_pk_bf16_f32 v{OP+1}, v{O0+2}, v{O0+3}
        v_cvt_pk_bf16_f32 v{OP+2}, v{O1}, v{O1+1}
        v_cvt_pk_bf16_f32 v{OP+3}, v{O1+2}, v{O1+3}
        ds_write_b128 {vr(vOwr)}, {vr(OP,4)} offset:{L_O}
        s_mov_b64 exec, {sEVM}
        {f'buffer_store_dwordx2 {vr(VM0,2)}, v{A8}, {WS}, {sVM} offen sc1' if not cfg.nokm else ''}
        s_mov_b64 exec, -1
        v_mfma_f32_16x16x16_bf16 {vr(SUM,4)}, {vr(PM,2)}, {vr(ONE,2)}, 0
        v_mfma_f32_16x16x32_bf16 {vr(D1,4)}, {vr(PX,4)}, {vr(ONE,4)}, 0
        s_cbranch_scc1 {Ldone}
        s_waitcnt lgkmcnt(0)
        s_barrier""")
        stamp(7); mk(15)
        OA = vA + 12
        def wo(t, kap): return f'@wl\nv_smfmac_f32_16x16x64_bf16 {vr(vACC+4*t,4)}, {vr(OA+4*kap,4)}, {W(("o","",t),kap)}, {vr(vIDX)}'
        PO = vPL; SEL = vREM
        def fin(t):
            a = vACC + 4*t
            return [f'v_pk_add_f32 {vr(a,2)}, {vr(a,2)}, {vr(a+2,2)}', f'v_pk_mul_f32 {vr(a,2)}, {vr(a,2)}, {vr(M,2)}', f'v_cvt_pk_bf16_f32 v{PO+t}, v{a}, v{a+1}']
        a0, a1, a2, a3 = (vACC + 4*t for t in range(4))
        e(f"""ds_read_b128 {vr(OA,4)}, {vr(vPerm)} offset:{L_O}
        ds_read_b128 {vr(OA+4,4)}, {vr(vPerm)} offset:{L_O+1024}
        s_add_u32 {sKM}, {sKM}, {32*4096}
        s_add_u32 {sVM}, {sVM}, {32*2048}
        v_pk_add_f32 {vr(SUM,2)}, {vr(SUM,2)}, {vr(D1,2)}
        s_add_u32 {sSTEP}, {sSTEP}, 1
        v_rcp_f32 v{M}, v{SUM}
        s_lshl_b32 {sT2}, {sUNIT}, 12
        v_rcp_f32 v{M2}, v{SUM+1}
        s_add_u32 {sPld}, {sPst}, {sT2}
        {wo(0,0)}
        {wo(0,1)}
        ds_read_b128 {vr(SEL,4)}, {vr(vA16)} offset:{L_SEL}
        {wo(1,0)}
        s_nop 0
        {wo(1,1)}
        s_nop 0
        {wo(2,0)}
        s_nop 0
        {wo(2,1)}
        v_add_f32 v{a0}, v{a0}, v{a0+2}
        {wo(3,0)}
        v_add_f32 v{a0+1}, v{a0+1}, v{a0+3}
        {wo(3,1)}
        v_add_f32 v{a1}, v{a1}, v{a1+2}
        {wo(4,0)}
        v_add_f32 v{a1+1}, v{a1+1}, v{a1+3}
        {wo(4,1)}
        v_add_f32 v{a2}, v{a2}, v{a2+2}
        v_add_f32 v{a2+1}, v{a2+1}, v{a2+3}
        v_mul_f32 v{a0}, v{a0}, v{M}
        v_mul_f32 v{a0+1}, v{a0+1}, v{M2}
        v_cvt_pk_bf16_f32 v{PO}, v{a0}, v{a0+1}""")
        em([fin(3)[0], fin(1)[1], fin(2)[1], fin(3)[1], fin(1)[2], fin(2)[2], fin(3)[2], fin(4)[0], fin(4)[1]])
        e(f'buffer_store_dwordx4 {vr(PO,4)}, {vr(vPst4)}, {WS}, {sPst} offen{sc}')
        e(fin(4)[2])
        e(f'buffer_store_dword v{PO+4}, {vr(vPst1)}, {WS}, {sPst} offen{sc}')
        if cfg.stamps == 1: e('s_memtime s[80:81]')
        e('; MARK 8')
        if cfg.stamps == 4:
            Lc = e.lab('cap')
            e(f's_memtime s[64:65]\ns_cmp_lg_u32 {sSTEP}, {cfg.cap}\ns_cbranch_scc1 {Lc}\ns_waitcnt lgkmcnt(0)')
            dump()
            e(f's_mov_b64 exec, -1\n{Lc}:'); mk(1)
        em(stage(0)); em(step_scalars())
        e('s_waitcnt lgkmcnt(0)')
        if not cfg.standalone: e(f's_load_dword s8, {sFP}, 0 glc\ns_load_dword s9, {sFP}, {F_V - F_K} glc')
        Lnr = e.lab('nored'); Lr = e.lab('red'); Lrr = e.lab('redr')
        e(f's_cmp_lt_i32 {sUNIT}, 0\ns_cbranch_scc1 {Lnr}')
        nops(cfg.d1)
        RD = vA + 16; RO = vPL + 6
        def rl(RA): return J(f'buffer_load_dwordx4 {vr(RA+4*j,4)}, {vr(vA16)}, {WS}, {sPld} offen offset:{1024*j} sc1' for j in range(4))
        def rsum(RA):
            o = 4*(cfg.KA - 1)
            x = [f's_waitcnt vmcnt({o+3})', f'v_mfma_f32_16x16x32_bf16 {vr(RD,4)}, {vr(SEL,4)}, {vr(RA,4)}, 0', f'v_max3_u32 v{M}, v{RA}, v{RA+1}, v{RA+2}']
            for j in range(1, 4):
                r = RA + 4*j
                x += [f's_waitcnt vmcnt({o+3-j})', f'v_mfma_f32_16x16x32_bf16 {vr(RD,4)}, {vr(SEL,4)}, {vr(r,4)}, {vr(RD,4)}',
                      f'v_max3_u32 v{M}, v{M}, v{r-1}, v{r}', f'v_max3_u32 v{M}, v{M}, v{r+1}, v{r+2}']
            x += [f'v_max_u32 v{M}, v{M}, v{RA+15}', f'v_cmp_eq_u32 vcc, -1, v{M}']
            x += [f'v_add_f32_dpp v{RO+j}, v{RD+j}, v{RD+j} row_ror:8 row_mask:0xf bank_mask:0xf' for j in range(4)]
            x += [f'v_cvt_pk_bf16_f32 v{RO}, v{RO}, v{RO+1}', f'v_cvt_pk_bf16_f32 v{RO+1}, v{RO+2}, v{RO+3}']
            return J(x)
        mk(2)
        e(rl(vA))
        if cfg.KA == 2:
            nops(cfg.gapA); e(rl(vACC))
            retry(Lrr, J([rl(vA), rsum(vACC), f's_cbranch_vccz {Lr}', rl(vACC), rsum(vA), f's_cbranch_vccz {Lr}']), Lrr, 99)
        else:
            retry(Lrr, J([rl(vA), rsum(vA), f's_cbranch_vccz {Lr}']), Lrr, 99)
        e(rsum(vA))
        e(f"""s_cbranch_vccnz {Lrr}
        {Lr}:
        {m4(3)}
        s_mov_b64 exec, {sEPUB}
        buffer_store_dwordx2 {vr(RO,2)}, {vr(vPub)}, {WS}, {sPubS} offen sc1""")
        if fast: e(f"""buffer_store_dwordx2 {vr(RO,2)}, {vr(vPub)}, {WS}, {sPubF} offen
        v_mov_b64 {vr(RO+2,2)}, -1
        s_barrier
        buffer_store_dwordx2 {vr(RO+2,2)}, {vr(vPub)}, {WS}, {sRstF} offen""")
        else: e('s_barrier')
        Lj = e.lab('join')
        e(f"""s_mov_b64 exec, -1
        s_waitcnt vmcnt({3 if fast else 1})
        {Lj}:""")
        tail.append(f'{Lnr}:\ns_barrier\ns_branch {Lj}')
        if cfg.stamps == 1:
            e('s_memtime s[100:101]\ns_waitcnt lgkmcnt(0)')
            for i in range(8): e(f's_sub_u32 {sT0}, s{66+2*i}, s{64+2*i}\ns_add_u32 s{84+i}, s{84+i}, {sT0}')
            e('s_mov_b32 s64, s80\ns_mov_b32 s66, s100')
        trace(e, 64, vT, sSTEP)
        mk(4)
        e('; MARK 9')
        e(f's_branch {Lstep}')
        em(tail)
        if not cfg.standalone:
            e(f'{Kre}:\ns_add_u32 {sT2}, {sSTEP}, 2')
            kvwait(sT2)
            e(f's_branch {Kok}')
        e(f'{Ldone}:')
        if not cfg.standalone:
            e(f's_waitcnt vmcnt(0)\ns_barrier'); trace(e, 4, vT); e(f's_cmp_lg_u32 {sW}, 3\ns_cbranch_scc1 {Ldone}x'); set_flag(e, sFR, 64, vT); e(f'{Ldone}x:')
        if cfg.stamps in (1, 2, 3):
            if cfg.stamps != 3: e('s_memtime s[80:81]\ns_waitcnt lgkmcnt(0)\ns_sub_u32 s92, s80, s82\ns_sub_u32 s93, s82, s24')
            e('s_waitcnt lgkmcnt(0)')
            dump()
        e('s_waitcnt vmcnt(0)\ns_branch L_exit')

    e(f's_mov_b32 {sNEAR}, {cfg.near}')
    if cfg.standalone:
        body(cfg.fast)
    else:
        trace(e, 1, 66)
        gsync(e, 66, 49)
        if cfg.near < 0: e(f'v_readlane_b32 {sNEAR}, v67, 4\ns_and_b32 {sNEAR}, {sNEAR}, 2\ns_lshl_b32 {sNEAR}, {sNEAR}, 12')
        trace(e, 2, 66)
        LS = e.lab('rslow')
        e(f's_cmp_eq_u32 {sFAST}, 0\ns_cbranch_scc1 {LS}')
        body(1)
        e(f'{LS}:')
        body(0)
```

```python
from common import *
from role_pre import gen_mod, gen_ln_load, gen_ln, sT
sCU = sIDX
sTEAM, sS, sN = 's27', 's29', 's30'
sT0, sT1, sT2, sT3 = 's32', 's33', 's34', 's35'
sFWO, sFLN, sFM1, sFB = 's36', 's37', 's38', 's39'
sO, sAP, sAPr, sX, sX1, sY, sYr, sHID, sHIDr, sHIDt, sX1r, sOUT = 's40','s41','s42','s43','s44','s45','s46','s47','s48','s49','s50','s51'
NTEAM = 3
sPRE = 's28'
sB = 's53'
def WO(k, t): r = 4*(5*k + t); return ('a', r)
def W1(k): return ('a', 160 + 4*k)
def W2(k, t):
    i = 3*k + t
    return ('a', 240 + 4*i) if i < 4 else ('v', 104 + 4*(i-4))
def R4(x): return f'{x[0]}[{x[1]}:{x[1]+3}]'
vA16, vA4, vQF, vRW, vRR, vAPs, vYs, vHs, vOs, vX1, vT = 1, 2, 3, 4, 5, 6, 7, 8, 9, 10, 11
vYr = 0
A = 16; ACC = 64
L_RED, L_Y, L_PAR, L_X = 0, 40960, 81920, 94208

def stage_rows(e, srdn, ppr, ninstr, rowbytes, step_rows, sbase):
    grp = 5 if ppr in (5, 10) else 1
    for j in range(grp):
        e(f'v_add_u32 v20, {64*j}, v17')
        if ppr == 2: e('v_lshrrev_b32 v21, 1, v20')
        else: e(f'v_mul_u32_u24 v21, {6554 if ppr == 10 else 13108}, v20\nv_lshrrev_b32 v21, 16, v21')
        e(f'''v_mul_u32_u24 v22, {ppr}, v21
        v_sub_u32 v22, v20, v22
        v_mul_u32_u24 v21, {rowbytes}, v21
        v_lshl_add_u32 v{24+j}, v22, 4, v21''')
    for n in range(ninstr):
        e(f's_add_u32 m0, s52, {1024*n}')
        if n % grp == 0: e(f's_add_u32 {sT0}, {sbase}, {(n//grp)*step_rows*rowbytes}')
        e(f'buffer_load_dwordx4 v{24 + n % grp}, s[{srdn}:{srdn+3}], {sT0} offen lds')

def gen_T(e, cfg):
    e(f'''s_sub_u32 {sTEAM}, {sGRP}, 5
    s_lshl_b32 {sT}, {sTEAM}, 5
    s_add_u32 {sT}, {sT}, {sCU}
    s_lshl_b32 {sT0}, {sT}, 2
    s_add_u32 {sFWO}, {sT0}, {F_WO}
    s_add_u32 {sFLN}, {sT0}, {F_LN}
    s_add_u32 {sFM1}, {sT0}, {F_M1}
    s_sub_u32 s29, {sT}, 64
    s_sub_u32 {sT1}, {sT}, 4
    s_cmp_ge_u32 {sT}, 64
    s_cselect_b32 s29, s29, {sT1}''')
    L1 = e.lab('t1'); L2 = e.lab('t2'); L3 = e.lab('t3'); L4 = e.lab('t4'); L5 = e.lab('t5'); L6 = e.lab('t6')
    e(f's_cmp_ge_u32 {sT}, 64\ns_cbranch_scc1 {L3}')
    gen_ln_load(e)
    claim_issue(e)
    gen_ln(e)
    e(f's_mov_b32 {sOWN}, 1\ns_cmp_lt_u32 {sT}, 36\ns_cbranch_scc1 {L5}\n{L3}:')
    gen_mod(e)
    e(f'{L5}:\ns_lshl_b32 {sT0}, {sW}, 7\ns_add_u32 {sT0}, {sT0}, {sT}\ns_cmp_lg_u32 {sT0}, 95\ns_cbranch_scc1 {L6}')
    coordinate(e, 10)
    e(f'{L6}:')
    if cfg.get('stop') == 'pre':
        e('s_branch L_exit'); return
    if cfg.get('tdelay', 1): wait_go(e, 8, 10, sleep=8)
    srd(e, 8, 'wo'); srd(e, 12, 'w1'); srd(e, 16, 'w2')
    e(f'''v_and_b32 v17, 63, v0
    v_lshlrev_b32 v{vA16}, 4, v17
    v_lshlrev_b32 v{vA4}, 2, v17
    v_and_b32 v18, 15, v17           ; rho
    v_lshrrev_b32 v19, 4, v17        ; g
    v_bfe_u32 v30, v17, 2, 2         ; rr
    v_and_b32 v31, 3, v17            ; cc
    s_mul_i32 s52, {sW}, 40960
    s_lshr_b32 s53, {sCU}, 3
    s_and_b32 s54, {sCU}, 7
    s_lshr_b32 s55, {sCU}, 4
    s_and_b32 s56, {sCU}, 15
    s_min_u32 s57, {sCU}, 26
    s_waitcnt lgkmcnt(0)
    s_barrier''')
    srd_fin(e, 8, 'wo'); srd_fin(e, 12, 'w1'); srd_fin(e, 16, 'w2')
    e(f'''s_lshl_b32 {sT1}, s53, 2
    s_add_u32 {sT1}, {sT1}, {sW}
    s_mul_i32 {sT1}, {sT1}, {256*1280}
    s_mul_i32 {sT2}, s54, 160
    s_add_u32 {sT1}, {sT1}, {sT2}''')
    stage_rows(e, 8, 10, 40, 1280, 32, sT1)
    e(f'''v_lshl_add_u32 v32, v19, 3, v30
    v_mul_u32_u24 v33, 160, v32
    v_lshl_add_u32 v33, v31, 3, v33
    v_add_u32 v33, s52, v33''')
    for k in range(8):
        e(f's_waitcnt vmcnt({35-5*k})')
        for t in range(5):
            for u in range(2):
                r = WO(k, t); e(f'ds_read_b64_tr_b16 {r[0]}[{r[1]+2*u}:{r[1]+2*u+1}], v33 offset:{5120*k + 640*u + 32*t}')
        e('s_waitcnt lgkmcnt(0)')
    e(f'''s_mul_i32 {sT1}, {sW}, {448*1280}
    s_mul_i32 {sT2}, s56, 80
    s_add_u32 {sT1}, {sT1}, {sT2}''')
    stage_rows(e, 16, 5, 35, 1280, 64, sT1)
    e(f'''v_mul_u32_u24 v33, 80, v32
    v_add_u32 v33, s52, v33
    v_and_b32 v34, 1, v31
    v_lshl_add_u32 v34, v34, 3, v33
    v_lshl_add_u32 v33, v31, 3, v33''')
    for k in range(14):
        if k % 2 == 0: e(f's_waitcnt vmcnt({30-5*(k//2)})')
        for t in range(3):
            for u in range(2):
                r = W2(k, t); e(f'ds_read_b64_tr_b16 {r[0]}[{r[1]+2*u}:{r[1]+2*u+1}], {"v33" if t < 2 else "v34"} offset:{2560*k + 320*u + 32*t}')
        e('s_waitcnt lgkmcnt(0)')
    e(f'''s_lshl_b32 {sT1}, s57, 7
    s_lshl_b32 {sT2}, {sW}, 5
    s_add_u32 {sT1}, {sT1}, {sT2}''')
    stage_rows(e, 12, 2, 20, 3456, 32, sT1)
    e(f'''v_lshlrev_b32 v33, 5, v32
    v_lshl_add_u32 v33, v31, 3, v33
    v_add_u32 v33, s52, v33''')
    for k in range(20):
        e(f's_waitcnt vmcnt({19-k})')
        for u in range(2):
            r = W1(k); e(f'ds_read_b64_tr_b16 {r[0]}[{r[1]+2*u}:{r[1]+2*u+1}], v33 offset:{1024*k + 128*u}')
        if k % 4 == 3: e('s_waitcnt lgkmcnt(0)')
    srd(e, 8, 'b1'); srd(e, 12, 'b2'); srd(e, 16, 'x'); srd(e, 20, 'out')
    gsync(e, vT, 37)
    e('s_waitcnt lgkmcnt(0)\ns_barrier')
    srd_fin(e, 8, 'b1'); srd_fin(e, 12, 'b2'); srd_fin(e, 16, 'x'); srd_fin(e, 20, 'out')
    Lp = e.lab('par')
    e(f'''s_cmp_lg_u32 {sW}, 0
    s_cbranch_scc1 {Lp}''')
    for j in range(10):
        e(f's_mov_b32 m0, {L_PAR + 1024*j}\ns_mov_b32 {sT0}, {WS_MOD + 5120 + 1024*j}')
        e(f'buffer_load_dwordx4 v{vA16}, {WS}, {sT0} offen sc1 lds')
    e(f'''v_lshlrev_b32 v20, 1, v17
    s_lshl_b32 {sT0}, s57, 7
    s_mul_i32 {sT1}, s56, 80
    buffer_load_ushort v21, v20, s[8:11], {sT0} offen
    buffer_load_ushort v22, v20, s[12:15], {sT1} offen
    v_add_u32 v20, {L_PAR + 10240}, v{vA4}
    s_waitcnt vmcnt(0)
    v_lshlrev_b32 v21, 16, v21
    v_lshlrev_b32 v22, 16, v22
    ds_write_b32 v20, v21
    ds_write_b32 v20, v22 offset:256
    s_waitcnt lgkmcnt(0)
    {Lp}:''')
    e(f'''s_lshl_b32 {sT0}, s53, 3
    s_lshl_b32 {sT1}, {sW}, 1
    s_add_u32 {sT0}, {sT0}, {sT1}
    v_add_u32 v{vQF}, {sT0}, v17
    v_lshlrev_b32 v{vQF}, 8, v{vQF}
    s_lshl_b32 {sO}, {sT0}, 12
    s_add_u32 {sO}, {sO}, {WS_O}
    s_mul_i32 {sT0}, {sW}, 10240
    v_lshl_add_u32 v21, v19, 2, v18
    v_and_b32 v21, 15, v21
    v_lshlrev_b32 v21, 4, v21
    v_lshl_add_u32 v21, v19, 8, v21
    v_add_u32 v{vRW}, {sT0}, v21
    v_lshrrev_b32 v20, 2, v17
    v_lshl_add_u32 v21, v31, 2, v20
    v_and_b32 v21, 15, v21
    v_lshlrev_b32 v21, 4, v21
    v_lshl_add_u32 v21, v31, 8, v21
    s_lshl_b32 {sT0}, {sW}, 10
    v_add_u32 v{vRR}, {sT0}, v21
    v_mul_u32_u24 v21, 10240, v20
    v_lshl_add_u32 v{vAPs}, v31, 4, v21
    s_mul_i32 {sAP}, s53, 2560
    s_mul_i32 {sT0}, s54, 320
    s_add_u32 {sAP}, {sAP}, {sT0}
    s_add_u32 {sAP}, {sAP}, {WS_AP}
    s_mul_i32 {sAPr}, {sCU}, 10240
    s_add_u32 {sAPr}, {sAPr}, {WS_AP}
    s_mul_i32 {sX}, {sCU}, 1280
    s_mul_i32 {sX1}, {sCU}, 2560
    s_add_u32 {sX1}, {sX1}, {WS_X1}
    s_lshl_b32 {sY}, {sCU}, 8
    s_add_u32 {sY}, {sY}, {WS_Y}
    v_xor_b32 v22, s56, v20
    v_lshlrev_b32 v21, 2, v31
    v_lshl_add_u32 v{vYs}, v22, 4, v21
    v_xor_b32 v22, v18, v19
    v_lshlrev_b32 v22, 4, v22
    v_lshl_add_u32 v22, v18, 8, v22
    v_add_u32 v{vYr}, {L_Y}, v22
    v_and_b32 v21, 1, v19
    v_mul_u32_u24 v21, {54*1024}, v21
    v_lshrrev_b32 v22, 1, v19
    v_lshl_add_u32 v21, v22, 8, v21
    v_lshl_add_u32 v21, v18, 4, v21
    s_and_b32 {sT0}, {sW}, 1
    s_lshl_b32 {sT0}, {sT0}, 9
    v_add_u32 v{vHs}, {sT0}, v21
    s_lshr_b32 {sT0}, {sW}, 1
    s_lshl_b32 {sT1}, s57, 1
    s_add_u32 {sT0}, {sT0}, {sT1}
    s_lshl_b32 {sHID}, {sT0}, 10
    s_add_u32 {sHID}, {sHID}, {WS_HID}
    s_mul_i32 {sHIDr}, s55, {54*1024}
    s_mul_i32 {sT0}, {sW}, {14*1024}
    s_add_u32 {sHIDr}, {sHIDr}, {sT0}
    s_add_u32 {sHIDr}, {sHIDr}, {WS_HID}
    s_cmp_eq_u32 {sW}, 3
    s_cselect_b32 {sHIDt}, 10, 12
    s_lshl_b32 {sHIDt}, {sHIDt}, 10
    v_mul_u32_u24 v21, 1280, v20
    v_lshl_add_u32 v{vOs}, v31, 3, v21
    v_lshlrev_b32 v{vX1}, 1, v{vOs}
    s_mul_i32 {sOUT}, s55, {16*1280}
    s_mul_i32 {sT0}, s56, 80
    s_add_u32 {sOUT}, {sOUT}, {sT0}
    s_lshl_b32 {sT0}, {sW}, 5
    s_add_u32 {sOUT}, {sOUT}, {sT0}
    s_lshl_b32 {sX1r}, {sOUT}, 1
    s_add_u32 {sX1r}, {sX1r}, {WS_X1}
    s_lshl_b32 {sYr}, {sW}, 11
    s_lshl_b32 {sFB}, {sTEAM}, 7
    s_mov_b32 {sPRE}, 0
    s_mov_b32 {sS}, {sTEAM}
    s_mov_b32 s58, 0x33333333
    s_cmp_eq_u32 {sW}, 2
    s_cselect_b32 s58, s58, -1
    s_mov_b32 s59, s58
    s_barrier''')
    trace(e, 3, vT)
    LS = e.lab('tslow')
    e(f's_cmp_eq_u32 {sFAST}, 0\ns_cbranch_scc1 {LS}')
    loop(e, '', cfg)
    e(f'{LS}:')
    loop(e, ' sc1', cfg)

def lane_sum2(e, a, b, t):
    for m in ('quad_perm:[1,0,3,2]', 'quad_perm:[2,3,0,1]', 'row_half_mirror', 'row_mirror'):
        e(f'v_add_f32_dpp v{a}, v{a}, v{a} {m} row_mask:0xf bank_mask:0xf\nv_add_f32_dpp v{b}, v{b}, v{b} {m} row_mask:0xf bank_mask:0xf')
    for sw in ('v_permlane16_swap_b32', 'v_permlane32_swap_b32'):
        e(f'''v_mov_b32 v{t}, v{a}
        v_mov_b32 v{t+1}, v{b}
        {sw} v{a}, v{t}
        {sw} v{b}, v{t+1}
        v_add_f32 v{a}, v{a}, v{t}
        v_add_f32 v{b}, v{b}, v{t+1}''')

def norm(e, X, a, b, t):
    e(f'v_add_f32 v{a}, v{X}, v{X+1}\nv_mul_f32 v{b}, v{X}, v{X}\nv_fmac_f32 v{b}, v{X+1}, v{X+1}')
    for i in range(2, 10): e(f'v_add_f32 v{a}, v{a}, v{X+i}\nv_fmac_f32 v{b}, v{X+i}, v{X+i}')
    lane_sum2(e, a, b, t)
    e(f'''v_mul_f32 v{a}, {f2u(1/640)}, v{a}
    v_mul_f32 v{b}, {f2u(1/640)}, v{b}
    v_fma_f32 v{b}, -v{a}, v{a}, v{b}
    v_max_f32 v{b}, 0, v{b}
    v_add_f32 v{b}, {f2u(1e-5)}, v{b}
    v_rsq_f32 v{b}, v{b}
    v_mul_f32 v{a}, v{a}, v{b}''')

def loop(e, sc, cfg):
    L = e.lab('team')
    def pt(i):
        if cfg.get('tprof'): e(f's_memtime s[{64+2*i}:{65+2*i}]')
    def obase(seg):
        e(f's_lshl_b32 {sT0}, {seg}, 18\ns_add_u32 s8, {sT0}, {sO}\ns_add_u32 s9, s8, 4096\ns_add_u32 s10, s8, {1 << 17}\ns_add_u32 s11, s9, {1 << 17}')
    def old(i):
        mt, k = divmod(i, 8)
        return f'buffer_load_dwordx4 {vr(A+4*(i%12),4)}, v{vA16}, {WS}, s{8 + 2*mt + k//4} offen offset:{1024*(k%4)} sc1'
    def ofetch(seg):
        obase(seg)
        e(f"""s_mul_i32 {sT0}, {seg}, 40960
        s_add_u32 {sT0}, {sT0}, {sX}
        s_lshl_b32 {sT3}, {sW}, 10
        s_add_u32 {sT0}, {sT0}, {sT3}
        s_add_u32 m0, {sT3}, {L_X}
        s_nop 0
        buffer_load_dwordx4 v{vA16}, s[16:19], {sT0} offen lds""")
        for i in range(12): e(old(i))
    G = e.lab('wog')
    e(f"""{L}:
    s_add_u32 {sN}, {sS}, 1
    s_mov_b32 {sB}, {sS if cfg.get('fresh') else sTEAM}
    s_cmp_lg_u32 {sPRE}, 0
    s_cbranch_scc1 {G}
    s_mov_b32 {sT0}, {F_QA}""")
    pt(0)
    wait_flags(e, vQF, sT0, 3, sN, vT, sleep=1)
    ofetch(sS)
    e(f'{G}:')
    trace(e, 64, vT, sS)
    pt(1)
    issued = 12
    for i in range(16):
        mt, k = divmod(i, 8)
        e(f's_waitcnt vmcnt({issued-1-i})')
        for t in range(5):
            a = vr(ACC + 4*(5*mt + t), 4)
            e(f'v_mfma_f32_16x16x32_bf16 {a}, {R4(WO(k,t))}, {vr(A+4*(i%12),4)}, {"0" if k == 0 else a}')
        if issued < 16: e(old(issued)); issued += 1
        if 9 <= i < 14: e(f'ds_write_b128 v{vRW}, {vr(ACC+4*(i-9),4)} offset:{L_RED+1024*(i-9)}')
    pt(2)
    e(f's_mul_i32 {sT0}, {sB}, {32*10240}\ns_add_u32 {sT1}, {sT0}, {sAP}')
    for i in range(5, 10): e(f'ds_write_b128 v{vRW}, {vr(ACC+4*i,4)} offset:{L_RED+1024*i}')
    e('s_waitcnt lgkmcnt(0)\ns_barrier')
    Lk = e.lab('wo2')
    def rrd(j):
        for w in range(4): e(f'ds_read_b128 {vr(A+16*j+4*w,4)}, v{vRR} offset:{L_RED + 10240*w + 4096*j}')
    def rfin(j):
        b = A + 16*j
        e(f'''s_add_u32 {sT2}, {sW}, {4*j}
        s_cmp_ge_u32 {sT2}, 5
        s_cselect_b32 {sT3}, {16*10240 - 5*64}, 0
        s_lshl_b32 {sT2}, {sT2}, 6
        s_add_u32 {sT2}, {sT2}, {sT3}
        s_add_u32 {sT2}, {sT2}, {sT1}''')
        for h in (0, 2):
            e(f'''v_pk_add_f32 {vr(b+h,2)}, {vr(b+h,2)}, {vr(b+4+h,2)}
            v_pk_add_f32 {vr(b+8+h,2)}, {vr(b+8+h,2)}, {vr(b+12+h,2)}
            v_pk_add_f32 {vr(b+h,2)}, {vr(b+h,2)}, {vr(b+8+h,2)}''')
        e(f'buffer_store_dwordx4 {vr(b,4)}, v{vAPs}, {WS}, {sT2} offen{sc}')
    pt(3)
    rrd(0); rrd(1); rrd(2)
    e('s_waitcnt lgkmcnt(8)'); rfin(0)
    e(f's_waitcnt lgkmcnt(4)'); rfin(1)
    e(f's_waitcnt lgkmcnt(0)\ns_cmp_ge_u32 {sW}, 2\ns_cbranch_scc1 {Lk}')
    rfin(2)
    Lln = e.lab('lnskip')
    e(f'''{Lk}:
    s_waitcnt vmcnt(0)
    s_barrier
    s_cmp_lg_u32 {sW}, 0
    s_cbranch_scc1 {Lln}''')
    set_flag(e, sFWO, sN, vT, sc)
    trace(e, 128, vT, sS)
    pt(4)
    P = A; XB = A + 40; GA = ACC; SB = ACC + 10; CB = ACC + 20; a_, b_, t_ = ACC + 30, ACC + 31, ACC + 32
    e(f'''s_mul_i32 {sT1}, {sB}, 40960
    v_lshlrev_b32 v{vT+1}, 1, v{vA4}
    v_add_u32 v{vT+2}, {L_PAR}, v{vT+1}
    v_add_u32 v{vT+3}, {L_X}, v{vA4}''')
    for j in range(5): e(f'ds_read_b32 v{XB+j}, v{vT+3} offset:{256*j}')
    e('s_waitcnt lgkmcnt(0)')
    for n, b in enumerate((GA, SB, CB)):
        for j in range(5): e(f'ds_read_b64 {vr(b+2*j,2)}, v{vT+2} offset:{2560*n + 512*j}')
    e(f's_add_u32 {sT2}, {sFB}, {F_WO}')
    wait_flags(e, vA4, sT2, 0xffffffff, sN, vT)
    pt(5)
    e(f's_add_u32 s60, {sT0}, {sAPr}\ns_add_u32 s61, s60, 2560\ns_add_u32 s62, s60, 5120\ns_add_u32 s63, s60, 7680')
    for j in range(5):
        for g in range(4): e(f'buffer_load_dwordx2 {vr(P+10*g+2*j,2)}, v{vT+1}, {WS}, s{60+g} offen offset:{512*j} sc1')
    e(f's_lshl_b32 {sT2}, {sT1}, 1\ns_add_u32 {sT2}, {sT2}, {sX1}\ns_waitcnt lgkmcnt(0)')
    for j in range(5):
        p = P + 2*j
        e(f'''s_waitcnt vmcnt({16-4*j+j})
        v_pk_add_f32 {vr(p,2)}, {vr(p,2)}, {vr(p+10,2)}
        v_pk_add_f32 {vr(p+20,2)}, {vr(p+20,2)}, {vr(p+30,2)}
        v_lshlrev_b32 v{p+10}, 16, v{XB+j}
        v_and_b32 v{p+11}, 0xffff0000, v{XB+j}
        v_pk_add_f32 {vr(p,2)}, {vr(p,2)}, {vr(p+20,2)}
        v_pk_fma_f32 {vr(p,2)}, {vr(p,2)}, {vr(GA+2*j,2)}, {vr(p+10,2)}
        buffer_store_dwordx2 {vr(p,2)}, v{vT+1}, {WS}, {sT2} offen offset:{512*j}{sc}''')
    H2 = P + 10
    pt(6)
    norm(e, P, a_, b_, t_)
    for i in range(10): e(f'v_fma_f32 v{H2+i}, v{P+i}, v{b_}, -v{a_}')
    for j in range(5): e(f'v_pk_fma_f32 {vr(H2+2*j,2)}, {vr(H2+2*j,2)}, {vr(CB+2*j,2)}, {vr(SB+2*j,2)}')
    norm(e, H2, a_, b_, t_)
    e(f's_add_u32 {sT2}, {sT1}, {sY}')
    for j in range(5):
        e(f'''v_fma_f32 v{H2+2*j}, v{H2+2*j}, v{b_}, -v{a_}
        v_fma_f32 v{H2+2*j+1}, v{H2+2*j+1}, v{b_}, -v{a_}
        v_cvt_pk_bf16_f32 v{XB+j}, v{H2+2*j}, v{H2+2*j+1}
        buffer_store_dword v{XB+j}, v{vYs}, {WS}, {sT2} offen{sc}''')
        if j < 4: e(f's_add_u32 {sT2}, {sT2}, 8192')
    pt(7)
    e('s_waitcnt vmcnt(0)')
    set_flag(e, sFLN, sN, vT, sc)
    trace(e, 192, vT, sS)
    e(f's_add_u32 {sT2}, {sFB}, {F_LN}')
    wait_flags(e, vA4, sT2, 0xffffffff, sN, vT)
    Lm2 = e.lab('m1skip')
    e(f'''{Lln}:
    s_barrier
    s_mul_i32 {sT1}, {sB}, 40960
    s_cmp_ge_u32 {sCU}, 27
    s_cbranch_scc1 {Lm2}''')
    pt(8)
    e(f's_add_u32 {sT2}, {sT1}, {sYr}')
    for j in range(10):
        if j % 2 == 0: e(f's_add_u32 m0, {sYr}, {L_Y + 4096*j}\ns_add_u32 s60, {sT2}, {WS_Y + 4096*j}')
        e(f'buffer_load_dwordx4 v{vA16}, {WS}, s60 offen offset:{1024*(j%2)} sc1 lds')
    e(f'''v_lshrrev_b32 v{vT+1}, 8, v{vA16}
    v_lshlrev_b32 v{vT+1}, 4, v{vT+1}
    s_lshl_b32 {sT3}, {sW}, 6
    s_add_u32 {sT3}, {sT3}, {L_PAR + 10240}
    v_add_u32 v{vT+1}, {sT3}, v{vT+1}
    ds_read_b128 {vr(ACC+8,4)}, v{vT+1}
    v_xor_b32 v{vT+2}, 64, v{vYr}
    v_xor_b32 v{vT+3}, 0x80, v{vYr}
    v_xor_b32 v{vT+4}, 0xc0, v{vYr}
    s_mul_i32 {sT2}, {sB}, {108*1024}
    s_add_u32 s60, {sT2}, {sHID}
    s_waitcnt vmcnt(6) lgkmcnt(0)
    s_barrier''')
    D = 8
    pt(9)
    def yrd(i): k, mt = divmod(i, 2); return f'ds_read_b128 {vr(A+4*(i%(D+2)),4)}, v{(vYr, vT+2, vT+3, vT+4)[k%4]} offset:{8192*(k//4) + 4096*mt}'
    for i in range(D): e(yrd(i))
    for i in range(40):
        k, mt = divmod(i, 2)
        if i + D in (16, 32): e(f's_waitcnt vmcnt({2 if i + D == 16 else 0})\ns_barrier')
        if i + D < 40: e(yrd(i+D))
        e(f's_waitcnt lgkmcnt({min(D, 39-i)})')
        a = vr(ACC+4*mt, 4)
        e(f'v_mfma_f32_16x16x32_bf16 {a}, {R4(W1(k))}, {vr(A+4*(i%(D+2)),4)}, {vr(ACC+8,4) if k == 0 else a}')
    pt(10)
    c0 = -2*math.sqrt(2/math.pi)*math.log2(math.e)
    e(f's_mov_b32 s62, {f2u(c0*0.044715)}\nv_mov_b32 v{vT+1}, {f2u(c0)}')
    U = ACC + 12
    for i in range(8): e(f'v_mul_f32 v{U+i}, v{ACC+i}, v{ACC+i}')
    for i in range(8): e(f'v_fma_f32 v{U+i}, v{U+i}, s62, v{vT+1}')
    for i in range(8): e(f'v_mul_f32 v{U+i}, v{U+i}, v{ACC+i}')
    for i in range(8): e(f'v_exp_f32 v{U+i}, v{U+i}')
    for i in range(8): e(f'v_add_f32 v{U+i}, 1.0, v{U+i}')
    for i in range(8): e(f'v_rcp_f32 v{U+i}, v{U+i}')
    for i in range(8): e(f'v_mul_f32 v{U+i}, v{U+i}, v{ACC+i}')
    for i in range(4): e(f'v_cvt_pk_bf16_f32 v{ACC+i}, v{U+2*i}, v{U+2*i+1}')
    Lf = e.lab('m1f')
    pt(11)
    e(f'''v_permlane16_swap_b32 v{ACC}, v{ACC+2}
    v_permlane16_swap_b32 v{ACC+1}, v{ACC+3}
    buffer_store_dwordx4 {vr(ACC,4)}, v{vHs}, {WS}, s60 offen{sc}
    s_waitcnt vmcnt(0)
    s_barrier
    s_cmp_lg_u32 {sW}, 0
    s_cbranch_scc1 {Lm2}''')
    set_flag(e, sFM1, sN, vT, sc)
    trace(e, 256, vT, sS)
    pt(12)
    AC2 = 72; X1 = 84; B2 = 88; GB = 92
    e(f'''{Lm2}:
    s_lshl_b32 {sT2}, {sT1}, 1
    s_add_u32 {sT2}, {sT2}, {sX1r}
    buffer_load_dwordx4 {vr(X1,4)}, v{vX1}, {WS}, {sT2} offen sc1
    v_and_b32 v{vT+1}, 48, v{vA16}
    s_lshl_b32 {sT3}, {sW}, 6
    v_add_u32 v{vT+1}, {sT3}, v{vT+1}
    s_mul_i32 {sT3}, s56, 160
    v_add_u32 v{vT+2}, {sT3}, v{vT+1}
    v_add_u32 v{vT+1}, {L_PAR}, v{vT+1}
    v_add_u32 v{vT+2}, {L_PAR}, v{vT+2}
    ds_read_b128 {vr(B2,4)}, v{vT+1} offset:{10240+256}
    ds_read_b128 {vr(GB,4)}, v{vT+2} offset:7680
    s_add_u32 {sT2}, {sFB}, {F_M1}''')
    wait_flags(e, vA4, sT2, (1 << 27) - 1, sN, vT)
    pt(13)
    e(f'''s_mul_i32 {sT2}, {sB}, {108*1024}
    s_add_u32 s60, {sT2}, {sHIDr}
    s_add_u32 s61, s60, 4096
    s_add_u32 s62, s60, 8192
    s_add_u32 s63, s60, {sHIDt}''')
    for k in range(14): e(f'buffer_load_dwordx4 {vr(A+4*k,4)}, v{vA16}, {WS}, s{60+k//4} offen offset:{1024*(k%4)} sc1')
    e(f"""s_mov_b32 {sT0}, {F_QA}
    s_mov_b64 exec, 3
    buffer_load_dword v{vT}, v{vQF}, {WS}, {sT0} offen sc1
    s_mov_b64 exec, -1""")
    for k in range(14):
        e(f's_waitcnt vmcnt({14-k})')
        for t in range(3):
            a = vr(AC2+4*t, 4)
            e(f'v_mfma_f32_16x16x32_bf16 {a}, {R4(W2(k,t))}, {vr(A+4*k,4)}, {"0" if k == 0 else a}')
    pt(14)
    e(f"""s_mul_i32 {sT1}, {sS}, 40960
    s_add_u32 {sT2}, {sT1}, {sOUT}
    s_add_u32 s12, {sS}, {NTEAM}
    s_mov_b32 {sPRE}, 0""")
    for t in range(3): e(f'ds_write_b128 v{vRW}, {vr(AC2+4*t,4)} offset:{L_RED+1024*t}')
    Le = e.lab('m2e'); Lnp = e.lab('nopre')
    e(f"""s_mov_b64 exec, 3
    s_waitcnt vmcnt(0)
    v_cmp_ge_u32 vcc, s12, v{vT}
    s_mov_b64 exec, -1
    s_cbranch_vccnz {Lnp}""")
    if cfg.get('pre', 1):
        ofetch('s12')
        e(f's_mov_b32 {sPRE}, 1')
    e(f"""{Lnp}:
    s_waitcnt lgkmcnt(0)
    s_barrier
    s_cmp_eq_u32 {sW}, 3
    s_cbranch_scc1 {Le}""")
    E = 64
    for w in range(4): e(f'ds_read_b128 {vr(E+4*w,4)}, v{vRR} offset:{L_RED + 10240*w}')
    e('s_waitcnt lgkmcnt(0)')
    for h in (0, 2):
        e(f"""v_pk_add_f32 {vr(E+h,2)}, {vr(E+h,2)}, {vr(E+4+h,2)}
        v_pk_add_f32 {vr(E+8+h,2)}, {vr(E+8+h,2)}, {vr(E+12+h,2)}
        v_pk_add_f32 {vr(E+h,2)}, {vr(E+h,2)}, {vr(B2+h,2)}
        v_pk_add_f32 {vr(E+h,2)}, {vr(E+h,2)}, {vr(E+8+h,2)}
        v_pk_fma_f32 {vr(E+h,2)}, {vr(E+h,2)}, {vr(GB+h,2)}, {vr(X1+h,2)}""")
    e(f'''v_cvt_pk_bf16_f32 v{vT+1}, v{E}, v{E+1}
    v_cvt_pk_bf16_f32 v{vT+2}, v{E+2}, v{E+3}
    s_mov_b64 exec, s[58:59]
    buffer_store_dwordx2 {vr(vT+1,2)}, v{vOs}, s[20:23], {sT2} offen
    s_mov_b64 exec, -1
    {Le}:
    s_barrier''')
    trace(e, 320, vT, sS)
    pt(15)
    if cfg.get('tprof'):
        X = e.lab('tp')
        e(f's_cmp_lg_u32 {sS}, {cfg["tprof"]}\ns_cbranch_scc1 {X}\ns_waitcnt lgkmcnt(0)')
        for i in range(16): e(f'v_mov_b32 v{E+i}, s{64+2*i}')
        e(f's_lshl_b32 {sT0}, {sCU}, 2\ns_add_u32 {sT0}, {sT0}, {sW}\ns_lshl_b32 {sT0}, {sT0}, 6\ns_add_u32 {sT0}, {sT0}, {WS_DBG}\ns_mov_b64 exec, 1')
        for j in range(4): e(f'buffer_store_dwordx4 {vr(E+4*j,4)}, off, {WS}, {sT0} offset:{16*j}')
        e(f's_mov_b64 exec, -1\n{X}:')
    e(f'''
    s_add_u32 {sS}, {sS}, {NTEAM}
    s_cmp_lt_u32 {sS}, 64
    s_cbranch_scc1 {L}
    s_branch L_exit''')
```

```python
from layout import *
import struct, math
def f2u(x): return struct.unpack('<I', struct.pack('<f', x))[0]
WS = 's[4:7]'
sGRP, sIDX, sW = 's24', 's25', 's26'
sSPIN = 's31'
sFAST = 's3'
J = '\n'.join
def vr(b, n=1): return f'v{b}' if n == 1 else f'v[{b}:{b+n-1}]'
def srd(e, s, name): e(f's_load_dwordx2 s[{s}:{s+1}], s[0:1], {KA[name]}')
def srd_fin(e, s, name): e(f's_mov_b32 s{s+2}, {SZ[name]}\ns_mov_b32 s{s+3}, 0x20000')
def spin(e): e(f's_sub_u32 {sSPIN}, {sSPIN}, 1\ns_cbranch_scc1 L_exit')

F_K, F_V, F_R, F_QA = (WS_FLAG + 8192*i for i in (0, 1, 2, 4))
F_WO, F_LN, F_M1 = (WS_FLAG + 40960 + 1024*i for i in range(3))
D_MIX, D_MODA, D_MODB, D_H, D_ARM = 32, 36, 40, 44, 48
G_GO, G_MODA, G_MODB, G_H, G_NEAR, G_ARM = 128, 132, 136, 140, 144, 148
DBG = 's[96:97]'
sOWN = 's98'

def wait_flags(e, vaddr, soff, mask, target, vtmp, sleep=0):
    L = e.lab('wf'); D = e.lab('wfd')
    e(f's_mov_b64 exec, {mask}' if not isinstance(mask, int) or mask in (-1,) or 0 <= mask <= 64 else f's_mov_b32 exec_lo, {mask & 0xffffffff}\ns_mov_b32 exec_hi, {mask >> 32}')
    e(f'''{L}:
    buffer_load_dword v{vtmp}, v{vaddr}, {WS}, {soff} offen sc1
    s_waitcnt vmcnt(0)
    v_cmp_gt_u32 vcc, {target}, v{vtmp}
    s_cbranch_vccz {D}''')
    if sleep: e(f's_sleep {sleep}')
    spin(e)
    e(f's_branch {L}\n{D}:\ns_mov_b64 exec, -1')

def set_flag(e, soff, val, vtmp, sc=' sc1'):
    e(f'''s_mov_b64 exec, 1
    v_mov_b32 v{vtmp}, {val}
    buffer_store_dword v{vtmp}, off, {WS}, {soff}{sc}
    s_mov_b64 exec, -1''')

L_CL = 163832
vCL = 254
def claim_issue(e):
    L = e.lab('ci')
    e(f'''s_or_b32 s99, {sW}, {sOWN}
    s_cbranch_scc1 {L}
    s_lshl_b32 s99, {sGRP}, 2
    s_lshl_b32 s95, 1, {sIDX}
    s_atomic_or s95, {DBG}, s99 glc
    {L}:''')

def claim_check(e, at=L_CL):
    L = e.lab('cc'); W = e.lab('ccw')
    e(f'''s_cmp_lg_u32 {sOWN}, 0
    s_cbranch_scc1 {L}
    v_mov_b32 v{vCL}, {at}
    s_cmp_lg_u32 {sW}, 0
    s_cbranch_scc1 {W}
    s_waitcnt lgkmcnt(0)
    v_mov_b32 v{vCL+1}, s95
    ds_write_b32 v{vCL}, v{vCL+1}
    s_waitcnt lgkmcnt(0)
    {W}:
    s_barrier
    ds_read_b32 v{vCL+1}, v{vCL}
    s_waitcnt lgkmcnt(0)
    v_readfirstlane_b32 s99, v{vCL+1}
    s_barrier
    s_bitcmp1_b32 s99, {sIDX}
    s_cbranch_scc1 L_reclaim
    {L}:''')

def reclaim(e):
    L = e.lab('cl'); D = e.lab('cld'); N = e.lab('cln'); W = e.lab('clw'); A = e.lab('cla')
    e(f'''L_reclaim:
    s_waitcnt vmcnt(0)
    s_cmp_lg_u32 {sW}, 0
    s_cbranch_scc1 {W}
    s_mov_b64 exec, 1
    {L}:
    s_ff0_i32_b32 {sIDX}, s99
    s_cmp_lt_i32 {sIDX}, 0
    s_cbranch_scc0 {A}
    s_add_u32 {sGRP}, {sGRP}, 1
    s_and_b32 {sGRP}, {sGRP}, 7
    s_mov_b32 {sIDX}, 0
    v_mov_b32 v2, 0
    v_mov_b32 v3, 1
    global_atomic_or v2, v3, {DBG} offset:{D_MIX}
    s_waitcnt vmcnt(0)
    s_add_u32 {sOWN}, {sOWN}, 1
    s_cmp_lt_u32 {sOWN}, 8
    s_cbranch_scc1 {A}
    s_mov_b32 {sGRP}, 8
    s_branch {D}
    {A}:
    s_lshl_b32 s99, {sGRP}, 2
    v_mov_b32 v2, s99
    s_lshl_b32 s99, 1, {sIDX}
    v_mov_b32 v3, s99
    global_atomic_or v3, v2, v3, {DBG} sc0
    s_waitcnt vmcnt(0)
    v_readfirstlane_b32 s99, v3
    s_bitcmp1_b32 s99, {sIDX}
    s_cbranch_scc1 {L}
    {D}:
    v_mov_b32 v2, {sGRP}
    v_mov_b32 v3, {sIDX}
    ds_write_b64 v{vCL}, v[2:3]
    s_mov_b64 exec, -1
    s_waitcnt lgkmcnt(0)
    {W}:
    s_barrier
    ds_read_b64 v[2:3], v{vCL}
    s_lshl_b32 s99, {sW}, 6
    v_mbcnt_lo_u32_b32 v0, -1, 0
    v_mbcnt_hi_u32_b32 v0, -1, v0
    v_add_u32 v0, s99, v0
    s_waitcnt lgkmcnt(0)
    v_readfirstlane_b32 {sGRP}, v2
    v_readfirstlane_b32 {sIDX}, v3
    s_cmp_ge_u32 {sGRP}, 8
    s_cbranch_scc1 L_exit
    s_and_b32 {sIDX}, {sIDX}, 31
    s_mov_b32 {sOWN}, 1
    s_barrier
    s_branch L_dispatch''')

def count_in(e, cnt, n, go, v):
    L = e.lab('ci')
    e(f'''s_mov_b64 exec, 1
    v_mov_b32 v{v}, 0
    v_mov_b32 v{v+1}, 1
    global_atomic_add v{v+2}, v{v}, v{v+1}, {DBG} offset:{cnt} sc0
    s_waitcnt vmcnt(0)
    v_cmp_ne_u32 vcc, {n-1}, v{v+2}
    s_cbranch_vccnz {L}
    global_store_dword v{v}, v{v+1}, {DBG} offset:{go} sc1
    {L}:
    s_mov_b64 exec, -1''')

def wait_go(e, mask, v, sleep=2):
    L = e.lab('gs'); D = e.lab('gsd')
    e(f'''v_mbcnt_lo_u32_b32 v{v}, -1, 0
    v_lshlrev_b32 v{v}, 2, v{v}
    s_mov_b64 exec, {mask}
    {L}:
    global_load_dword v{v+1}, v{v}, {DBG} offset:128 sc1
    s_waitcnt vmcnt(0)
    v_cmp_eq_u32 vcc, 0, v{v+1}
    s_cbranch_vccz {D}
    s_sleep {sleep}''')
    spin(e)
    e(f's_branch {L}\n{D}:\ns_mov_b64 exec, -1')

def gsync(e, v, mask):
    wait_go(e, mask, v)
    e(f'''v_readlane_b32 s99, v{v+1}, 0
    s_cmp_eq_u32 s99, 1
    s_cselect_b32 {sFAST}, 1, 0''')

def coordinate(e, v):
    L = e.lab('co'); D = e.lab('cod')
    e(f'''v_mbcnt_lo_u32_b32 v{v}, -1, 0
    v_lshlrev_b32 v{v}, 2, v{v}
    s_mov_b64 exec, 0xff
    {L}:
    global_load_dword v{v+1}, v{v}, {DBG} sc1
    s_waitcnt vmcnt(0)
    v_cmp_ne_u32 vcc, -1, v{v+1}
    s_cbranch_vccz {D}
    s_sleep 8''')
    spin(e)
    e(f'''s_branch {L}
    {D}:
    s_mov_b64 exec, 1
    global_atomic_or v{v+1}, v{v}, v{v}, {DBG} offset:{D_MIX} sc0
    s_waitcnt vmcnt(0)
    v_add_u32 v{v+1}, 1, v{v+1}
    global_store_dword v{v}, v{v+1}, {DBG} offset:{G_GO} sc1
    s_mov_b64 exec, -1''')

def probe_near(e, v):
    L = e.lab('pn')
    e(f'''s_mov_b64 exec, 1
    v_mov_b32 v{v}, 0
    s_mov_b32 s40, -1
    s_mov_b32 s41, -1
    s_mov_b32 s42, 0
    {L}:''')
    for c in range(2):
        P = e.lab('pp')
        e(f'''s_lshl_b32 s43, s42, 8
        s_add_u32 s43, s43, {8192*c}
        s_mov_b32 s44, 0
        buffer_store_dword v{v}, off, {WS}, s43 sc1
        {P}:
        s_add_u32 s44, s44, 1
        s_getreg_b32 s45, hwreg(HW_REG_IB_STS, 0, 4)
        s_cmp_lt_u32 s44, 4000
        s_cselect_b32 s45, s45, 0
        s_cmp_lg_u32 s45, 0
        s_cbranch_scc1 {P}
        s_min_u32 s{40+c}, s{40+c}, s44''')
    e(f'''s_add_u32 s42, s42, 1
    s_cmp_lt_u32 s42, 4
    s_cbranch_scc1 {L}
    s_cmp_lt_u32 s40, s41
    s_cselect_b32 s42, 1, 2
    s_lshl_b32 s40, s40, 8
    s_lshl_b32 s41, s41, 20
    s_or_b32 s42, s42, s40
    s_or_b32 s42, s42, s41
    v_mov_b32 v{v+1}, s42
    global_store_dword v{v}, v{v+1}, {DBG} offset:{G_NEAR} sc1
    s_mov_b64 exec, -1''')

TRACE = [0]
WS_TR = 0x8000000
def trace(e, slot, v, idx=None):
    if not TRACE[0] or (TRACE[0] >= 3 and idx and slot != 320): return
    L = e.lab('tr')
    e(f'''s_cmp_lg_u32 {sW}, 0
    s_cbranch_scc1 {L}
    {'s_memrealtime' if TRACE[0] != 2 else 's_memtime'} s[100:101]
    s_waitcnt lgkmcnt(0)
    s_lshl_b32 s101, {sGRP}, 5
    s_add_u32 s101, s101, {sIDX}
    s_lshl_b32 s101, s101, 9
    s_add_u32 s101, s101, {slot}
    {f's_add_u32 s101, s101, {idx}' if idx else ''}
    s_lshl_b32 s101, s101, 2
    s_add_u32 s101, s101, {WS_TR}
    s_mov_b64 exec, 1
    v_mov_b32 v{v}, s100
    buffer_store_dword v{v}, off, {WS}, s101
    s_mov_b64 exec, -1
    {L}:''')

DIAG = [0]
def diag(e, word, v):
    if not DIAG[0]: return
    L = e.lab('dg')
    e(f'''s_or_b32 s100, {sW}, {sIDX}
    s_cbranch_scc1 {L}
    s_memrealtime s[100:101]
    s_waitcnt lgkmcnt(0)
    s_sub_u32 s100, s100, s94
    s_mov_b64 exec, 1
    v_mov_b32 v{v}, s100
    v_mov_b32 v{v+1}, 0
    global_store_short v{v+1}, v{v}, {DBG} offset:{word} sc1
    s_mov_b64 exec, -1
    {L}:''')
```

```python
from common import *
sH = sIDX
sS, sBUF, sHS, sOUT, sFL, sT0, sT1 = 's28', 's29', 's30', 's32', 's33', 's34', 's35'
vA16, vRD = 2, 3
HB = 40960

def load_weights(e, name, kind, claim=True):
    srd(e, 8, name)
    e(f'''v_and_b32 v1, 63, v0
    v_lshlrev_b32 v{vA16}, 4, v1
    v_and_b32 v4, 15, v1
    v_lshrrev_b32 v5, 4, v1
    v_lshlrev_b32 v6, 2, v5
    v_xor_b32 v6, v6, v4
    v_lshlrev_b32 v6, 4, v6
    v_lshl_add_u32 v6, v5, 13, v6
    s_lshl_b32 {sT0}, {sH}, 8
    s_lshl_b32 {sT1}, {sW}, 17
    s_add_u32 {sT0}, {sT0}, {sT1}
    v_add_u32 v6, {sT0}, v6
    s_lshl_b32 {sT1}, {sW}, 12
    s_waitcnt lgkmcnt(0)''')
    srd_fin(e, 8, name)
    for n in range(10):
        e(f's_add_u32 m0, {sT1}, {n*16384}')
        for t in range(4):
            e(f's_mov_b32 {sT0}, {(64*n + 4*t)*8192 - 1024*t}')
            e(f'buffer_load_dwordx4 v6, s[8:11], {sT0} offen offset:{1024*t} lds')
    e(f'''v_bfe_u32 v7, v1, 2, 2           ; rr
    v_and_b32 v8, 3, v1              ; cc
    v_and_b32 v9, 1, v5              ; G&1
    v_lshrrev_b32 v10, 1, v5         ; kh''')
    if kind == 'v':
        e('v_mov_b32 v11, v8\nv_mov_b32 v12, v9')
    else:
        e('v_and_b32 v11, 1, v8\nv_lshl_add_u32 v11, v9, 1, v11\nv_lshrrev_b32 v12, 1, v8')
    e(f'''v_xor_b32 v13, {sW}, v7
    v_lshl_add_u32 v11, v13, 2, v11
    v_lshlrev_b32 v11, 4, v11
    v_lshl_add_u32 v11, v12, 3, v11
    v_lshl_add_u32 v11, v7, 8, v11
    v_lshl_add_u32 v11, v10, 11, v11''')
    for n in range(10):
        e(f's_waitcnt vmcnt({4*(9-n)})\ns_barrier')
        e(f'v_add_u32 v12, {n*16384}, v11')
        for k in range(4):
            for t in range(2):
                a = 4*(4*n + k) + 2*t
                e(f'ds_read_b64_tr_b16 a[{a}:{a+1}], v12 offset:{4096*k + 1024*t}')
        e('s_waitcnt lgkmcnt(0)')
        if n == 7 and claim: claim_issue(e)
    if claim: claim_check(e, 0)

def h_dma():
    out = []
    for j in range(10):
        x = f's_add_u32 m0, {sBUF}, {1024*j}\ns_add_u32 {sT0}, {sHS}, {1024*j}\n' if j % 4 == 0 else ''
        out.append(x + f'buffer_load_dwordx4 v{vA16}, {WS}, {sT0} offen offset:{1024*(j%4)} sc1 lds')
    out.append(f'''s_add_u32 {sHS}, {sHS}, {HB}
    s_add_u32 {sBUF}, {sBUF}, {HB}
    s_sub_u32 {sT0}, {sBUF}, {3*HB}
    s_cselect_b32 {sBUF}, {sBUF}, {sT0}''')
    return out

def start_h(e, mask=40, first=0):
    trace(e, 1, 4)
    wait_go(e, mask, 4)
    trace(e, 3, 4); diag(e, 62, 4)
    e(f'''s_barrier
    s_mul_i32 {sBUF}, {sW}, 10240
    s_add_u32 {sHS}, {sBUF}, {WS_H + first*HB}
    s_mov_b32 {sS}, 0
    s_mov_b32 s36, 0''')
    e(J(h_dma() + h_dma()))

def gemm(e, kind, ACC, FR, extra=(), every=1):
    D = 5; extra = list(extra)
    e(f'v_add_u32 v{vRD}, s36, v{vA16}')
    def rd(k): return f'ds_read_b128 {vr(FR+4*(k%(D+2)),4)}, v{vRD} offset:{1024*k}'
    for k in range(D): e(rd(k))
    e(f'''s_add_u32 s36, s36, {HB}
    s_cmp_eq_u32 s36, {3*HB}
    s_cselect_b32 s36, 0, s36''')
    for k in range(40):
        if k + D < 40: e(rd(k+D))
        e(f's_waitcnt lgkmcnt({min(D, 39-k)})')
        w = f'a[{4*k}:{4*k+3}]'; f = vr(FR+4*(k%(D+2)), 4)
        a, b = (f, w) if kind == 'v' else (w, f)
        e(f'v_mfma_f32_32x32x16_bf16 {vr(ACC,16)}, {a}, {b}, {"0" if k == 0 else vr(ACC,16)}')
        if extra and k % every == 0: e(extra.pop(0))
    assert not extra

def gen_KV(e, kind):
    F = F_K if kind == 'k' else F_V
    e(f's_lshl_b32 {sFL}, {sH}, 8\ns_add_u32 {sFL}, {sFL}, {F}')
    load_weights(e, 'wk' if kind == 'k' else 'wv', kind)
    if kind == 'k':
        P = e.lab('nopr')
        e(f's_or_b32 {sT0}, {sH}, {sW}\ns_cbranch_scc1 {P}')
        probe_near(e, 4)
        e(f'{P}:')
    start_h(e)
    ACC = 16; FR = 32; PK = 8
    e(f'''s_lshl_b32 {sOUT}, {sH}, 13
    s_lshl_b32 {sT0}, {sW}, 11
    s_add_u32 {sOUT}, {sOUT}, {sT0}
    s_add_u32 {sOUT}, {sOUT}, {WS_K if kind == 'k' else WS_V}
    s_waitcnt vmcnt(10)''')
    L = e.lab('kv'); N = e.lab('kvn'); E = e.lab('kve')
    e(f'''s_mov_b32 {sT1}, 0
    {L}:
    s_barrier
    s_cmp_lg_u32 {sW}, 0
    s_cbranch_scc1 {N}''')
    set_flag(e, sFL, sT1, 1)
    trace(e, 64, 1, sS)
    e(f'{N}:')
    gemm(e, kind, ACC, FR, h_dma(), 3)
    for i in range(8): e(f'v_cvt_pk_bf16_f32 v{PK+i}, v{ACC+2*i}, v{ACC+2*i+1}')
    e(f'''buffer_store_dwordx4 {vr(PK,4)}, v{vA16}, {WS}, {sOUT} offen sc1
    buffer_store_dwordx4 {vr(PK+4,4)}, v{vA16}, {WS}, {sOUT} offen offset:1024 sc1
    s_add_u32 {sOUT}, {sOUT}, {32*8192}
    s_mov_b32 {sT1}, {sS}
    s_add_u32 {sS}, {sS}, 1
    s_cmp_gt_u32 {sS}, 2
    s_cbranch_scc1 {E}
    s_waitcnt vmcnt(0)
    s_mov_b32 {sT1}, {sS}
    {E}:
    s_cmp_lt_u32 {sS}, 64
    s_waitcnt vmcnt(12)
    s_cbranch_scc1 {L}
    s_waitcnt vmcnt(0)
    s_barrier''')
    set_flag(e, sFL, 64, 1)
    trace(e, 4, 1)
    e(f's_mov_b32 s27, {3 if kind == "k" else 4}\ns_branch L_join')

def gen_QA(e, cfg={}):
    def pt(i):
        if cfg.get('qprof'): e(f's_memtime s[{64+2*i}:{65+2*i}]')
    sKV, sKM, sVM, sC, sN = 's37', 's38', 's39', 's40', 's41'
    e(f's_lshl_b32 {sFL}, {sH}, 8\ns_add_u32 {sFL}, {sFL}, {F_QA}')
    claim_issue(e); claim_check(e)
    La = e.lab('arm')
    e(f'''v_mov_b64 v[8:9], -1
    v_mov_b64 v[10:11], -1
    v_mov_b64 v[12:13], 0
    v_lshlrev_b32 v6, 4, v0
    v_lshlrev_b32 v7, 3, v0
    s_lshl_b32 {sT0}, {sH}, 11
    s_add_u32 {sT0}, {sT0}, {WS_FLAG}
    buffer_store_dwordx2 v[12:13], v7, {WS}, {sT0} offen sc1
    s_lshl_b32 {sT0}, {sH}, 12
    s_add_u32 {sT0}, {sT0}, {WS_M}
    buffer_store_dwordx4 v[8:11], v6, {WS}, {sT0} offen sc1
    s_mul_i32 {sT0}, {sH}, {18*4096}
    s_add_u32 {sT0}, {sT0}, {WS_VX}''')
    for j in range(18): e(f'buffer_store_dwordx4 v[8:11], v6, {WS}, {sT0} offen sc1\ns_add_u32 {sT0}, {sT0}, 4096')
    e(f's_waitcnt vmcnt(0)\ns_barrier\ns_cmp_lg_u32 {sW}, 0\ns_cbranch_scc1 {La}')
    count_in(e, D_ARM, 32, G_ARM, 8)
    e(f'{La}:')
    load_weights(e, 'wq', 'q', False)
    NP = cfg.get('park', 4)
    start_h(e, first=64-NP if NP else 0)
    LQ = 3*HB
    vQw, vQr, vK, vV, vFL, vF, vVM, vLF = 4, 5, 6, 7, 8, 9, 10, 11
    vKr, vVr = 170, 171
    BIAS = 12
    ACC = 20; FR = 36
    KX = 64; VX = 96; KM = 112; VM = 128; Q = 136
    S = 152; PX = 164; PM = 168; ONE = 172; O = 176; SUM = 192; T = 196; OP = 200
    e(f'''v_and_b32 v20, 15, v1            ; rho
    v_lshrrev_b32 v21, 4, v1         ; g
    s_and_b32 {sT0}, {sW}, 1
    s_lshr_b32 {sT1}, {sW}, 1        ; e half
    s_lshl_b32 s42, {sW}, 11
    s_add_u32 s42, s42, {LQ}
    v_add_u32 v{vQw}, s42, v{vA16}
    v_lshlrev_b32 v22, 9, v21
    v_lshl_add_u32 v23, v20, 4, v22
    s_lshl_b32 s42, {sT0}, 8
    s_add_u32 s42, s42, {LQ}
    v_add_u32 v{vQr}, s42, v23
    s_lshl_b32 s42, {sW}, 11
    v_add_u32 v{vV}, s42, v23
    v_add_u32 v22, s42, v22
    s_lshl_b32 s47, {sW}, 10
    s_lshl_b32 s48, {sW}, 12
    v_add_u32 v{vKr}, {LQ + 8192 + 256}, v{vA16}
    s_lshl_b32 s42, {sT1}, 13
    v_add_u32 v{vVr}, s42, v{vKr}
    v_lshrrev_b32 v24, 3, v20
    v_lshl_add_u32 v24, v24, 8, v22
    v_and_b32 v25, 7, v20
    v_lshl_add_u32 v{vK}, v25, 4, v24
    s_lshl_b32 s42, {sT1}, 10
    v_lshl_add_u32 v{vVM}, v1, 3, s42
    s_lshl_b32 {sOUT}, {sT0}, 17
    s_lshl_b32 s42, {sH}, 12
    s_add_u32 {sOUT}, {sOUT}, s42
    s_add_u32 {sKM}, s42, {WS_KM}
    s_lshr_b32 s42, s42, 1
    s_add_u32 {sVM}, s42, {WS_VM}
    s_lshl_b32 s42, {sT1}, 11
    s_add_u32 {sOUT}, {sOUT}, s42
    s_add_u32 {sOUT}, {sOUT}, {WS_O}
    s_lshl_b32 {sKV}, {sH}, 13
    s_add_u32 {sKV}, {sKV}, {WS_K}
    s_mov_b32 {sC}, {f2u(128 ** -0.5 * math.log2(math.e))}
    s_lshl_b32 s42, {sT0}, 4
    v_add_u32 v20, s42, v20
    v_lshrrev_b32 v22, 1, v21
    v_and_b32 v23, 1, v21
    v_lshlrev_b32 v23, 2, v23
    v_lshl_add_u32 v22, v22, 4, v23
    v_mov_b32 v24, {f2u(-1e30)}''')
    for kt in range(2):
        for r in range(4):
            e(f'v_add_u32 v23, {8*kt+r}, v22\nv_cmp_gt_u32 vcc, v23, v20\nv_cndmask_b32 v{BIAS+4*kt+r}, 0, v24, vcc')
    e(f'''v_lshlrev_b32 v{vFL}, 13, v1
    s_lshl_b32 s43, {sH}, 8
    s_add_u32 s43, s43, {F_K}''')
    for i in range(4): e(f'v_mov_b32 v{ONE+i}, 0x3f803f80\nv_mov_b32 v{VM+2*i+1}, 0')
    e(f'v_mov_b32 v{PM+1}, 0\ns_mov_b32 s44, 0')
    LF = LQ + 8192
    M, M2 = FR, FR+1
    LK = LF + 256
    def fetch():
        ld = [f's_add_u32 m0, s47, {LK + 16384}\ns_add_u32 s45, {sKM}, s47\nbuffer_load_dwordx4 v{vA16}, {WS}, s45 offen sc1 lds']
        for kk in range(2): ld.append(f'buffer_load_dwordx2 {vr(T+2*kk,2)}, v{vVM}, {WS}, {sVM} offen offset:{512*kk} sc1')
        ld.append(f's_add_u32 m0, s48, {LK}\ns_sub_u32 s45, {sKV}, {1024-128}\nbuffer_load_dwordx4 v{vK}, {WS}, {sKV} offen sc1 lds')
        ld.append(f'buffer_load_dwordx4 v{vK}, {WS}, s45 offen offset:1024 sc1 lds')
        ld.append(f's_add_u32 s45, {sKV}, {WS_V - WS_K - 2048}\nbuffer_load_dwordx4 v{vV}, {WS}, s45 offen offset:2048 sc1 lds')
        ld.append(f's_add_u32 s45, {sKV}, {WS_V - WS_K - 3072 + 256}\nbuffer_load_dwordx4 v{vV}, {WS}, s45 offen offset:3072 sc1 lds')
        return ld
    def qout(young):
        for i in range(8): e(f'v_cvt_pk_bf16_f32 v{FR+i}, v{ACC+2*i}, v{ACC+2*i+1}')
        e(f"""ds_write_b128 v{vQw}, {vr(FR,4)}
        ds_write_b128 v{vQw}, {vr(FR+4,4)} offset:1024
        s_waitcnt vmcnt({young}) lgkmcnt(0)
        s_barrier""")
    qrd = [f'ds_read_b128 {vr(Q+4*kap,4)}, v{vQr} offset:{2048*kap}' for kap in range(4)]
    def attend(last, Qr=None):
        Qo = (lambda k: vr(Q+4*k, 4)) if Qr is None else (lambda k: f'a[{Qr+4*k}:{Qr+4*k+3}]')
        for kap in range(4):
            for kt in range(2): e(f'ds_read_b128 {vr(KX+8*kap+4*kt,4)}, v{vKr} offset:{4096*kap + 1024*kt}')
            e(f'ds_read_b128 {vr(KM+4*kap,4)}, v{vKr} offset:{16384 + 1024*kap}')
        for kap in range(4):
            for kt in range(2):
                e(f'@wl\nv_mfma_f32_16x16x32_bf16 {vr(S+4*kt,4)}, {vr(KX+8*kap+4*kt,4)}, {Qo(kap)}, {vr(BIAS+4*kt,4) if kap == 0 else vr(S+4*kt,4)}')
            e(f'@wl\nv_mfma_f32_16x16x32_bf16 {vr(S+8,4)}, {vr(KM+4*kap,4)}, {Qo(kap)}, {"0" if kap == 0 else vr(S+8,4)}')
            e(f'v_mov_b32 v{VM+2*kap}, v{T+kap}')
        for i in range(4): e(f'ds_read_b128 {vr(VX+4*i,4)}, v{vVr} offset:{4096*(i//2) + 2048 + 1024*(i%2)}')
        e(f"""s_add_u32 {sKV}, {sKV}, {32*8192}
        s_add_u32 {sKM}, {sKM}, {32*4096}
        s_add_u32 {sVM}, {sVM}, {32*2048}""")
        if not last: e(J(qrd)); pt(4)
        e(f"""v_max3_f32 v{M}, v{S}, v{S+1}, v{S+2}
        v_max3_f32 v{M}, v{M}, v{S+3}, v{S+4}
        v_max3_f32 v{M}, v{M}, v{S+5}, v{S+6}
        v_max3_f32 v{M}, v{M}, v{S+7}, v{S+10}
        v_max_f32 v{M2}, v{M}, v{S+11}
        v_max_f32 v{M}, v{M}, v{S+11}
        v_permlane16_swap_b32 v{M}, v{M2}
        v_max_f32 v{M2+1}, v{M}, v{M2}
        v_max_f32 v{M}, v{M}, v{M2}
        v_permlane32_swap_b32 v{M}, v{M2+1}
        v_max_f32 v{M}, v{M}, v{M2+1}
        v_mul_f32 v{M}, {sC}, v{M}""")
        sv = [S+i for i in range(8)] + [S+10, S+11]
        for x in sv: e(f'v_fma_f32 v{x}, v{x}, {sC}, -v{M}')
        for x in sv: e(f'v_exp_f32 v{x}, v{x}')
        for i in range(4): e(f'v_cvt_pk_bf16_f32 v{PX+i}, v{S+2*i}, v{S+2*i+1}')
        e(f"""v_cvt_pk_bf16_f32 v{PM}, v{S+10}, v{S+11}
        v_mfma_f32_16x16x32_bf16 {vr(SUM,4)}, {vr(ONE,4)}, {vr(PX,4)}, 0""")
        for i in range(4): e(f'@wl\nv_mfma_f32_16x16x32_bf16 {vr(O+4*i,4)}, {vr(VX+4*i,4)}, {vr(PX,4)}, 0')
        e(f'v_mfma_f32_16x16x16_bf16 {vr(SUM,4)}, {vr(ONE,2)}, {vr(PM,2)}, {vr(SUM,4)}')
        for i in range(4): e(f'v_mfma_f32_16x16x16_bf16 {vr(O+4*i,4)}, {vr(VM+2*i,2)}, {vr(PM,2)}, {vr(O+4*i,4)}')
        if not last: pt(5)
        if not last:
            W = e.lab('qaw')
            e(f"""s_cmp_lg_u32 {sW}, 0
            s_cbranch_scc1 {W}
            s_waitcnt vmcnt(1)
            ds_write_b32 v{vLF}, v{vF}
            {W}:""")
        if not last: pt(6)
        e(f'v_rcp_f32 v{M}, v{SUM}')
        for i in range(8): e(f'v_pk_mul_f32 {vr(O+2*i,2)}, {vr(O+2*i,2)}, {vr(M,2)} op_sel_hi:[1,0]')
        for i in range(8): e(f'v_cvt_pk_bf16_f32 v{OP+i}, v{O+2*i}, v{O+2*i+1}')
        e(f"""buffer_store_dwordx4 {vr(OP,4)}, v{vA16}, {WS}, {sOUT} offen sc1
        buffer_store_dwordx4 {vr(OP+4,4)}, v{vA16}, {WS}, {sOUT} offen offset:1024 sc1
        s_add_u32 {sOUT}, {sOUT}, {2*32*4096}""")
    e(f"""v_lshlrev_b32 v{vLF}, 2, v1
    v_add_u32 v{vLF}, {LF}, v{vLF}
    v_mov_b32 v{vF}, 0
    ds_write_b32 v{vLF}, v{vF}
    s_waitcnt vmcnt(10)
    s_barrier""")
    for i in range(NP):
        if i == NP - 2: e(f's_sub_u32 {sHS}, {sHS}, {64*HB}')
        gemm(e, 'q', ACC, FR, h_dma(), 3)
        qout(10)
        for kap in range(4): e(f'ds_read_b128 a[{160+16*i+4*kap}:{163+16*i+4*kap}], v{vQr} offset:{2048*kap}')
        e('s_waitcnt lgkmcnt(0)\ns_barrier')
    gemm(e, 'q', ACC, FR, h_dma(), 3)
    qout(10)
    e(J(qrd))
    L = e.lab('qa'); G = e.lab('qag'); N = e.lab('qan'); N2 = e.lab('qan2'); Z = e.lab('qaz')
    e(f'{L}:\ns_cmp_eq_u32 {sS}, {63-NP}\ns_cbranch_scc1 {Z}'); pt(0)
    e(f"""s_waitcnt lgkmcnt(0)
    s_barrier
    ds_read_b32 v{vF}, v{vLF}
    s_add_u32 {sN}, {sS}, 1
    s_mov_b64 exec, 15
    s_waitcnt lgkmcnt(0)
    v_cmp_gt_u32 vcc, {sN}, v{vF}
    s_mov_b64 exec, -1
    s_cbranch_vccz {G}
    s_waitcnt vmcnt(0)
    s_barrier
    s_cmp_lg_u32 {sW}, 0
    s_cbranch_scc1 {N}""")
    set_flag(e, sFL, sS, vF)
    wait_flags(e, vFL, 's43', 15, sN, vF, sleep=1)
    e(f'{N}:\ns_barrier\n{G}:')
    trace(e, 192, vF, sS)
    pt(1)
    gemm(e, 'q', ACC, FR, fetch() + h_dma(), 2)
    pt(2)
    qout(10)
    pt(3)
    e(f"""s_cmp_lg_u32 {sW}, 0
    s_cbranch_scc1 {N2}
    s_mov_b64 exec, 15
    buffer_load_dword v{vF}, v{vFL}, {WS}, s43 offen sc1""")
    trace(e, 64, M, sS)
    set_flag(e, sFL, sS, M)
    e(f'{N2}:')
    attend(False)
    pt(7)
    if cfg.get('qprof'):
        X = e.lab('tp')
        e(f's_cmp_lg_u32 {sS}, {cfg["qprof"]}\ns_cbranch_scc1 {X}\ns_waitcnt lgkmcnt(0)')
        for i in range(16): e(f'v_mov_b32 v{220+i}, s{64+2*i}')
        e(f's_lshl_b32 {sT0}, {sH}, 2\ns_add_u32 {sT0}, {sT0}, {sW}\ns_lshl_b32 {sT0}, {sT0}, 6\ns_add_u32 {sT0}, {sT0}, {WS_DBG}\ns_mov_b64 exec, 1')
        for j in range(4): e(f'buffer_store_dwordx4 {vr(220+4*j,4)}, off, {WS}, {sT0} offset:{16*j}')
        e(f's_mov_b64 exec, -1\n{X}:')
    e(f's_mov_b32 {sS}, {sN}\ns_branch {L}\n{Z}:')
    wait_flags(e, vFL, 's43', 3, 64, vF, sleep=1)
    for i in range(NP + 1):
        N3 = e.lab('qan3'); N4 = e.lab('qan4'); N5 = e.lab('qan5'); N6 = e.lab('qan6'); f = fetch()
        e('s_waitcnt lgkmcnt(0)\ns_barrier')
        e(J(f[3:]))
        e(f'''s_mov_b64 exec, 12
        buffer_load_dword v{vF}, v{vFL}, {WS}, s43 offen sc1
        s_waitcnt vmcnt(0)
        v_cmp_gt_u32 vcc, {64-NP+i}, v{vF}
        s_mov_b64 exec, -1
        s_cbranch_vccnz {N3}
        {J(f[:3])}
        {N3}:
        s_barrier
        s_cmp_lg_u32 {sW}, 1
        s_cbranch_scc1 {N4}''')
        set_flag(e, sFL, 63-NP+i, vF)
        e(f's_waitcnt vmcnt(1)\ns_cbranch_vccz {N6}\n{N4}:\ns_cbranch_vccz {N5}')
        wait_flags(e, vFL, 's43', 12, 64-NP+i, vF)
        e(J(f[:3]))
        e(f'{N5}:\ns_waitcnt vmcnt(0)\n{N6}:\ns_waitcnt lgkmcnt(0)\ns_barrier\ns_mov_b32 {sS}, {63-NP+i}')
        trace(e, 192, vF, sS)
        attend(True, 160 + 16*(i-1) if i else None)
    e(f's_waitcnt vmcnt(0)\ns_barrier\ns_cmp_lg_u32 {sW}, 0\ns_cbranch_scc1 L_exit')
    set_flag(e, sFL, 64, vF)
    trace(e, 4, vF); diag(e, 58, 20)
    e('s_branch L_exit')
```

```python
from common import *

def f2u(x): return struct.unpack('<I', struct.pack('<f', x))[0]
SCALE_LOG2E = f2u(128 ** -0.5 * math.log2(math.e))

WS = 's[4:7]'
sH, sW, sA = 's25', 's26', 's27'
sSTEP, sUNIT, sNEAR, sSPIN = 's28', 's29', 's30', 's31'
sMP, sPubS, sPubF, sRstS, sRstF = 's32', 's33', 's34', 's35', 's36'
sVXst, sVXld, sTAG = 's37', 's38', 's39'
sPst, sPld, sPrst = 's40', 's41', 's42'
sK, sV, sKM = 's43', 's44', 's45'
sC = 's46'
sMPc, sSc, sFc, sVXo, sVXp, sPc = 's47', 's48', 's49', 's50', 's51', 's52'
sT0, sT1, sT2, sT3 = 's53', 's54', 's55', 's56'
sEB0 = 's[58:59]'
sEPUB = 's[60:61]'
sEKM = 's[12:13]'; sEVM = 's[14:15]'; sVM = 's16'; sPro = 's17'; sPro2 = 's18'; sPrst2 = 's19'; sV2 = 's20'; sEX = 's[62:63]'; sSEEN = 's22'; sFK = 's23'; sFR = 's2'; sK2 = 's21'; sXo = 's57'; sXd = 's35'; sFP = 's[10:11]'; sSN = 's[8:9]'

L_MEM, L_SX, L_SM, L_O, L_SEL, L_KV = 0, 10240, 14336, 15360, 17408, 18432

vIDX = 1; vID = 2
vA16, vM16, vM4, vMrd, vMrd4, vPerm, vSwr, vSwr2, vOwr, vPst4, vPst1, vPub, vKld, vVld, vStg, vStg2 = range(4, 20)
vT = 20
vPL = 22
vVrd = 0
vA = 32
vACC = 52
vKX = 76; vVX = 84; vREM = 92
vSTG = 96

def vr(b, n=1): return f'v{b}' if n == 1 else f'v[{b}:{b+n-1}]'

def srd(e, s, name):
    e(f's_load_dwordx2 s[{s}:{s+1}], s[0:1], {KA[name]}')
def srd_fin(e, s, name):
    e(f's_mov_b32 s{s+2}, {SZ[name]}\ns_mov_b32 s{s+3}, 0x20000')

def interleave(e, mf, fill, per=1, start=0):
    fill = list(fill)
    for i, m in enumerate(mf):
        e(m)
        if i >= start:
            for _ in range(per):
                if fill: e(fill.pop(0))
    for f in fill: e(f)

class RCfg:
    fast = 1; stamps = 0; nsteps = 64; standalone = 1; near = -1; cap = 40
    d1 = 40; d2 = 150; gap = 120; gapA = 140; KA = 2; rmode = 2; rp = 24; vl = 51; vchk = 2; vd = 30; smax = 1; xp = 3; dr = 300; vsplit = 0; warm = 15; dp = (9, 10, 30, 60); r2 = 0; v2 = 0; kmp = 0; vmode = 0; prm = 0; pvo = 0
    nokv = 0; nokm = 0; kmfull = 1; novm = 0

def tiles_plan():
    lds = [('q','L',0), ('k','L',0), ('q','R',0), ('k','R',0), ('o','',3), ('o','',4)]
    allt = [(m,'L',c) for c in range(5) for m in 'vqk'] + [(m,'R',c) for c in range(5) for m in 'qk'] + [('o','',t) for t in range(5)]
    reg = [t for t in allt if t not in lds]
    loc = {}
    for i, t in enumerate(reg):
        loc[t] = ('a', 16*i) if i < 16 else ('v', 128 + 16*(i-16))
    order = reg + lds
    slot = {t: n % 10 for n, t in enumerate(order)}
    for i, t in enumerate(lds): loc[t] = ('v', vSTG + 16*(i % 2))
    return order, loc, slot, lds

def gen_R(e, cfg):
    order, loc, slot, lds = tiles_plan()
    def W(t, j):
        k, b = loc[t]; return f'{k}[{b+8*j}:{b+8*j+7}]'
    def stamp(i):
        if cfg.stamps == 1: e(f's_memtime s[{64+2*i}:{65+2*i}]')
        e(f'; MARK {i}')
    def mk(i):
        if cfg.stamps == 4: e(f's_memtime s[{64+2*i}:{65+2*i}]')
    def nops(c):
        n = c // 4
        while n > 0:
            k = min(n, 16); e(f's_nop {k-1}'); n -= k
    srd(e, 8, 'wq'); srd(e, 12, 'wk'); srd(e, 16, 'wv'); srd(e, 20, 'wo')
    e(f'''
    v_and_b32 v0, 63, v0
    v_and_b32 v40, 15, v0            ; rho
    v_lshrrev_b32 v41, 4, v0         ; g
    v_lshlrev_b32 {vr(vA16)}, 4, v0
    s_waitcnt lgkmcnt(0)''')
    srd_fin(e, 8, 'wq'); srd_fin(e, 12, 'wk'); srd_fin(e, 16, 'wv'); srd_fin(e, 20, 'wo')
    e(f'''
    v_and_b32 v42, 1, v41
    v_lshrrev_b32 v43, 1, v41        ; rr>>1
    s_lshr_b32 {sT0}, {sW}, 1
    s_and_b32 {sT1}, {sW}, 1
    v_lshlrev_b32 v44, 2, v41
    v_xor_b32 v44, v44, v40
    v_lshlrev_b32 v44, 4, v44
    s_lshl_b32 {sT2}, {sH}, 8
    v_add_u32 v44, {sT2}, v44
    v_lshlrev_b32 v45, 6, v42
    v_lshl_add_u32 v45, v43, 1, v45
    s_lshl_b32 {sT2}, {sT0}, 2
    s_add_u32 {sT2}, {sT2}, {sT1}
    v_add_u32 v45, {sT2}, v45
    v_lshl_add_u32 v60, v45, 13, v44
    v_lshl_add_u32 v45, v43, 3, v42
    s_lshl_b32 {sT2}, {sT0}, 4
    s_lshl_b32 {sT3}, {sT1}, 2
    s_add_u32 {sT2}, {sT2}, {sT3}
    v_add_u32 v45, {sT2}, v45
    v_lshl_add_u32 v61, v45, 13, v44
    v_bfe_u32 v45, v0, 3, 1
    v_bfe_u32 v46, v0, 4, 1
    v_lshl_add_u32 v45, v46, 3, v45
    v_lshrrev_b32 v46, 5, v0
    v_lshl_add_u32 v45, v46, 2, v45
    s_lshl_b32 {sT2}, {sT0}, 6
    s_lshl_b32 {sT3}, {sT1}, 4
    s_add_u32 {sT2}, {sT2}, {sT3}
    v_add_u32 v45, {sT2}, v45
    v_mul_u32_u24 v45, 1280, v45
    v_and_b32 v46, 7, v0
    v_lshlrev_b32 v47, 1, v41
    v_xor_b32 v46, v46, v47
    v_lshl_add_u32 v45, v46, 4, v45
    s_mul_i32 {sT2}, {sH}, 163840
    s_mul_i32 {sT3}, {sA}, 640
    s_add_u32 {sT2}, {sT2}, {sT3}
    v_add_u32 v62, {sT2}, v45
    v_bfe_u32 v45, v0, 2, 2          ; rr
    v_and_b32 v46, 3, v0             ; cc
    v_xor_b32 v47, {sW}, v45
    v_lshl_add_u32 v47, v47, 2, v46
    v_lshlrev_b32 v47, 4, v47
    v_lshl_add_u32 v47, v45, 8, v47
    v_lshl_add_u32 v63, v41, 12, v47
    v_lshl_add_u32 v47, v42, 2, v45  ; (gB&1)*4+rr
    v_lshrrev_b32 v48, 1, v47
    v_xor_b32 v48, {sW}, v48
    v_lshlrev_b32 v48, 5, v48
    v_lshl_add_u32 v48, v46, 3, v48
    v_lshl_add_u32 v48, v47, 7, v48
    v_lshl_add_u32 v64, v43, 12, v48
    s_mul_i32 s57, {sA}, {320*8192}
    s_sub_u32 s62, {320*8192}, s57
    s_lshl_b32 s63, {sW}, 12
    v_add_u32 {vr(vStg)}, s63, {vr(vA16)}''')
    def dma(n):
        m, side, c = order[n]
        e(f's_add_u32 m0, s63, {slot[order[n]]*16384}')
        for t4 in range(4):
            if m == 'o':
                so = (32*(t4 >> 1) + 2*(t4 & 1))*1280 - 1024*t4 + 128*c
                e(f's_mov_b32 {sT0}, {so}')
                e(f'buffer_load_dwordx4 v62, s[20:23], {sT0} offen offset:{1024*t4} lds')
            else:
                rows = (16*c + 128*(t4 & 1) + 8*(t4 >> 1)) if c < 4 else (256 + 32*(t4 >> 1) + 2*(t4 & 1))
                so = rows*8192 - 1024*t4
                e(f's_add_u32 {sT0}, {"s57" if side == "L" else "s62"}, {so}')
                s = dict(q=8, k=12, v=16)[m]
                e(f'buffer_load_dwordx4 {"v60" if c < 4 else "v61"}, s[{s}:{s+3}], {sT0} offen offset:{1024*t4} lds')
    e(f'''    ; reducer unit
    s_mov_b32 {sUNIT}, -1
    s_cmp_eq_u32 {sW}, 0
    s_cselect_b32 {sUNIT}, {sH}, {sUNIT}
    s_and_b32 {sT0}, {sH}, 3
    s_lshl_b32 {sT0}, {sT0}, 2
    s_or_b32 {sT0}, {sT0}, {sW}
    s_lshr_b32 {sT1}, {sH}, 2
    s_add_u32 {sT1}, {sT1}, 32
    s_cmp_eq_u32 {sT0}, 1
    s_cselect_b32 {sUNIT}, {sT1}, {sUNIT}
    s_cmp_lt_i32 {sUNIT}, 0
    s_cselect_b32 {sT0}, {sH}, {sUNIT}
    s_lshl_b32 {sT0}, {sT0}, 7
    v_and_b32 v54, 7, v0
    v_lshlrev_b32 v55, 3, v54
    v_lshl_add_u32 v55, v42, 6, v55
    v_add_u32 {vr(vPub)}, {sT0}, v55
    s_mov_b32 s60, 0x00ff00ff
    s_mov_b32 s61, 0
    s_lshl_b32 {sT0}, {sA}, 5
    s_add_u32 {sT0}, {sT0}, {sH}
    s_lshl_b32 {sT0}, {sT0}, 8
    s_add_u32 {sFR}, {sT0}, {F_R}''')
    for n in range(10): dma(n)
    e(f'''
    v_bfe_u32 v45, v0, 1, 1          ; b
    v_and_b32 v46, 1, v0             ; i&1
    v_lshrrev_b32 v47, 2, v40        ; i>>1
    v_lshl_add_u32 v48, v47, 1, v46  ; i
    v_mov_b32 {vr(vIDX)}, 0x4444
    v_mov_b32 v49, 0xeeee
    v_cmp_eq_u32 vcc, 1, v45
    v_cndmask_b32 {vr(vIDX)}, {vr(vIDX)}, v49, vcc
    v_lshlrev_b32 v49, 4, v48
    v_lshl_add_u32 v50, v45, 7, v49
    v_lshl_add_u32 {vr(vPerm)}, v41, 8, v50
    s_lshl_b32 {sT0}, {sW}, 10
    v_add_u32 {vr(vSwr)}, {sT0}, {vr(vPerm)}
    s_lshl_b32 {sT0}, {sW}, 2
    s_add_u32 {sT0}, {sT0}, {L_SM}
    v_add_u32 {vr(vSwr2)}, {sT0}, {vr(vPerm)}
    v_lshl_add_u32 v50, v41, 7, v49
    s_lshl_b32 {sT0}, {sW}, 9
    v_add_u32 {vr(vOwr)}, {sT0}, v50
    v_lshlrev_b32 v50, 4, v45
    v_lshl_add_u32 v50, v46, 6, v50
    v_lshl_add_u32 v51, v42, 5, v50
    v_lshl_add_u32 v51, v47, 7, v51
    v_lshl_add_u32 {vr(vMrd)}, v43, 9, v51
    v_and_b32 v51, 1, v47
    v_lshl_add_u32 v51, v51, 5, v50
    v_lshrrev_b32 v52, 1, v47
    v_lshl_add_u32 v51, v52, 7, v51
    v_lshl_add_u32 {vr(vMrd4)}, v41, 8, v51
    s_mul_i32 {sT0}, {sW}, 1280
    v_add_u32 {vr(vM16)}, {sT0}, {vr(vA16)}
    s_add_u32 {sT0}, {sT0}, 1024
    v_lshlrev_b32 v51, 2, v0
    v_add_u32 {vr(vM4)}, {sT0}, v51
    v_lshl_add_u32 v51, v52, 2, v41
    s_lshl_b32 {sT0}, {sW}, 3
    v_add_u32 v51, {sT0}, v51
    v_and_b32 v53, 7, v0
    v_lshlrev_b32 v54, 4, v53
    v_lshl_add_u32 v51, v51, 12, v54
    s_lshl_b32 {sT1}, {sH}, 7
    v_add_u32 {vr(vPst4)}, {sT1}, v51
    s_lshl_b32 {sT0}, {sW}, 1
    s_add_u32 {sT0}, {sT0}, 32
    v_add_u32 v51, {sT0}, v43
    v_and_b32 v55, 31, v0
    v_lshlrev_b32 v55, 2, v55
    v_lshl_add_u32 v51, v51, 12, v55
    v_add_u32 {vr(vPst1)}, {sT1}, v51
    s_lshl_b32 {sT0}, {sW}, 11
    v_lshl_add_u32 v51, v41, 9, {sT0}
    v_lshl_add_u32 {vr(vVld)}, v40, 4, v51
    v_lshl_add_u32 v51, v52, 8, v51
    v_add_u32 {vr(vKld)}, v51, v54
    v_mov_b32 v55, 0x3f80
    v_lshlrev_b32 v56, 4, v46
    v_lshlrev_b32 v55, v56, v55
    v_cmp_eq_u32 vcc, v47, v41
    v_cndmask_b32 v55, 0, v55, vcc
    v_cmp_eq_u32 vcc, 0, v45
    v_cndmask_b32 {vr(vID)}, 0, v55, vcc
    v_cndmask_b32 {vr(vID+1)}, v55, 0, vcc
    v_mov_b32 v65, 0x3f80
    v_bfe_u32 v66, v0, 2, 1
    v_lshlrev_b32 v66, 4, v66
    v_lshlrev_b32 v65, v66, v65
    v_cmp_gt_u32 vcc, 8, v40
    v_cndmask_b32 v65, 0, v65, vcc
    v_and_b32 v66, 3, v0''')
    for j in range(4):
        e(f'v_cmp_eq_u32 vcc, {j}, v66\nv_cndmask_b32 v{56+j}, 0, v65, vcc')
    e(f'''
    s_mov_b32 s58, 0x33333333
    s_mov_b32 s59, 0x33333333
    s_mov_b32 {sC}, {SCALE_LOG2E}
    v_add_u32 {vr(vStg2)}, 0x10000, {vr(vStg)}''')
    def wb(t):
        base = slot[t]*16384; k, b = loc[t]
        e(f'v_add_u32 v66, {base}, {vr(vStg)}')
        for j in range(4): e(f'ds_write_b128 v66, {k}[{b+4*j}:{b+4*j+3}] offset:{1024*j}')
    last = 9
    for n in range(30):
        t = order[n]
        e(f's_waitcnt vmcnt({4*(last-n)})\ns_barrier')
        if n == 10 and not cfg.standalone: claim_check(e)
        if n >= 1 and n+9 < 30: dma(n+9); last = n+9
        if n >= 1 and order[n-1] in lds: wb(order[n-1])
        k, b = loc[t]
        e(f'v_add_u32 v65, {slot[t]*16384}, {"v64" if t[0] == "o" else "v63"}')
        for j in range(2):
            for t4 in range(4):
                off = 1024*t4 + (8192*j if t[0] == 'o' else 8*j)
                e(f'ds_read_b64_tr_b16 {k}[{b+8*j+2*t4}:{b+8*j+2*t4+1}], v65 offset:{off}')
        e('s_waitcnt lgkmcnt(0)')
        if n == 9 and not cfg.standalone: claim_issue(e)
    e('s_barrier')
    wb(order[29])
    e(f'ds_write_b128 {vr(vA16)}, v[56:59] offset:{L_SEL}')
    e(f'v_add_u32 {vr(vStg)}, {4*16384}, {vr(vStg)}\nv_add_u32 {vr(vStg2)}, {4*16384}, {vr(vStg2)}')
    def stage(i):
        out = []
        for t in lds[2*i:2*i+2]:
            o = (slot[t]-4)*16384; k, b = loc[t]
            for j in range(4):
                oo = o + 1024*j
                out.append(f'ds_read_b128 v[{b+4*j}:{b+4*j+3}], {vr(vStg if oo < 65536 else vStg2)} offset:{oo % 65536}')
        return out
    def body(fast):
        sc = '' if fast else ' sc1'
        e(f'''
        s_lshl_b32 {sT0}, {sA}, 14
        s_add_u32 {sSc}, {sT0}, {sNEAR}
        s_add_u32 {sSc}, {sSc}, {WS_M}''')
        if fast: e(f's_xor_b32 {sFc}, {sSc}, 8192')
        else: e(f's_mov_b32 {sFc}, {sSc}')
        e(f'''
        s_xor_b32 {sMPc}, {sSc}, 16384
        s_lshr_b32 {sT0}, {sH}, 1
        s_lshl_b32 {sT0}, {sT0}, 14
        s_and_b32 {sT1}, {sH}, 1
        s_lshl_b32 {sT1}, {sT1}, 12
        s_add_u32 {sT0}, {sT0}, {sT1}
        s_lshl_b32 {sT1}, {sW}, 10
        s_add_u32 {sT0}, {sT0}, {sT1}
        s_lshl_b32 {sT1}, {sA}, 18
        s_add_u32 {sT0}, {sT0}, {sT1}
        s_add_u32 {sT0}, {sT0}, {sNEAR}
        s_add_u32 {sVXo}, {sT0}, {WS_VX}
        s_xor_b32 {sVXp}, {sVXo}, {1 << 18}
        s_mul_i32 {sT0}, {sA}, 655360
        s_add_u32 {sPc}, {sT0}, {WS_P}
        s_lshl_b32 {sT0}, {sH}, 13
        s_add_u32 {sK}, {sT0}, {WS_K}
        s_add_u32 {sV}, {sT0}, {WS_V}
        s_lshl_b32 {sT0}, {sH}, 12
        s_lshl_b32 {sT1}, {sW}, 10
        s_add_u32 {sT0}, {sT0}, {sT1}
        s_add_u32 {sT1}, {sT0}, {WS_KM}
        s_lshr_b32 {sT0}, {sT0}, 1
        s_add_u32 {sT0}, {sT0}, {WS_VM}
        s_mov_b32 {sKM}, {sT1}
        s_mov_b32 {sVM}, {sT0}
        s_cmp_eq_u32 {sA}, 0
        s_cselect_b32 s14, -1, 0
        s_cselect_b32 s15, 0, -1
        s_and_b32 s12, s14, 0xcccccccc
        s_and_b32 s13, s15, 0xcccccccc
        s_lshl_b32 {sT0}, {sH}, 1
        s_add_u32 {sT0}, {sT0}, {sW if cfg.prm == 1 else 2}
        s_mul_i32 {sT0}, {sT0}, 2560
        s_add_u32 {sT0}, {sT0}, {sPc}
        s_sub_u32 {sPro}, {sT0}, 5120
        s_add_u32 {sPst}, {sPc}, {3*163840}
        s_mov_b32 {sSTEP}, 0''')
        def step_scalars():
            return f'''s_and_b32 {sT0}, {sSTEP}, 3
        s_xor_b32 {sT1}, {sT0}, 2
        s_mul_i32 {sT1}, {sT1}, 163840
        s_add_u32 {sPrst}, {sPro}, {sT1}
        s_mul_i32 {sT1}, {sT0}, 163840
        s_add_u32 {sPst}, {sPc}, {sT1}
        s_lshl_b32 {sT0}, {sT0}, 15
        s_add_u32 {sMP}, {sMPc}, {sT0}
        s_add_u32 {sPubS}, {sSc}, {sT0}
        s_add_u32 {sPubF}, {sFc}, {sT0}
        s_xor_b32 {sT1}, {sT0}, {2 << 15}
        s_add_u32 {sRstF}, {sFc}, {sT1}
        s_add_u32 {sT1}, {sSc}, {sT1}
        s_cmp_lt_i32 {sUNIT}, 0
        s_cselect_b32 {sXo}, {sFR}, {sT1}
        s_cselect_b32 {sXd}, {sSTEP}, -1
        s_and_b32 {sT0}, {sSTEP}, 1
        s_lshl_b32 {sT1}, {sT0}, 19
        s_add_u32 {sVXst}, {sVXo}, {sT1}
        s_add_u32 {sVXld}, {sVXp}, {sT1}
        s_bfe_u32 {sTAG}, {sSTEP}, 0x10001'''.split('\n')
        vdma = [f'buffer_load_dwordx4 {vr(vVld)}, {WS}, {sV} offen sc1 lds',
                f'buffer_load_dwordx4 {vr(vVld)}, {WS}, {sV2} offen offset:1024 sc1 lds']
        kdma = [f'buffer_load_dwordx4 {vr(vKld)}, {WS}, {sK} offen offset:2048 sc1 lds',
                f'buffer_load_dwordx4 {vr(vKld)}, {WS}, {sK2} offen offset:3072 sc1 lds']
        e(f'''s_lshl_b32 {sT0}, {sW}, 12
        s_add_u32 m0, {sT0}, {L_KV}
        v_add_u32 {vr(vVrd)}, {sT0}, {vr(vA16)}
        s_sub_u32 {sV2}, {sV}, 768
        s_sub_u32 {sK2}, {sK}, {3072-128}
        s_sub_u32 {sK}, {sK}, 2048''')
        def kvwait(target):
            e(f'v_lshlrev_b32 v{vT}, 9, {vr(vA16)}')
            wait_flags(e, vT, sFK, 3, target, vT + 1, sleep=1)
            e(f'v_readlane_b32 {sSEEN}, v{vT+1}, 0\nv_readlane_b32 {sT3}, v{vT+1}, 1\ns_min_u32 {sSEEN}, {sSEEN}, {sT3}')
            e(f's_cmp_eq_u32 {sSEEN}, 64\ns_cselect_b32 {sSEEN}, 66, {sSEEN}\ns_sub_u32 {sSEEN}, {sSEEN}, 1')
        if not cfg.standalone:
            e(f's_lshl_b32 {sFK}, {sH}, 8\ns_add_u32 {sFK}, {sFK}, {F_K}')
            kvwait(1)
            trace(e, 3, 66); diag(e, 54, 66)
        for l in kdma + vdma: e(l)
        Lnp = e.lab('nopub0'); Lt4 = e.lab('pub0b'); Lgo = e.lab('pub0c')
        srd(e, 8, 'mem0')
        e(f'''
        s_waitcnt lgkmcnt(0)''')
        srd_fin(e, 8, 'mem0')
        e(f'''
        s_cmp_lt_i32 {sUNIT}, 0
        s_cbranch_scc1 {Lnp}
        s_mul_i32 {sT3}, {sA}, 640
        s_cmp_ge_u32 {sUNIT}, 32
        s_cbranch_scc1 {Lt4}
        s_and_b32 {sT0}, {sUNIT}, 3
        s_mul_i32 {sT0}, {sT0}, 2560
        s_lshr_b32 {sT1}, {sUNIT}, 2
        s_lshl_b32 {sT1}, {sT1}, 4
        s_add_u32 {sT0}, {sT0}, {sT1}
        s_add_u32 {sT0}, {sT0}, {sT3}
        v_mul_u32_u24 v44, 1280, v42
        v_lshl_add_u32 v44, v53, 1, v44
        buffer_load_ushort v45, v44, s[8:11], {sT0} offen
        buffer_load_ushort v46, v44, s[8:11], {sT0} offen offset:128
        buffer_load_ushort v47, v44, s[8:11], {sT0} offen offset:256
        buffer_load_ushort v48, v44, s[8:11], {sT0} offen offset:384
        s_waitcnt vmcnt(0)
        v_lshl_or_b32 v46, v46, 16, v45
        v_lshl_or_b32 v47, v48, 16, v47
        s_branch {Lgo}
        {Lt4}:
        s_and_b32 {sT0}, {sUNIT}, 1
        s_mul_i32 {sT0}, {sT0}, 5120
        s_sub_u32 {sT1}, {sUNIT}, 32
        s_lshr_b32 {sT1}, {sT1}, 1
        s_lshl_b32 {sT1}, {sT1}, 5
        s_add_u32 {sT0}, {sT0}, {sT1}
        s_add_u32 {sT0}, {sT0}, {sT3}
        s_add_u32 {sT0}, {sT0}, 512
        v_lshrrev_b32 v44, 2, v53
        v_lshl_add_u32 v44, v44, 1, v42
        v_mul_u32_u24 v44, 1280, v44
        v_and_b32 v45, 3, v53
        v_lshl_add_u32 v44, v45, 3, v44
        buffer_load_dwordx2 v[46:47], v44, s[8:11], {sT0} offen
        s_waitcnt vmcnt(0)
        {Lgo}:
        v_min_u32 v46, -2, v46
        v_min_u32 v47, -2, v47
        s_mov_b64 exec, {sEPUB}
        buffer_store_dwordx2 v[46:47], {vr(vPub)}, {WS}, {sSc} offen sc1''')
        if fast: e(f'buffer_store_dwordx2 v[46:47], {vr(vPub)}, {WS}, {sFc} offen')
        e(f's_mov_b64 exec, -1\n{Lnp}:')
        e('s_waitcnt lgkmcnt(0)\ns_barrier')
        if cfg.stamps:
            for i in range(84, 100): e(f's_mov_b32 s{i}, 0')
            e('s_memtime s[82:83]\ns_memtime s[64:65]\ns_memtime s[66:67]')

        Ldone = e.lab('rdone'); Labort = 'L_exit'
        q0, q1, k0, k1, v0, v1 = (vACC + 4*i for i in range(6))
        M = vT; M2 = vT + 1
        e(f"""s_cmp_eq_u32 {sW}, 3
        s_cselect_b32 {sT0}, {sFR}, {WS_BYTES}
        s_mov_b32 {sFR}, {sT0 if not cfg.standalone else WS_BYTES}
        s_cmp_lt_i32 {sUNIT}, 0
        s_cselect_b32 s62, 1, s60
        s_mov_b32 s63, 0
        s_cselect_b64 vcc, -1, 0
        v_cndmask_b32 {vr(vPub)}, {vr(vPub)}, 0, vcc""")
        if not cfg.standalone: e(f's_add_u32 s10, s4, {sFK}\ns_addc_u32 s11, s5, 0\ns_mov_b64 {sSN}, 0')
        def mloads(rem, st=None):
            st = rem if st is None else st
            p = vPL + 6*st; so = sMP if rem else sPubF
            return [f'buffer_load_dwordx4 {vr(p,4)}, {vr(vM16)}, {WS}, {so} offen sc1',
                    f'buffer_load_dword {vr(vPL+4+st)}, {vr(vM4)}, {WS}, {so} offen sc1']
        def dump():
            e(f"""s_lshl_b32 {sT0}, {sA}, 5
            s_add_u32 {sT0}, {sT0}, {sH}
            s_lshl_b32 {sT0}, {sT0}, 2
            s_add_u32 {sT0}, {sT0}, {sW}
            s_lshl_b32 {sT0}, {sT0}, 6
            s_add_u32 {sT0}, {sT0}, {WS_DBG}""")
            for i in range(16): e(f'v_mov_b32 v{vA+4+i}, s{84+i if cfg.stamps < 3 else 64+2*i}')
            e('s_mov_b64 exec, 1')
            for j in range(4): e(f'buffer_store_dwordx4 {vr(vA+4+4*j,4)}, {vr(vA16)}, {WS}, {sT0} offen offset:{16*j}')
        tail = []
        def retry(R, body, L, cnt):
            tail.append(f"""{R}:
            s_sub_u32 {sSPIN}, {sSPIN}, 1
            s_cbranch_scc1 {Labort}
            {f's_add_u32 s{cnt}, s{cnt}, 1' if cfg.stamps in (1,2) else ''}
            {body}
            {f's_branch {L}' if L else ''}""")
        def mchk(rem, st=None):
            st = rem if st is None else st
            p = vPL + 6*st; q = vPL + 4 + st; o = L_MEM + (0 if rem else 5120)
            return [f'ds_write_b128 {vr(vM16)}, {vr(p,4)} offset:{o}',
                    f'ds_write_b32 {vr(vM4)}, {vr(q)} offset:{o}',
                    f'v_max3_u32 v{M}, v{p}, v{p+1}, v{p+2}',
                    f'v_max3_u32 v{M}, v{M}, v{p+3}, v{q}',
                    f'v_cmp_eq_u32 vcc, -1, v{M}']
        def aread(base, c): return f'ds_read_b128 {vr(vA+4*c,4)}, {vr(vMrd if c < 4 else vMrd4)} offset:{base+1024*c}'
        def smf(acc, c, t, j): return f'@wl\nv_smfmac_f32_16x16x64_bf16 {vr(acc,4)}, {vr(vA+4*c,4)}, {W(t,j)}, {vr(vIDX)}'
        def zero(b, n): return [f'v_mov_b64 {vr(b+i,2)}, 0' for i in range(0, n, 2)]
        def em(l):
            for x in l: e(x)
        def younger(line):
            n = 0
            for l in reversed(e.lines):
                if l == line: return n
                n += l.startswith('buffer_')
        def paced(l, cyc):
            k = max(0, (cyc // 4 - len(l)) // max(len(l), 1))
            for x in l:
                e(x)
                if k: e(f's_nop {k-1}')
        def m4(i): return f's_memtime s[{64+2*i}:{65+2*i}]' if cfg.stamps == 4 else ''

        Lstep = e.lab('step')
        em(stage(0)); em(step_scalars())
        e(f'{Lstep}:')
        e('; MARK 1')
        z = zero(vACC, 24)
        paced(z[:6], cfg.d2)
        mk(5)
        em(mloads(0))
        paced(z[6:] + [f'v_mov_b32 v{vREM}, {sXd}', f'v_mov_b32 v{vREM+1}, {sXd}'], cfg.gap)
        em(mloads(0, 1))
        Lok = e.lab('lok'); Lre = e.lab('lre')
        e('s_waitcnt vmcnt(2)'); mk(6); em(mchk(0))
        e(f's_waitcnt lgkmcnt(0)\ns_cbranch_vccnz {Lre}\n{Lok}:')
        W0 = 's_waitcnt lgkmcnt(0)'
        retry(Lre, J(mloads(0,0) + ['s_waitcnt vmcnt(2)'] + mchk(0,1) + [W0, f's_cbranch_vccz {Lok}'] + mloads(0,1) + ['s_waitcnt vmcnt(2)'] + mchk(0,0) + [W0, f's_cbranch_vccz {Lok}']), Lre, 96)
        mk(7)
        if cfg.rmode == 0: em(mloads(1))
        e('s_barrier')
        stamp(2); mk(8)
        for c in range(5): e(aread(L_MEM + 5120, c))
        if cfg.rmode == 2: em(mloads(1))
        if not cfg.standalone:
            e(f"""s_min_u32 s8, s8, s9
            s_cmp_eq_u32 s8, 64
            s_cselect_b32 s8, 66, s8
            s_sub_u32 s8, s8, 1
            s_max_i32 {sSEEN}, {sSEEN}, s8""")
        mf = []
        for c in range(5): mf += [smf(v0, c, ('v','L',c), 0), smf(v1, c, ('v','L',c), 1)]
        for c in range(5): mf += [smf(q0,c,('q','L',c),0), smf(k0,c,('k','L',c),0), smf(q1,c,('q','L',c),1), smf(k1,c,('k','L',c),1)]
        for c in range(5): mf += [smf(q0,c,('q','R',c),0), smf(k0,c,('k','R',c),0)]
        for c in range(5): mf += [smf(q1,c,('q','R',c),1), smf(k1,c,('k','R',c),1)]
        slots = [[] for _ in mf]
        def put(i, l, step=1):
            for x in l: slots[i].append(x); i += step
        half = lambda st: [st[i] for i in (0,1,4,5,2,3,6,7)]
        st1 = half(stage(1)); st2 = half(stage(2))
        kvrd = [f'ds_read_b128 {vr(r,4)}, {vr(vVrd)} offset:{L_KV+1024*j}' for j, r in enumerate((vVX, vVX+4, vKX, vKX+4))]
        inc = 0 if cfg.nokv else 32*8192
        put(0, [f's_add_u32 {x}, {x}, {inc}\n{r}' for x, r in zip((sV, sV2, sK, sK2), kvrd)], 2)
        Kok = e.lab('kok'); Kre = e.lab('kre')
        if not cfg.standalone:
            put(8, [f's_cmp_le_u32 {sSEEN}, {sSTEP}\ns_cbranch_scc1 {Kre}\n{Kok}:'])
        if cfg.r2: put(cfg.r2, [J(mloads(1, 0))])
        put(9, ['s_waitcnt lgkmcnt(0)'])
        late = []; later = []
        for p, x in zip(cfg.dp, vdma + kdma):
            if p < 50: put(p, [x])
            else: (late if p == 60 else later).append(x)
        for p in (10, 11):
            if p not in cfg.dp: put(p, ['s_nop 0'])
        put(12, [f'v_add_f32 v{v0}, v{v0}, v{v0+2}\nv_add_f32 v{v0+1}, v{v0+1}, v{v0+3}', f'v_add_f32 v{v0+2}, v{v1}, v{v1+2}\nv_add_f32 v{v0+3}, v{v1+1}, v{v1+3}'])
        bf = [f'v_bfi_b32 v{v0+j}, 1, {sTAG}, v{v0+j}' for j in range(4)]
        vst = f'buffer_store_dwordx4 {vr(v0,4)}, {vr(vA16)}, {WS}, {sVXst} offen sc1'
        if cfg.vmode == 2: vst = f's_mov_b32 exec_hi, 0\n{vst}\ns_mov_b32 exec_hi, -1'
        if cfg.vmode == 3: vst = vst.replace(' sc1', '')
        put(14, [J(bf[:2]), J(bf[2:]), vst])
        rp = cfg.rp
        n1 = min(8, rp - 17)
        put(17, st1[:n1])
        Rok = e.lab('rok'); Rre = e.lab('rre')
        mc = mchk(1)
        ry = 1 + sum(p < rp for p in cfg.dp + (cfg.xp,))
        put(rp, [J([f's_waitcnt vmcnt({ry + (2 if cfg.r2 else 0)})', m4(9), mc[0]]), J(mc[1:3]), J(mc[3:5])])
        bp = rp + 4
        put(bp, [J([W0, f's_cbranch_vccnz {Rre}', f'{Rok}:', 's_barrier', 's_memtime s[70:71]' if cfg.stamps == 1 else m4(10)])])
        if cfg.r2:
            r2y = sum(cfg.r2 < p < rp for p in cfg.dp + (cfg.xp,)) + (cfg.r2 < 16)
            tail.append(J([f'{Rre}:', f's_waitcnt vmcnt({r2y})'] + mchk(1, 0) + [W0, f's_cbranch_vccz {Rok}']))
            Rre = e.lab('rre')
        retry(Rre, J(mloads(1) + ['s_waitcnt vmcnt(0)'] + mc + [W0, f's_cbranch_vccz {Rok}']), Rre, 97)
        pos = bp
        for c in range(5):
            pos = max(pos, 13 + 4*c)
            put(pos, [aread(L_MEM, c)])
            if pos < 29 and c >= 1: pos += 1
        put(29, st1[n1:], 0)
        put(cfg.xp, [f's_mov_b64 exec, {sEX}\nbuffer_store_dwordx2 {vr(vREM,2)}, {vr(vPub)}, {WS}, {sXo} offen sc1\ns_mov_b64 exec, -1'])
        if cfg.prm == 0:
            NEG = v1
            put(rp - 2, [f'v_mov_b64 {vr(NEG,2)}, -1', f'v_mov_b64 {vr(NEG+2,2)}, -1'])
            put(35, [f'buffer_store_dwordx4 {vr(NEG,4)}, {vr(vM16)}, {WS}, {sPrst} offen{sc}', f'buffer_store_dword v{NEG}, {vr(vM4)}, {WS}, {sPrst} offen{sc}'], 2)
        if cfg.r2: put(44, ['@wr2'])
        put(38, st2[:4])
        X = vA; T = vPL; D0 = vPL + 6; D1 = vA + 4; XA = vA + 12; XB = vA + 16; MK = vT; MK1 = vT + 1
        put(42, [f'v_add_f32 v{q0}, v{q0}, v{q0+2}', f'v_add_f32 v{q0+1}, v{q0+1}, v{q0+3}', f'v_add_f32 v{k0}, v{k0}, v{k0+2}', f'v_add_f32 v{k0+1}, v{k0+1}, v{k0+3}',
                 f'v_cvt_pk_bf16_f32 v{T}, v{q0}, v{q0+1}', f'v_cvt_pk_bf16_f32 v{T+1}, v{k0}, v{k0+1}', f'v_bfe_i32 v{MK1}, {vr(vIDX)}, 1, 1'])
        vld = f'buffer_load_dwordx4 {vr(vREM,4)}, {vr(vA16)}, {WS}, {sVXld} offen sc1'
        if cfg.vmode == 1: vld += ' nt'
        if cfg.vmode == 2: vld = f'v_mov_b64 {vr(vREM,2)}, {vr(v0,2)}\nv_mov_b64 {vr(vREM+2,2)}, {vr(v0+2,2)}\ns_mov_b32 exec_hi, 0\n{vld}\ns_mov_b32 exec_hi, -1'
        if cfg.vmode == 3: vld = vld.replace(sVXld, sVXst)
        if cfg.vl < 50: put(cfg.vl, [vld])
        for m, f in zip(mf, slots):
            e(m)
            for x in f:
                if x == '@wr2': x = f's_waitcnt vmcnt({younger(mloads(1, 0)[1])})'
                e(x)
        dq = 'quad_perm:[0,1,0,1] row_mask:0xf bank_mask:0xf'
        S0, SM = q0, k0
        PX = vA + 12; PM = vA + 8; VM0 = v1; VM1 = v1 + 2; ONE = vPL; A8 = vA + 10
        NL = '\n'
        vld2 = f'buffer_load_dwordx4 {vr(XB,4)}, {vr(vA16)}, {WS}, {sVXld} offen sc1'
        def hot(d, bit, short=False):
            if not cfg.warm & bit: return ''
            if short: return f'v_mfma_f32_16x16x16_bf16 {vr(d,4)}, {vr(vID,2)}, {vr(vID,2)}, 0'
            return f'v_mfma_f32_16x16x4_f32 {vr(d,4)}, v{PM+1}, v{PM+1}, 0'
        kmst = f'buffer_store_dwordx4 {vr(X,4)}, {vr(vA16)}, {WS}, {sKM} offen sc1' if not cfg.nokm else 's_nop 0'
        young = 2 + (2 if cfg.vd >= 50 else cfg.vsplit) + (0 if cfg.nokm else 1)
        e(f"""v_mfma_f32_16x16x16_bf16 {vr(D0,4)}, {vr(T,2)}, {vr(vID,2)}, 0
        {vld if cfg.vl == 50 else ''}
        {J(st2[4:])}
        v_not_b32 v{MK}, v{MK1}
        v_add_f32 v{q1}, v{q1}, v{q1+2}
        v_add_f32 v{q1+1}, v{q1+1}, v{q1+3}
        v_pk_add_f32 {vr(k1,2)}, {vr(k1,2)}, {vr(k1+2,2)}
        v_cvt_pk_bf16_f32 v{T+2}, v{q1}, v{q1+1}
        v_cvt_pk_bf16_f32 v{T+3}, v{k1}, v{k1+1}
        v_cvt_pk_bf16_f32 v{X}, v{D0}, v{D0+1}
        v_cvt_pk_bf16_f32 v{X+1}, v{D0+2}, v{D0+3}
        v_mfma_f32_16x16x16_bf16 {vr(D1,4)}, {vr(T+2,2)}, {vr(vID,2)}, 0
        {vld if cfg.vl == 51 else ''}
        v_and_b32 v{XA}, v{X}, v{MK}
        v_and_b32 v{XA+1}, v{X+1}, v{MK}
        v_and_b32_dpp v{XB}, v{X}, v{MK1} {dq}
        v_and_b32_dpp v{XB+1}, v{X+1}, v{MK1} {dq}
        v_mov_b32 v{PM+1}, 0
        v_mov_b32 v{VM0+1}, 0
        v_mov_b32 v{VM1+1}, 0
        v_cvt_pk_bf16_f32 v{X+2}, v{D1}, v{D1+1}
        v_cvt_pk_bf16_f32 v{X+3}, v{D1+2}, v{D1+3}
        v_and_b32 v{XA+2}, v{X+2}, v{MK}
        v_and_b32 v{XA+3}, v{X+3}, v{MK}
        v_and_b32_dpp v{XB+2}, v{X+2}, v{MK1} {dq}
        v_and_b32_dpp v{XB+3}, v{X+3}, v{MK1} {dq}""")
        stamp(4); mk(11)
        e(f"""v_mfma_f32_16x16x32_bf16 {vr(S0,4)}, {vr(vKX,4)}, {vr(XA,4)}, 0
        {vld if cfg.vl == 52 else 's_nop 0'}
        v_mfma_f32_16x16x32_bf16 {vr(S0,4)}, {vr(vKX+4,4)}, {vr(XB,4)}, {vr(S0,4)}
        v_lshrrev_b32 v{A8}, 1, {vr(vA16)}
        v_mfma_f32_16x16x32_bf16 {vr(SM,4)}, {vr(X,4)}, {vr(X,4)}, 0
        {f's_mov_b64 exec, {sEVM}{NL}{kmst}{NL}s_mov_b64 exec, -1' if cfg.kmp == 0 else 's_nop 2'}
        v_mov_b32 v{ONE}, 0x3f803f80
        v_mov_b32 v{ONE+1}, 0x3f803f80
        {hot(D0, 1) or 's_nop 0'}
        ds_write_b128 {vr(vSwr)}, {vr(S0,4)} offset:{L_SX}
        {hot(D0, 1)}
        s_mov_b64 exec, {sEB0}
        ds_write2_b32 {vr(vSwr2)}, v{SM+2}, v{SM+3} offset0:0 offset1:32
        s_mov_b64 exec, -1
        {hot(D0, 1)}
        {vld2 if cfg.v2 == 1 else ''}
        {J(late)}
        {f's_mov_b64 exec, {sEVM}{NL}{kmst}{NL}s_mov_b64 exec, -1' if cfg.kmp == 1 else ''}
        {hot(D0, 1)}
        s_waitcnt lgkmcnt(0)
        s_barrier""")
        stamp(5); mk(12)
        R = [q0, q1, k0, k1]; RM = D1
        Vok = e.lab('vok'); Vre = e.lab('vre')
        C1 = vPL + 4; C2 = vPL + 5
        vchk = [f'v_bitop3_b32 v{C1}, v{vREM}, v{vREM+1}, {sTAG} bitop3:0x7e',
                f'v_bitop3_b32 v{C2}, v{vREM+2}, v{vREM+3}, {sTAG} bitop3:0x7e',
                f'v_bitop3_b32 v{C1}, v{C1}, v{C2}, 1 bitop3:0xa8',
                f'v_cmp_ne_u32 vcc, 0, v{C1}',
                f'v_add_f32 v{vREM}, v{v0}, v{vREM}', f'v_add_f32 v{vREM+1}, v{v0+1}, v{vREM+1}',
                f'v_add_f32 v{vREM+2}, v{v0+2}, v{vREM+2}', f'v_add_f32 v{vREM+3}, v{v0+3}, v{vREM+3}',
                f'v_cvt_pk_bf16_f32 v{VM0}, v{vREM}, v{vREM+1}',
                f'v_cvt_pk_bf16_f32 v{VM1}, v{vREM+2}, v{vREM+3}']
        e(f'ds_read_b128 {vr(R[0],4)}, {vr(vPerm)} offset:{L_SX}')
        e(hot(D0, 2))
        for w in range(1, 4): e(f'ds_read_b128 {vr(R[w],4)}, {vr(vPerm)} offset:{L_SX+1024*w}')
        e(f'ds_read_b128 {vr(RM,4)}, {vr(vPerm)} offset:{L_SM}')
        e(f'v_mov_b32 v{ONE+2}, 0x3f803f80\ns_nop 1\nv_mov_b32 v{ONE+3}, 0x3f803f80')
        if cfg.v2 == 2: e(vld2)
        vw = f's_waitcnt vmcnt({younger(vld.split(NL)[-1] if cfg.vmode != 2 else vld.split(NL)[-2])})'
        Vr2 = Vre
        if cfg.v2:
            Vr2 = e.lab('vre')
            tail.append(J([f'{Vre}:', f's_waitcnt vmcnt({younger(vld2)})', f'v_mov_b64 {vr(vREM,2)}, {vr(XB,2)}', f'v_mov_b64 {vr(vREM+2,2)}, {vr(XB+2,2)}'] + vchk + [f's_cbranch_vccz {Vok}']))
        retry(Vr2, J([vld, 's_waitcnt vmcnt(0)'] + vchk + [f's_cbranch_vccz {Vok}']), Vr2, 98)
        early = cfg.vchk == 1
        e(f"""@wl
        v_pk_add_f32 {vr(q0,2)}, {vr(q0,2)}, {vr(q1,2)}
        v_pk_add_f32 {vr(q0+2,2)}, {vr(q0+2,2)}, {vr(q1+2,2)}
        @wl
        v_pk_add_f32 {vr(q0,2)}, {vr(q0,2)}, {vr(k0,2)}
        v_pk_add_f32 {vr(q0+2,2)}, {vr(q0+2,2)}, {vr(k0+2,2)}
        s_waitcnt lgkmcnt(0)
        v_pk_add_f32 {vr(q0,2)}, {vr(q0,2)}, {vr(k1,2)}
        v_pk_add_f32 {vr(RM,2)}, {vr(RM,2)}, {vr(RM+2,2)}
        v_pk_add_f32 {vr(q0+2,2)}, {vr(q0+2,2)}, {vr(k1+2,2)}
        v_add_f32 v{RM}, v{RM}, v{RM+1}""")
        zz = zero(q1, 12)
        mx = f"""v_max3_f32 v{M}, v{q0}, v{q0+1}, v{q0+2}
        v_max3_f32 v{M}, v{M}, v{q0+3}, v{RM}
        {zz[0]}
        {zz[1]}
        v_max_f32_dpp v{M2}, v{M}, v{M} quad_perm:[2,3,0,1] row_mask:0xf bank_mask:0xf
        v_max_f32_dpp v{M}, v{M}, v{M} quad_perm:[2,3,0,1] row_mask:0xf bank_mask:0xf
        {zz[2]}
        {zz[3]}
        v_permlane16_swap_b32 v{M}, v{M2}
        v_max_f32 v{RM+1}, v{M}, v{M2}
        v_max_f32 v{M}, v{M}, v{M2}
        {zz[4]}
        {zz[5]}
        v_permlane32_swap_b32 v{M}, v{RM+1}
        v_max_f32 v{M}, v{M}, v{RM+1}
        v_mul_f32 v{M}, {sC}, v{M}
        v_fma_f32 v{q0}, v{q0}, {sC}, -v{M}
        v_fma_f32 v{q0+1}, v{q0+1}, {sC}, -v{M}
        v_fma_f32 v{q0+2}, v{q0+2}, {sC}, -v{M}
        v_fma_f32 v{q0+3}, v{q0+3}, {sC}, -v{M}
        v_fma_f32 v{RM}, v{RM}, {sC}, -v{M}"""
        e(mx)
        e(f"""v_exp_f32 v{q0}, v{q0}
        v_exp_f32 v{q0+1}, v{q0+1}
        v_exp_f32 v{q0+2}, v{q0+2}
        v_exp_f32 v{q0+3}, v{q0+3}
        v_cvt_pk_bf16_f32 v{PX}, v{q0}, v{q0+1}
        v_cvt_pk_bf16_f32 v{PX+1}, v{q0+2}, v{q0+3}
        v_exp_f32 v{RM}, v{RM}
        v_mov_b32_dpp v{PX+2}, v{PX} quad_perm:[2,3,2,3] row_mask:0xf bank_mask:0xf
        v_mov_b32_dpp v{PX+3}, v{PX+1} quad_perm:[2,3,2,3] row_mask:0xf bank_mask:0xf
        v_mov_b32_dpp v{RM+1}, v{RM} quad_perm:[2,3,2,3] row_mask:0xf bank_mask:0xf
        v_cvt_pk_bf16_f32 v{PM}, v{RM}, v{RM+1}""")
        stamp(6); mk(13)
        O0, O1 = vKX, vKX + 4; SUM = vREM; OP = vPL + 6
        z0 = zero(q0, 4); z4 = zero(v0, 4)
        e(f"""v_mfma_f32_16x16x32_bf16 {vr(O0,4)}, {vr(vVX,4)}, {vr(PX,4)}, 0
        {vw}
        {J(vchk[:2])}
        v_mfma_f32_16x16x32_bf16 {vr(O1,4)}, {vr(vVX+4,4)}, {vr(PX,4)}, 0
        {J(vchk[2:])}
        s_cbranch_vccnz {Vre}
        {Vok}:
        {m4(14)}
        v_mfma_f32_16x16x16_bf16 {vr(O0,4)}, {vr(VM0,2)}, {vr(PM,2)}, {vr(O0,4)}
        v_mfma_f32_16x16x16_bf16 {vr(O1,4)}, {vr(VM1,2)}, {vr(PM,2)}, {vr(O1,4)}
        v_mov_b32 v{VM0+1}, v{VM1}
        {J(z0 + z4)}
        s_cmp_eq_u32 {sSTEP}, {cfg.nsteps-1}
        s_nop 0
        v_cvt_pk_bf16_f32 v{OP}, v{O0}, v{O0+1}
        v_cvt_pk_bf16_f32 v{OP+1}, v{O0+2}, v{O0+3}
        v_cvt_pk_bf16_f32 v{OP+2}, v{O1}, v{O1+1}
        v_cvt_pk_bf16_f32 v{OP+3}, v{O1+2}, v{O1+3}
        v_mfma_f32_16x16x32_bf16 {vr(D1,4)}, {vr(PX,4)}, {vr(ONE,4)}, 0
        s_mov_b64 exec, {sEB0}
        ds_write_b128 {vr(vOwr)}, {vr(OP,4)} offset:{L_O}
        s_mov_b64 exec, -1
        v_mfma_f32_16x16x16_bf16 {vr(SUM,4)}, {vr(PM,2)}, {vr(ONE,2)}, 0
        s_mov_b64 exec, {sEVM}
        {f'buffer_store_dwordx2 {vr(VM0,2)}, v{A8}, {WS}, {sVM} offen sc1' if not (cfg.nokm or cfg.novm) else ''}
        {kmst if cfg.kmp == 2 else ''}
        s_mov_b64 exec, -1
        {hot(vVX, 4)}
        s_cbranch_scc1 {Ldone}
        s_waitcnt lgkmcnt(0)
        s_barrier""")
        stamp(7); mk(15)
        OA = vKX
        def wo(t, kap): return f'@wl\nv_smfmac_f32_16x16x64_bf16 {vr(vACC+4*t,4)}, {vr(OA+4*kap,4)}, {W(("o","",t),kap)}, {vr(vIDX)}'
        PO = vPL; SEL = vREM
        def fin(t):
            a = vACC + 4*t
            return [f'v_pk_add_f32 {vr(a,2)}, {vr(a,2)}, {vr(a+2,2)}', f'v_pk_mul_f32 {vr(a,2)}, {vr(a,2)}, {vr(M,2)}', f'v_cvt_pk_bf16_f32 v{PO+t}, v{a}, v{a+1}']
        a0, a1, a2, a3 = (vACC + 4*t for t in range(4))
        e(f"""ds_read_b128 {vr(OA,4)}, {vr(vPerm)} offset:{L_O}
        {hot(vVX+4, 8, True)}
        ds_read_b128 {vr(OA+4,4)}, {vr(vPerm)} offset:{L_O+1024}
        {J(later)}
        s_add_u32 {sKM}, {sKM}, {32*4096}
        v_add_f32 v{SUM}, v{SUM}, v{D1}
        s_add_u32 {sVM}, {sVM}, {32*2048}
        v_add_f32 v{SUM+1}, v{SUM+1}, v{D1+1}
        s_add_u32 {sSTEP}, {sSTEP}, 1
        v_rcp_f32 v{M}, v{SUM}
        s_lshl_b32 {sT2}, {sUNIT}, 12
        s_add_u32 {sPld}, {sPst}, {sT2}
        v_rcp_f32 v{M2}, v{SUM+1}
        {wo(0,0)}
        {wo(0,1)}
        ds_read_b128 {vr(SEL,4)}, {vr(vA16)} offset:{L_SEL}
        {wo(1,0)}
        s_nop 0
        {wo(1,1)}
        s_nop 0
        {wo(2,0)}
        s_nop 0
        {wo(2,1)}
        v_add_f32 v{a0}, v{a0}, v{a0+2}
        {wo(3,0)}
        v_add_f32 v{a0+1}, v{a0+1}, v{a0+3}
        {wo(3,1)}
        v_add_f32 v{a1}, v{a1}, v{a1+2}
        {wo(4,0)}
        v_add_f32 v{a1+1}, v{a1+1}, v{a1+3}
        {wo(4,1)}
        v_add_f32 v{a2}, v{a2}, v{a2+2}
        v_add_f32 v{a2+1}, v{a2+1}, v{a2+3}
        v_mul_f32 v{a0}, v{a0}, v{M}
        v_mul_f32 v{a0+1}, v{a0+1}, v{M2}
        v_cvt_pk_bf16_f32 v{PO}, v{a0}, v{a0+1}""")
        em([fin(3)[0], fin(1)[1], fin(2)[1], fin(3)[1], fin(1)[2], fin(2)[2], fin(3)[2], fin(4)[0], fin(4)[1]])
        e(f'buffer_store_dwordx4 {vr(PO,4)}, {vr(vPst4)}, {WS}, {sPst} offen{sc}')
        e(fin(4)[2])
        e(f'buffer_store_dword v{PO+4}, {vr(vPst1)}, {WS}, {sPst} offen{sc}')
        if cfg.stamps == 1: e('s_memtime s[80:81]')
        e('; MARK 8')
        if cfg.stamps == 4:
            Lc = e.lab('cap')
            e(f's_memtime s[64:65]\ns_cmp_lg_u32 {sSTEP}, {cfg.cap}\ns_cbranch_scc1 {Lc}\ns_waitcnt lgkmcnt(0)')
            dump()
            e(f's_mov_b64 exec, -1\n{Lc}:'); mk(1)
        em(stage(0)); em(step_scalars())
        e('s_waitcnt lgkmcnt(0)')
        if not cfg.standalone: e(f's_load_dword s8, {sFP}, 0 glc\ns_load_dword s9, {sFP}, {F_V - F_K} glc')
        Lra = e.lab('rearm')
        if cfg.prm == 1: e(f's_cmp_ge_u32 {sW}, 2\ns_cbranch_scc1 {Lra}')
        Lnr = e.lab('nored'); Lr = e.lab('red'); Lrr = e.lab('redr')
        e(f's_cmp_lt_i32 {sUNIT}, 0\ns_cbranch_scc1 {Lnr}')
        nops(cfg.d1)
        RD = vA + 16; RO = vPL + 6
        def rl(RA): return J(f'buffer_load_dwordx4 {vr(RA+4*j,4)}, {vr(vA16)}, {WS}, {sPld} offen offset:{1024*j} sc1' for j in range(4))
        def rsum(RA):
            o = 4*(cfg.KA - 1)
            x = [f's_waitcnt vmcnt({o+3})', f'v_mfma_f32_16x16x32_bf16 {vr(RD,4)}, {vr(SEL,4)}, {vr(RA,4)}, 0', f'v_max3_u32 v{M}, v{RA}, v{RA+1}, v{RA+2}']
            for j in range(1, 4):
                r = RA + 4*j
                x += [f's_waitcnt vmcnt({o+3-j})', f'v_mfma_f32_16x16x32_bf16 {vr(RD,4)}, {vr(SEL,4)}, {vr(r,4)}, {vr(RD,4)}',
                      f'v_max3_u32 v{M}, v{M}, v{r-1}, v{r}', f'v_max3_u32 v{M}, v{M}, v{r+1}, v{r+2}']
            x += [f'v_max_u32 v{M}, v{M}, v{RA+15}', f'v_cmp_eq_u32 vcc, -1, v{M}']
            x += [f'v_add_f32_dpp v{RO+j}, v{RD+j}, v{RD+j} row_ror:8 row_mask:0xf bank_mask:0xf' for j in range(4)]
            x += [f'v_cvt_pk_bf16_f32 v{RO}, v{RO}, v{RO+1}', f'v_cvt_pk_bf16_f32 v{RO+1}, v{RO+2}, v{RO+3}']
            return J(x)
        mk(2)
        e(rl(vA))
        if cfg.KA == 2:
            nops(cfg.gapA); e(rl(vACC))
            retry(Lrr, J([rl(vA), rsum(vACC), f's_cbranch_vccz {Lr}', rl(vACC), rsum(vA), f's_cbranch_vccz {Lr}']), Lrr, 99)
        else:
            retry(Lrr, J([rl(vA), rsum(vA), f's_cbranch_vccz {Lr}']), Lrr, 99)
        e(rsum(vA))
        e(f"""s_cbranch_vccnz {Lrr}
        {Lr}:
        {m4(3)}
        s_mov_b64 exec, {sEPUB}
        buffer_store_dwordx2 {vr(RO,2)}, {vr(vPub)}, {WS}, {sPubS} offen sc1""")
        if fast: e(f"""buffer_store_dwordx2 {vr(RO,2)}, {vr(vPub)}, {WS}, {sPubF} offen
        v_mov_b64 {vr(RO+2,2)}, -1
        s_barrier
        buffer_store_dwordx2 {vr(RO+2,2)}, {vr(vPub)}, {WS}, {sRstF} offen""")
        else: e('s_barrier')
        Lj = e.lab('join')
        e(f"""s_mov_b64 exec, -1
        s_waitcnt vmcnt({3 if fast else 1})
        {Lj}:""")
        dl = []; n = cfg.dr // 4
        while n > 0: dl.append(f's_nop {min(n,16)-1}'); n -= 16
        tail.append(f"""{Lra}:
        v_mov_b64 {vr(vA,2)}, -1
        v_mov_b64 {vr(vA+2,2)}, -1
        {J(dl)}
        buffer_store_dwordx4 {vr(vA,4)}, {vr(vA16)}, {WS}, {sPrst} offen{sc}
        buffer_store_dwordx4 {vr(vA,4)}, {vr(vA16)}, {WS}, {sPrst} offen offset:1024{sc}
        s_mov_b32 exec_hi, 0
        buffer_store_dwordx4 {vr(vA,4)}, {vr(vA16)}, {WS}, {sPrst} offen offset:2048{sc}
        s_mov_b32 exec_hi, -1
        {Lnr}:
        s_barrier
        s_branch {Lj}""")
        if cfg.stamps == 1:
            e('s_memtime s[100:101]\ns_waitcnt lgkmcnt(0)')
            for i in range(8): e(f's_sub_u32 {sT0}, s{66+2*i}, s{64+2*i}\ns_add_u32 s{84+i}, s{84+i}, {sT0}')
            e('s_mov_b32 s64, s80\ns_mov_b32 s66, s100')
        trace(e, 64, vT, sSTEP)
        mk(4)
        e('; MARK 9')
        e(f's_branch {Lstep}')
        em(tail)
        if not cfg.standalone:
            e(f'{Kre}:\ns_add_u32 {sT2}, {sSTEP}, 2')
            kvwait(sT2)
            e(f's_branch {Kok}')
        e(f'{Ldone}:')
        if not cfg.standalone:
            e(f's_waitcnt vmcnt(0)\ns_barrier'); trace(e, 4, vT); diag(e, 56, vT); e(f's_cmp_lg_u32 {sW}, 3\ns_cbranch_scc1 {Ldone}x'); set_flag(e, sFR, 64, vT); e(f'{Ldone}x:')
        if cfg.stamps in (1, 2, 3):
            if cfg.stamps != 3: e('s_memtime s[80:81]\ns_waitcnt lgkmcnt(0)\ns_sub_u32 s92, s80, s82\ns_sub_u32 s93, s82, s24')
            e('s_waitcnt lgkmcnt(0)')
            dump()
        e('s_waitcnt vmcnt(0)\ns_branch L_exit')

    e(f's_mov_b32 {sNEAR}, {cfg.near}')
    if cfg.standalone:
        body(cfg.fast)
    else:
        trace(e, 1, 66); diag(e, 52, 66)
        gsync(e, 66, 49)
        if cfg.near < 0: e(f'v_readlane_b32 {sNEAR}, v67, 4\ns_and_b32 {sNEAR}, {sNEAR}, 2\ns_lshl_b32 {sNEAR}, {sNEAR}, 12')
        trace(e, 2, 66)
        LS = e.lab('rslow')
        e(f's_cmp_eq_u32 {sFAST}, 0\ns_cbranch_scc1 {LS}')
        body(1)
        e(f'{LS}:')
        body(0)
```

```python
from common import *
from role_pre import gen_mod, gen_ln_load, gen_ln, sT
sCU = sIDX
sTEAM, sS, sN = 's27', 's29', 's30'
sT0, sT1, sT2, sT3 = 's32', 's33', 's34', 's35'
sFWO, sFLN, sFM1, sFB = 's36', 's37', 's38', 's39'
sO, sAP, sAPr, sX, sX1, sY, sYr, sHID, sHIDr, sHIDt, sX1r, sOUT = 's40','s41','s42','s43','s44','s45','s46','s47','s48','s49','s50','s51'
sSEG = 's[14:15]'
def schedule(cfg):
    s0 = cfg.get('join', 39); nj = cfg.get('nj', 2)
    m = [0]*5
    for s in range(64):
        t = s % 3 if s < s0 or nj == 0 else ((3, 4, 0, 1, 2) if nj == 2 else (3, 0, 1, 2))[(s - s0) % (3 + nj)]
        if t < 3 and s >= s0 and nj: t = (t + s0) % 3
        m[t] |= 1 << s
    return m
sPRE = 's28'
sB = 's53'
def WO(k, t): r = 4*(5*k + t); return ('a', r)
def W1(k): return ('a', 160 + 4*k)
def W2(k, t):
    i = 3*k + t
    return ('a', 240 + 4*i) if i < 4 else ('v', 104 + 4*(i-4))
def R4(x): return f'{x[0]}[{x[1]}:{x[1]+3}]'
vA16, vA4, vQF, vRW, vRR, vAPs, vYs, vHs, vOs, vX1, vT = 1, 2, 3, 4, 5, 6, 7, 8, 9, 10, 11
vYr = 0
A = 16; ACC = 64
L_RED, L_Y, L_PAR, L_X = 0, 40960, 81920, 94208

def stage_rows(e, srdn, ppr, ninstr, rowbytes, step_rows, sbase):
    grp = 5 if ppr in (5, 10) else 1
    for j in range(grp):
        e(f'v_add_u32 v20, {64*j}, v17')
        if ppr == 2: e('v_lshrrev_b32 v21, 1, v20')
        else: e(f'v_mul_u32_u24 v21, {6554 if ppr == 10 else 13108}, v20\nv_lshrrev_b32 v21, 16, v21')
        e(f'''v_mul_u32_u24 v22, {ppr}, v21
        v_sub_u32 v22, v20, v22
        v_mul_u32_u24 v21, {rowbytes}, v21
        v_lshl_add_u32 v{24+j}, v22, 4, v21''')
    for n in range(ninstr):
        e(f's_add_u32 m0, s52, {1024*n}')
        if n % grp == 0: e(f's_add_u32 {sT0}, {sbase}, {(n//grp)*step_rows*rowbytes}')
        e(f'buffer_load_dwordx4 v{24 + n % grp}, s[{srdn}:{srdn+3}], {sT0} offen lds')

def touch(e):
    srd(e, 8, 'wq'); srd(e, 12, 'wo')
    e(f'v_lshlrev_b32 v200, 7, v0\ns_mul_i32 {sT0}, {sT}, 81920\ns_waitcnt lgkmcnt(0)')
    srd_fin(e, 8, 'wq'); srd_fin(e, 12, 'wo')
    for j in range(3):
        if j == 2: e(f's_cmp_ge_u32 {sW}, 2\ns_cselect_b32 {sT0}, {SZ["wq"]}, {sT0}')
        e(f'buffer_load_dword v201, v200, s[8:11], {sT0} offen\nbuffer_load_dword v202, v200, s[12:15], {sT0} offen\ns_add_u32 {sT0}, {sT0}, 32768')

def gen_T(e, cfg):
    e(f'''s_sub_u32 {sTEAM}, {sGRP}, 5
    s_lshl_b32 {sT}, {sTEAM}, 5
    s_add_u32 {sT}, {sT}, {sCU}
    s_sub_u32 s29, {sT}, 64
    s_sub_u32 {sT1}, {sT}, 4
    s_cmp_ge_u32 {sT}, 64
    s_cselect_b32 s29, s29, {sT1}''')
    L1 = e.lab('t1'); L2 = e.lab('t2'); L3 = e.lab('t3'); L4 = e.lab('t4'); L5 = e.lab('t5'); L6 = e.lab('t6')
    e(f's_cmp_ge_u32 {sT}, 64\ns_cbranch_scc1 {L3}')
    gen_ln_load(e)
    if cfg.get('pf', 0): touch(e)
    claim_issue(e)
    gen_ln(e, 6 if cfg.get('pf', 0) else 0)
    e(f's_mov_b32 {sOWN}, 1\ns_cmp_lt_u32 {sT}, 36\ns_cbranch_scc1 {L5}\n{L3}:')
    gen_mod(e)
    e(f'{L5}:\ns_lshl_b32 {sT0}, {sW}, 7\ns_add_u32 {sT0}, {sT0}, {sT}\ns_cmp_lg_u32 {sT0}, 95\ns_cbranch_scc1 {L6}')
    coordinate(e, 10)
    e(f'{L6}:')
    if cfg.get('stop') == 'pre':
        e('s_branch L_exit'); return
    if cfg.get('tdelay', 0): wait_go(e, 8, 10, sleep=8)
    e(f'''L_join:
    s_lshl_b32 {sT0}, {sTEAM}, 5
    s_add_u32 {sT0}, {sT0}, {sCU}
    s_lshl_b32 {sT0}, {sT0}, 2
    s_add_u32 {sFWO}, {sT0}, {F_WO}
    s_add_u32 {sFLN}, {sT0}, {F_LN}
    s_add_u32 {sFM1}, {sT0}, {F_M1}''')
    srd(e, 8, 'wo'); srd(e, 12, 'w1'); srd(e, 16, 'w2')
    e(f'''v_and_b32 v17, 63, v0
    v_lshlrev_b32 v{vA16}, 4, v17
    v_lshlrev_b32 v{vA4}, 2, v17
    v_and_b32 v18, 15, v17           ; rho
    v_lshrrev_b32 v19, 4, v17        ; g
    v_bfe_u32 v30, v17, 2, 2         ; rr
    v_and_b32 v31, 3, v17            ; cc
    s_mul_i32 s52, {sW}, 40960
    s_lshr_b32 s53, {sCU}, 3
    s_and_b32 s54, {sCU}, 7
    s_lshr_b32 s55, {sCU}, 4
    s_and_b32 s56, {sCU}, 15
    s_min_u32 s57, {sCU}, 26
    s_waitcnt lgkmcnt(0)
    s_barrier''')
    srd_fin(e, 8, 'wo'); srd_fin(e, 12, 'w1'); srd_fin(e, 16, 'w2')
    e(f'''s_lshl_b32 {sT1}, s53, 2
    s_add_u32 {sT1}, {sT1}, {sW}
    s_mul_i32 {sT1}, {sT1}, {256*1280}
    s_mul_i32 {sT2}, s54, 160
    s_add_u32 {sT1}, {sT1}, {sT2}''')
    stage_rows(e, 8, 10, 40, 1280, 32, sT1)
    e(f'''v_lshl_add_u32 v32, v19, 3, v30
    v_mul_u32_u24 v33, 160, v32
    v_lshl_add_u32 v33, v31, 3, v33
    v_add_u32 v33, s52, v33''')
    for k in range(8):
        e(f's_waitcnt vmcnt({35-5*k})')
        for t in range(5):
            for u in range(2):
                r = WO(k, t); e(f'ds_read_b64_tr_b16 {r[0]}[{r[1]+2*u}:{r[1]+2*u+1}], v33 offset:{5120*k + 640*u + 32*t}')
        e('s_waitcnt lgkmcnt(0)')
    e(f'''s_mul_i32 {sT1}, {sW}, {448*1280}
    s_mul_i32 {sT2}, s56, 80
    s_add_u32 {sT1}, {sT1}, {sT2}''')
    stage_rows(e, 16, 5, 35, 1280, 64, sT1)
    e(f'''v_mul_u32_u24 v33, 80, v32
    v_add_u32 v33, s52, v33
    v_and_b32 v34, 1, v31
    v_lshl_add_u32 v34, v34, 3, v33
    v_lshl_add_u32 v33, v31, 3, v33''')
    for k in range(14):
        if k % 2 == 0: e(f's_waitcnt vmcnt({30-5*(k//2)})')
        for t in range(3):
            for u in range(2):
                r = W2(k, t); e(f'ds_read_b64_tr_b16 {r[0]}[{r[1]+2*u}:{r[1]+2*u+1}], {"v33" if t < 2 else "v34"} offset:{2560*k + 320*u + 32*t}')
        e('s_waitcnt lgkmcnt(0)')
    e(f'''s_lshl_b32 {sT1}, s57, 7
    s_lshl_b32 {sT2}, {sW}, 5
    s_add_u32 {sT1}, {sT1}, {sT2}''')
    stage_rows(e, 12, 2, 20, 3456, 32, sT1)
    e(f'''v_lshlrev_b32 v33, 5, v32
    v_lshl_add_u32 v33, v31, 3, v33
    v_add_u32 v33, s52, v33''')
    for k in range(20):
        e(f's_waitcnt vmcnt({19-k})')
        for u in range(2):
            r = W1(k); e(f'ds_read_b64_tr_b16 {r[0]}[{r[1]+2*u}:{r[1]+2*u+1}], v33 offset:{1024*k + 128*u}')
        if k % 4 == 3: e('s_waitcnt lgkmcnt(0)')
    srd(e, 8, 'b1'); srd(e, 12, 'b2'); srd(e, 16, 'x'); srd(e, 20, 'out')
    gsync(e, vT, 37)
    e('s_waitcnt lgkmcnt(0)\ns_barrier')
    srd_fin(e, 8, 'b1'); srd_fin(e, 12, 'b2'); srd_fin(e, 16, 'x'); srd_fin(e, 20, 'out')
    Lp = e.lab('par')
    e(f'''s_cmp_lg_u32 {sW}, 0
    s_cbranch_scc1 {Lp}''')
    for j in range(10):
        e(f's_mov_b32 m0, {L_PAR + 1024*j}\ns_mov_b32 {sT0}, {WS_MOD + 5120 + 1024*j}')
        e(f'buffer_load_dwordx4 v{vA16}, {WS}, {sT0} offen sc1 lds')
    e(f'''v_lshlrev_b32 v20, 1, v17
    s_lshl_b32 {sT0}, s57, 7
    s_mul_i32 {sT1}, s56, 80
    buffer_load_ushort v21, v20, s[8:11], {sT0} offen
    buffer_load_ushort v22, v20, s[12:15], {sT1} offen
    v_add_u32 v20, {L_PAR + 10240}, v{vA4}
    s_waitcnt vmcnt(0)
    v_lshlrev_b32 v21, 16, v21
    v_lshlrev_b32 v22, 16, v22
    ds_write_b32 v20, v21
    ds_write_b32 v20, v22 offset:256
    s_waitcnt lgkmcnt(0)
    {Lp}:''')
    e(f'''s_lshl_b32 {sT0}, s53, 3
    s_lshl_b32 {sT1}, {sW}, 1
    s_add_u32 {sT0}, {sT0}, {sT1}
    v_add_u32 v{vQF}, {sT0}, v17
    v_lshlrev_b32 v{vQF}, 8, v{vQF}
    s_lshl_b32 {sO}, {sT0}, 12
    s_add_u32 {sO}, {sO}, {WS_O}
    s_mul_i32 {sT0}, {sW}, 10240
    v_lshl_add_u32 v21, v19, 2, v18
    v_and_b32 v21, 15, v21
    v_lshlrev_b32 v21, 4, v21
    v_lshl_add_u32 v21, v19, 8, v21
    v_add_u32 v{vRW}, {sT0}, v21
    v_lshrrev_b32 v20, 2, v17
    v_lshl_add_u32 v21, v31, 2, v20
    v_and_b32 v21, 15, v21
    v_lshlrev_b32 v21, 4, v21
    v_lshl_add_u32 v21, v31, 8, v21
    s_lshl_b32 {sT0}, {sW}, 10
    v_add_u32 v{vRR}, {sT0}, v21
    v_mul_u32_u24 v21, 10240, v20
    v_lshl_add_u32 v{vAPs}, v31, 4, v21
    s_mul_i32 {sAP}, s53, 2560
    s_mul_i32 {sT0}, s54, 320
    s_add_u32 {sAP}, {sAP}, {sT0}
    s_add_u32 {sAP}, {sAP}, {WS_AP}
    s_mul_i32 {sAPr}, {sCU}, 10240
    s_add_u32 {sAPr}, {sAPr}, {WS_AP}
    s_mul_i32 {sX}, {sCU}, 1280
    s_mul_i32 {sX1}, {sCU}, 2560
    s_add_u32 {sX1}, {sX1}, {WS_X1}
    s_lshl_b32 {sY}, {sCU}, 8
    s_add_u32 {sY}, {sY}, {WS_Y}
    v_xor_b32 v22, s56, v20
    v_lshlrev_b32 v21, 2, v31
    v_lshl_add_u32 v{vYs}, v22, 4, v21
    v_xor_b32 v22, v18, v19
    v_lshlrev_b32 v22, 4, v22
    v_lshl_add_u32 v22, v18, 8, v22
    v_add_u32 v{vYr}, {L_Y}, v22
    v_and_b32 v21, 1, v19
    v_mul_u32_u24 v21, {54*1024}, v21
    v_lshrrev_b32 v22, 1, v19
    v_lshl_add_u32 v21, v22, 8, v21
    v_lshl_add_u32 v21, v18, 4, v21
    s_and_b32 {sT0}, {sW}, 1
    s_lshl_b32 {sT0}, {sT0}, 9
    v_add_u32 v{vHs}, {sT0}, v21
    s_lshr_b32 {sT0}, {sW}, 1
    s_lshl_b32 {sT1}, s57, 1
    s_add_u32 {sT0}, {sT0}, {sT1}
    s_lshl_b32 {sHID}, {sT0}, 10
    s_add_u32 {sHID}, {sHID}, {WS_HID}
    s_mul_i32 {sHIDr}, s55, {54*1024}
    s_mul_i32 {sT0}, {sW}, {14*1024}
    s_add_u32 {sHIDr}, {sHIDr}, {sT0}
    s_add_u32 {sHIDr}, {sHIDr}, {WS_HID}
    s_cmp_eq_u32 {sW}, 3
    s_cselect_b32 {sHIDt}, 10, 12
    s_lshl_b32 {sHIDt}, {sHIDt}, 10
    v_mul_u32_u24 v21, 1280, v20
    v_lshl_add_u32 v{vOs}, v31, 3, v21
    v_lshlrev_b32 v{vX1}, 1, v{vOs}
    s_mul_i32 {sOUT}, s55, {16*1280}
    s_mul_i32 {sT0}, s56, 80
    s_add_u32 {sOUT}, {sOUT}, {sT0}
    s_lshl_b32 {sT0}, {sW}, 5
    s_add_u32 {sOUT}, {sOUT}, {sT0}
    s_lshl_b32 {sX1r}, {sOUT}, 1
    s_add_u32 {sX1r}, {sX1r}, {WS_X1}
    s_lshl_b32 {sYr}, {sW}, 11
    s_lshl_b32 {sFB}, {sTEAM}, 7
    s_mov_b32 {sPRE}, 0
    s_mov_b32 s58, 0x33333333
    s_cmp_eq_u32 {sW}, 2
    s_cselect_b32 s58, s58, -1
    s_mov_b32 s59, s58
    s_barrier''')
    for t, m in enumerate(schedule(cfg)):
        e(f's_cmp_eq_u32 {sTEAM}, {t}\ns_cselect_b32 s14, {m & 0xffffffff}, s14\ns_cselect_b32 s15, {m >> 32}, s15')
    e(f's_ff1_i32_b64 {sS}, {sSEG}\ns_cmp_lt_i32 {sS}, 0\ns_cbranch_scc1 L_exit')
    trace(e, 9, vT)
    LS = e.lab('tslow')
    e(f's_cmp_eq_u32 {sFAST}, 0\ns_cbranch_scc1 {LS}')
    loop(e, '', cfg)
    e(f'{LS}:')
    loop(e, ' sc1', cfg)

def lane_sum2(e, a, b, t):
    for m in ('quad_perm:[1,0,3,2]', 'quad_perm:[2,3,0,1]', 'row_half_mirror', 'row_mirror'):
        e(f'v_add_f32_dpp v{a}, v{a}, v{a} {m} row_mask:0xf bank_mask:0xf\nv_add_f32_dpp v{b}, v{b}, v{b} {m} row_mask:0xf bank_mask:0xf')
    for sw in ('v_permlane16_swap_b32', 'v_permlane32_swap_b32'):
        e(f'''v_mov_b32 v{t}, v{a}
        v_mov_b32 v{t+1}, v{b}
        {sw} v{a}, v{t}
        {sw} v{b}, v{t+1}
        v_add_f32 v{a}, v{a}, v{t}
        v_add_f32 v{b}, v{b}, v{t+1}''')

def norm(e, X, a, b, t):
    e(f'v_add_f32 v{a}, v{X}, v{X+1}\nv_mul_f32 v{b}, v{X}, v{X}\nv_fmac_f32 v{b}, v{X+1}, v{X+1}')
    for i in range(2, 10): e(f'v_add_f32 v{a}, v{a}, v{X+i}\nv_fmac_f32 v{b}, v{X+i}, v{X+i}')
    lane_sum2(e, a, b, t)
    e(f'''v_mul_f32 v{a}, {f2u(1/640)}, v{a}
    v_mul_f32 v{b}, {f2u(1/640)}, v{b}
    v_fma_f32 v{b}, -v{a}, v{a}, v{b}
    v_max_f32 v{b}, 0, v{b}
    v_add_f32 v{b}, {f2u(1e-5)}, v{b}
    v_rsq_f32 v{b}, v{b}
    v_mul_f32 v{a}, v{a}, v{b}''')

def loop(e, sc, cfg):
    L = e.lab('team')
    def pt(i):
        if cfg.get('tprof'): e(f's_memtime s[{64+2*i}:{65+2*i}]')
    def obase(seg):
        e(f's_lshl_b32 {sT0}, {seg}, 18\ns_add_u32 s8, {sT0}, {sO}\ns_add_u32 s9, s8, 4096\ns_add_u32 s10, s8, {1 << 17}\ns_add_u32 s11, s9, {1 << 17}')
    def old(i):
        mt, k = divmod(i, 8)
        return f'buffer_load_dwordx4 {vr(A+4*(i%12),4)}, v{vA16}, {WS}, s{8 + 2*mt + k//4} offen offset:{1024*(k%4)} sc1'
    def ofetch(seg):
        obase(seg)
        e(f"""s_mul_i32 {sT0}, {seg}, 40960
        s_add_u32 {sT0}, {sT0}, {sX}
        s_lshl_b32 {sT3}, {sW}, 10
        s_add_u32 {sT0}, {sT0}, {sT3}
        s_add_u32 m0, {sT3}, {L_X}
        s_nop 0
        buffer_load_dwordx4 v{vA16}, s[16:19], {sT0} offen lds""")
        for i in range(12): e(old(i))
    G = e.lab('wog')
    e(f"""{L}:
    s_add_u32 {sN}, {sS}, 1
    s_mov_b32 {sB}, {sS if cfg.get('fresh') else sTEAM}
    s_cmp_lg_u32 {sPRE}, 0
    s_cbranch_scc1 {G}
    s_mov_b32 {sT0}, {F_QA}""")
    pt(0)
    wait_flags(e, vQF, sT0, 3, sN, vT, sleep=1)
    ofetch(sS)
    e(f'{G}:')
    trace(e, 64, vT, sS)
    pt(1)
    issued = 12
    for i in range(16):
        mt, k = divmod(i, 8)
        e(f's_waitcnt vmcnt({issued-1-i})')
        for t in range(5):
            a = vr(ACC + 4*(5*mt + t), 4)
            e(f'v_mfma_f32_16x16x32_bf16 {a}, {R4(WO(k,t))}, {vr(A+4*(i%12),4)}, {"0" if k == 0 else a}')
        if issued < 16: e(old(issued)); issued += 1
        if 9 <= i < 14: e(f'ds_write_b128 v{vRW}, {vr(ACC+4*(i-9),4)} offset:{L_RED+1024*(i-9)}')
    pt(2)
    e(f's_mul_i32 {sT0}, {sB}, {32*10240}\ns_add_u32 {sT1}, {sT0}, {sAP}')
    for i in range(5, 10): e(f'ds_write_b128 v{vRW}, {vr(ACC+4*i,4)} offset:{L_RED+1024*i}')
    e('s_waitcnt lgkmcnt(0)\ns_barrier')
    Lk = e.lab('wo2')
    def rrd(j):
        for w in range(4): e(f'ds_read_b128 {vr(A+16*j+4*w,4)}, v{vRR} offset:{L_RED + 10240*w + 4096*j}')
    def rfin(j):
        b = A + 16*j
        e(f'''s_add_u32 {sT2}, {sW}, {4*j}
        s_cmp_ge_u32 {sT2}, 5
        s_cselect_b32 {sT3}, {16*10240 - 5*64}, 0
        s_lshl_b32 {sT2}, {sT2}, 6
        s_add_u32 {sT2}, {sT2}, {sT3}
        s_add_u32 {sT2}, {sT2}, {sT1}''')
        for h in (0, 2):
            e(f'''v_pk_add_f32 {vr(b+h,2)}, {vr(b+h,2)}, {vr(b+4+h,2)}
            v_pk_add_f32 {vr(b+8+h,2)}, {vr(b+8+h,2)}, {vr(b+12+h,2)}
            v_pk_add_f32 {vr(b+h,2)}, {vr(b+h,2)}, {vr(b+8+h,2)}''')
        e(f'buffer_store_dwordx4 {vr(b,4)}, v{vAPs}, {WS}, {sT2} offen{sc}')
    pt(3)
    rrd(0); rrd(1); rrd(2)
    e('s_waitcnt lgkmcnt(8)'); rfin(0)
    e(f's_waitcnt lgkmcnt(4)'); rfin(1)
    e(f's_waitcnt lgkmcnt(0)\ns_cmp_ge_u32 {sW}, 2\ns_cbranch_scc1 {Lk}')
    rfin(2)
    Lln = e.lab('lnskip')
    e(f'''{Lk}:
    s_waitcnt vmcnt(0)
    s_barrier
    s_cmp_lg_u32 {sW}, 0
    s_cbranch_scc1 {Lln}''')
    set_flag(e, sFWO, sN, vT, sc)
    trace(e, 128, vT, sS)
    pt(4)
    P = A; XB = A + 40; GA = ACC; SB = ACC + 10; CB = ACC + 20; a_, b_, t_ = ACC + 30, ACC + 31, ACC + 32
    e(f'''s_mul_i32 {sT1}, {sB}, 40960
    v_lshlrev_b32 v{vT+1}, 1, v{vA4}
    v_add_u32 v{vT+2}, {L_PAR}, v{vT+1}
    v_add_u32 v{vT+3}, {L_X}, v{vA4}''')
    for j in range(5): e(f'ds_read_b32 v{XB+j}, v{vT+3} offset:{256*j}')
    e('s_waitcnt lgkmcnt(0)')
    for n, b in enumerate((GA, SB, CB)):
        for j in range(5): e(f'ds_read_b64 {vr(b+2*j,2)}, v{vT+2} offset:{2560*n + 512*j}')
    e(f's_add_u32 {sT2}, {sFB}, {F_WO}')
    wait_flags(e, vA4, sT2, 0xffffffff, sN, vT)
    pt(5)
    e(f's_add_u32 s60, {sT0}, {sAPr}\ns_add_u32 s61, s60, 2560\ns_add_u32 s62, s60, 5120\ns_add_u32 s63, s60, 7680')
    for j in range(5):
        for g in range(4): e(f'buffer_load_dwordx2 {vr(P+10*g+2*j,2)}, v{vT+1}, {WS}, s{60+g} offen offset:{512*j} sc1')
    e(f's_lshl_b32 {sT2}, {sT1}, 1\ns_add_u32 {sT2}, {sT2}, {sX1}\ns_waitcnt lgkmcnt(0)')
    for j in range(5):
        p = P + 2*j
        e(f'''s_waitcnt vmcnt({16-4*j+j})
        v_pk_add_f32 {vr(p,2)}, {vr(p,2)}, {vr(p+10,2)}
        v_pk_add_f32 {vr(p+20,2)}, {vr(p+20,2)}, {vr(p+30,2)}
        v_lshlrev_b32 v{p+10}, 16, v{XB+j}
        v_and_b32 v{p+11}, 0xffff0000, v{XB+j}
        v_pk_add_f32 {vr(p,2)}, {vr(p,2)}, {vr(p+20,2)}
        v_pk_fma_f32 {vr(p,2)}, {vr(p,2)}, {vr(GA+2*j,2)}, {vr(p+10,2)}
        buffer_store_dwordx2 {vr(p,2)}, v{vT+1}, {WS}, {sT2} offen offset:{512*j}{sc}''')
    H2 = P + 10
    pt(6)
    norm(e, P, a_, b_, t_)
    for i in range(10): e(f'v_fma_f32 v{H2+i}, v{P+i}, v{b_}, -v{a_}')
    for j in range(5): e(f'v_pk_fma_f32 {vr(H2+2*j,2)}, {vr(H2+2*j,2)}, {vr(CB+2*j,2)}, {vr(SB+2*j,2)}')
    norm(e, H2, a_, b_, t_)
    e(f's_add_u32 {sT2}, {sT1}, {sY}')
    for j in range(5):
        e(f'''v_fma_f32 v{H2+2*j}, v{H2+2*j}, v{b_}, -v{a_}
        v_fma_f32 v{H2+2*j+1}, v{H2+2*j+1}, v{b_}, -v{a_}
        v_cvt_pk_bf16_f32 v{XB+j}, v{H2+2*j}, v{H2+2*j+1}
        buffer_store_dword v{XB+j}, v{vYs}, {WS}, {sT2} offen{sc}''')
        if j < 4: e(f's_add_u32 {sT2}, {sT2}, 8192')
    pt(7)
    e('s_waitcnt vmcnt(0)')
    set_flag(e, sFLN, sN, vT, sc)
    trace(e, 192, vT, sS)
    e(f's_add_u32 {sT2}, {sFB}, {F_LN}')
    wait_flags(e, vA4, sT2, 0xffffffff, sN, vT)
    Lm2 = e.lab('m1skip')
    e(f'''{Lln}:
    s_barrier
    s_mul_i32 {sT1}, {sB}, 40960
    s_cmp_ge_u32 {sCU}, 27
    s_cbranch_scc1 {Lm2}''')
    pt(8)
    e(f's_add_u32 {sT2}, {sT1}, {sYr}')
    for j in range(10):
        if j % 2 == 0: e(f's_add_u32 m0, {sYr}, {L_Y + 4096*j}\ns_add_u32 s60, {sT2}, {WS_Y + 4096*j}')
        e(f'buffer_load_dwordx4 v{vA16}, {WS}, s60 offen offset:{1024*(j%2)} sc1 lds')
    e(f'''v_lshrrev_b32 v{vT+1}, 8, v{vA16}
    v_lshlrev_b32 v{vT+1}, 4, v{vT+1}
    s_lshl_b32 {sT3}, {sW}, 6
    s_add_u32 {sT3}, {sT3}, {L_PAR + 10240}
    v_add_u32 v{vT+1}, {sT3}, v{vT+1}
    ds_read_b128 {vr(ACC+8,4)}, v{vT+1}
    v_xor_b32 v{vT+2}, 64, v{vYr}
    v_xor_b32 v{vT+3}, 0x80, v{vYr}
    v_xor_b32 v{vT+4}, 0xc0, v{vYr}
    s_mul_i32 {sT2}, {sB}, {108*1024}
    s_add_u32 s60, {sT2}, {sHID}
    s_waitcnt vmcnt(6) lgkmcnt(0)
    s_barrier''')
    D = 8
    pt(9)
    def yrd(i): k, mt = divmod(i, 2); return f'ds_read_b128 {vr(A+4*(i%(D+2)),4)}, v{(vYr, vT+2, vT+3, vT+4)[k%4]} offset:{8192*(k//4) + 4096*mt}'
    for i in range(D): e(yrd(i))
    for i in range(40):
        k, mt = divmod(i, 2)
        if i + D in (16, 32): e(f's_waitcnt vmcnt({2 if i + D == 16 else 0})\ns_barrier')
        if i + D < 40: e(yrd(i+D))
        e(f's_waitcnt lgkmcnt({min(D, 39-i)})')
        a = vr(ACC+4*mt, 4)
        e(f'v_mfma_f32_16x16x32_bf16 {a}, {R4(W1(k))}, {vr(A+4*(i%(D+2)),4)}, {vr(ACC+8,4) if k == 0 else a}')
    pt(10)
    c0 = -2*math.sqrt(2/math.pi)*math.log2(math.e)
    e(f's_mov_b32 s62, {f2u(c0*0.044715)}\nv_mov_b32 v{vT+1}, {f2u(c0)}')
    U = ACC + 12
    for i in range(8): e(f'v_mul_f32 v{U+i}, v{ACC+i}, v{ACC+i}')
    for i in range(8): e(f'v_fma_f32 v{U+i}, v{U+i}, s62, v{vT+1}')
    for i in range(8): e(f'v_mul_f32 v{U+i}, v{U+i}, v{ACC+i}')
    for i in range(8): e(f'v_exp_f32 v{U+i}, v{U+i}')
    for i in range(8): e(f'v_add_f32 v{U+i}, 1.0, v{U+i}')
    for i in range(8): e(f'v_rcp_f32 v{U+i}, v{U+i}')
    for i in range(8): e(f'v_mul_f32 v{U+i}, v{U+i}, v{ACC+i}')
    for i in range(4): e(f'v_cvt_pk_bf16_f32 v{ACC+i}, v{U+2*i}, v{U+2*i+1}')
    Lf = e.lab('m1f')
    pt(11)
    e(f'''v_permlane16_swap_b32 v{ACC}, v{ACC+2}
    v_permlane16_swap_b32 v{ACC+1}, v{ACC+3}
    buffer_store_dwordx4 {vr(ACC,4)}, v{vHs}, {WS}, s60 offen{sc}
    s_waitcnt vmcnt(0)
    s_barrier
    s_cmp_lg_u32 {sW}, 0
    s_cbranch_scc1 {Lm2}''')
    set_flag(e, sFM1, sN, vT, sc)
    trace(e, 256, vT, sS)
    pt(12)
    AC2 = 72; X1 = 84; B2 = 88; GB = 92
    e(f'''{Lm2}:
    s_lshl_b32 {sT2}, {sT1}, 1
    s_add_u32 {sT2}, {sT2}, {sX1r}
    buffer_load_dwordx4 {vr(X1,4)}, v{vX1}, {WS}, {sT2} offen sc1
    v_and_b32 v{vT+1}, 48, v{vA16}
    s_lshl_b32 {sT3}, {sW}, 6
    v_add_u32 v{vT+1}, {sT3}, v{vT+1}
    s_mul_i32 {sT3}, s56, 160
    v_add_u32 v{vT+2}, {sT3}, v{vT+1}
    v_add_u32 v{vT+1}, {L_PAR}, v{vT+1}
    v_add_u32 v{vT+2}, {L_PAR}, v{vT+2}
    ds_read_b128 {vr(B2,4)}, v{vT+1} offset:{10240+256}
    ds_read_b128 {vr(GB,4)}, v{vT+2} offset:7680
    s_add_u32 {sT2}, {sFB}, {F_M1}''')
    wait_flags(e, vA4, sT2, (1 << 27) - 1, sN, vT)
    pt(13)
    e(f'''s_mul_i32 {sT2}, {sB}, {108*1024}
    s_add_u32 s60, {sT2}, {sHIDr}
    s_add_u32 s61, s60, 4096
    s_add_u32 s62, s60, 8192
    s_add_u32 s63, s60, {sHIDt}''')
    for k in range(14): e(f'buffer_load_dwordx4 {vr(A+4*k,4)}, v{vA16}, {WS}, s{60+k//4} offen offset:{1024*(k%4)} sc1')
    e(f"""s_mov_b32 {sT0}, {F_QA}
    s_mov_b64 exec, 3
    buffer_load_dword v{vT}, v{vQF}, {WS}, {sT0} offen sc1
    s_mov_b64 exec, -1""")
    for k in range(14):
        e(f's_waitcnt vmcnt({14-k})')
        for t in range(3):
            a = vr(AC2+4*t, 4)
            e(f'v_mfma_f32_16x16x32_bf16 {a}, {R4(W2(k,t))}, {vr(A+4*k,4)}, {"0" if k == 0 else a}')
    pt(14)
    e(f"""s_mul_i32 {sT1}, {sS}, 40960
    s_add_u32 {sT2}, {sT1}, {sOUT}
    s_bitset0_b64 {sSEG}, {sS}
    s_ff1_i32_b64 s12, {sSEG}
    s_mov_b32 {sPRE}, 0""")
    for t in range(3): e(f'ds_write_b128 v{vRW}, {vr(AC2+4*t,4)} offset:{L_RED+1024*t}')
    Le = e.lab('m2e'); Lnp = e.lab('nopre')
    e(f"""s_mov_b64 exec, 3
    s_waitcnt vmcnt(0)
    v_cmp_ge_u32 vcc, s12, v{vT}
    s_mov_b64 exec, -1
    s_cbranch_vccnz {Lnp}""")
    if cfg.get('pre', 1):
        ofetch('s12')
        e(f's_mov_b32 {sPRE}, 1')
    e(f"""{Lnp}:
    s_waitcnt lgkmcnt(0)
    s_barrier
    s_cmp_eq_u32 {sW}, 3
    s_cbranch_scc1 {Le}""")
    E = 64
    for w in range(4): e(f'ds_read_b128 {vr(E+4*w,4)}, v{vRR} offset:{L_RED + 10240*w}')
    e('s_waitcnt lgkmcnt(0)')
    for h in (0, 2):
        e(f"""v_pk_add_f32 {vr(E+h,2)}, {vr(E+h,2)}, {vr(E+4+h,2)}
        v_pk_add_f32 {vr(E+8+h,2)}, {vr(E+8+h,2)}, {vr(E+12+h,2)}
        v_pk_add_f32 {vr(E+h,2)}, {vr(E+h,2)}, {vr(B2+h,2)}
        v_pk_add_f32 {vr(E+h,2)}, {vr(E+h,2)}, {vr(E+8+h,2)}
        v_pk_fma_f32 {vr(E+h,2)}, {vr(E+h,2)}, {vr(GB+h,2)}, {vr(X1+h,2)}""")
    e(f'''v_cvt_pk_bf16_f32 v{vT+1}, v{E}, v{E+1}
    v_cvt_pk_bf16_f32 v{vT+2}, v{E+2}, v{E+3}
    s_mov_b64 exec, s[58:59]
    buffer_store_dwordx2 {vr(vT+1,2)}, v{vOs}, s[20:23], {sT2} offen
    s_mov_b64 exec, -1
    {Le}:
    s_barrier''')
    trace(e, 320, vT, sS)
    pt(15)
    if cfg.get('tprof'):
        X = e.lab('tp')
        e(f's_cmp_lg_u32 {sS}, {cfg["tprof"]}\ns_cbranch_scc1 {X}\ns_waitcnt lgkmcnt(0)')
        for i in range(16): e(f'v_mov_b32 v{E+i}, s{64+2*i}')
        e(f's_lshl_b32 {sT0}, {sCU}, 2\ns_add_u32 {sT0}, {sT0}, {sW}\ns_lshl_b32 {sT0}, {sT0}, 6\ns_add_u32 {sT0}, {sT0}, {WS_DBG}\ns_mov_b64 exec, 1')
        for j in range(4): e(f'buffer_store_dwordx4 {vr(E+4*j,4)}, off, {WS}, {sT0} offset:{16*j}')
        e(f's_mov_b64 exec, -1\n{X}:')
    e(f'''
    s_mov_b32 {sS}, s12
    s_cmp_lt_u32 {sS}, 64
    s_cbranch_scc1 {L}''')
    diag(e, 60, vT+1)
    e('s_branch L_exit')
```

```python
from common import *
sH = sIDX
sS, sBUF, sHS, sOUT, sFL, sT0, sT1 = 's28', 's29', 's30', 's32', 's33', 's34', 's35'
vA16, vRD = 2, 3
HB = 40960

def load_weights(e, name, kind, claim=True):
    srd(e, 8, name)
    e(f'''v_and_b32 v1, 63, v0
    v_lshlrev_b32 v{vA16}, 4, v1
    v_and_b32 v4, 15, v1
    v_lshrrev_b32 v5, 4, v1
    v_lshlrev_b32 v6, 2, v5
    v_xor_b32 v6, v6, v4
    v_lshlrev_b32 v6, 4, v6
    v_lshl_add_u32 v6, v5, 13, v6
    s_lshl_b32 {sT0}, {sH}, 8
    s_lshl_b32 {sT1}, {sW}, 17
    s_add_u32 {sT0}, {sT0}, {sT1}
    v_add_u32 v6, {sT0}, v6
    s_lshl_b32 {sT1}, {sW}, 12
    s_waitcnt lgkmcnt(0)''')
    srd_fin(e, 8, name)
    for n in range(10):
        e(f's_add_u32 m0, {sT1}, {n*16384}')
        for t in range(4):
            e(f's_mov_b32 {sT0}, {(64*n + 4*t)*8192 - 1024*t}')
            e(f'buffer_load_dwordx4 v6, s[8:11], {sT0} offen offset:{1024*t} lds')
    e(f'''v_bfe_u32 v7, v1, 2, 2           ; rr
    v_and_b32 v8, 3, v1              ; cc
    v_and_b32 v9, 1, v5              ; G&1
    v_lshrrev_b32 v10, 1, v5         ; kh''')
    if kind == 'v':
        e('v_mov_b32 v11, v8\nv_mov_b32 v12, v9')
    else:
        e('v_and_b32 v11, 1, v8\nv_lshl_add_u32 v11, v9, 1, v11\nv_lshrrev_b32 v12, 1, v8')
    e(f'''v_xor_b32 v13, {sW}, v7
    v_lshl_add_u32 v11, v13, 2, v11
    v_lshlrev_b32 v11, 4, v11
    v_lshl_add_u32 v11, v12, 3, v11
    v_lshl_add_u32 v11, v7, 8, v11
    v_lshl_add_u32 v11, v10, 11, v11''')
    for n in range(10):
        e(f's_waitcnt vmcnt({4*(9-n)})\ns_barrier')
        e(f'v_add_u32 v12, {n*16384}, v11')
        for k in range(4):
            for t in range(2):
                a = 4*(4*n + k) + 2*t
                e(f'ds_read_b64_tr_b16 a[{a}:{a+1}], v12 offset:{4096*k + 1024*t}')
        e('s_waitcnt lgkmcnt(0)')
        if n == 7 and claim: claim_issue(e)
    if claim: claim_check(e, 0)

def h_dma():
    out = []
    for j in range(10):
        x = f's_add_u32 m0, {sBUF}, {1024*j}\ns_add_u32 {sT0}, {sHS}, {1024*j}\n' if j % 4 == 0 else ''
        out.append(x + f'buffer_load_dwordx4 v{vA16}, {WS}, {sT0} offen offset:{1024*(j%4)} sc1 lds')
    out.append(f'''s_add_u32 {sHS}, {sHS}, {HB}
    s_add_u32 {sBUF}, {sBUF}, {HB}
    s_sub_u32 {sT0}, {sBUF}, {3*HB}
    s_cselect_b32 {sBUF}, {sBUF}, {sT0}''')
    return out

def start_h(e, mask=40, first=0):
    trace(e, 1, 4)
    wait_go(e, mask, 4)
    trace(e, 3, 4); diag(e, 62, 4)
    e(f'''s_barrier
    s_mul_i32 {sBUF}, {sW}, 10240
    s_add_u32 {sHS}, {sBUF}, {WS_H + first*HB}
    s_mov_b32 {sS}, 0
    s_mov_b32 s36, 0''')
    e(J(h_dma() + h_dma()))

def gemm(e, kind, ACC, FR, extra=(), every=1):
    D = 5; extra = list(extra)
    e(f'v_add_u32 v{vRD}, s36, v{vA16}')
    def rd(k): return f'ds_read_b128 {vr(FR+4*(k%(D+2)),4)}, v{vRD} offset:{1024*k}'
    for k in range(D): e(rd(k))
    e(f'''s_add_u32 s36, s36, {HB}
    s_cmp_eq_u32 s36, {3*HB}
    s_cselect_b32 s36, 0, s36''')
    for k in range(40):
        if k + D < 40: e(rd(k+D))
        e(f's_waitcnt lgkmcnt({min(D, 39-k)})')
        w = f'a[{4*k}:{4*k+3}]'; f = vr(FR+4*(k%(D+2)), 4)
        a, b = (f, w) if kind == 'v' else (w, f)
        e(f'v_mfma_f32_32x32x16_bf16 {vr(ACC,16)}, {a}, {b}, {"0" if k == 0 else vr(ACC,16)}')
        if extra and k % every == 0: e(extra.pop(0))
    assert not extra

def gen_KV(e, kind):
    F = F_K if kind == 'k' else F_V
    e(f's_lshl_b32 {sFL}, {sH}, 8\ns_add_u32 {sFL}, {sFL}, {F}')
    load_weights(e, 'wk' if kind == 'k' else 'wv', kind)
    if kind == 'k':
        P = e.lab('nopr')
        e(f's_or_b32 {sT0}, {sH}, {sW}\ns_cbranch_scc1 {P}')
        probe_near(e, 4)
        e(f'{P}:')
    start_h(e)
    ACC = 16; FR = 32; PK = 8
    e(f'''s_lshl_b32 {sOUT}, {sH}, 13
    s_lshl_b32 {sT0}, {sW}, 11
    s_add_u32 {sOUT}, {sOUT}, {sT0}
    s_add_u32 {sOUT}, {sOUT}, {WS_K if kind == 'k' else WS_V}
    s_waitcnt vmcnt(10)''')
    L = e.lab('kv'); N = e.lab('kvn'); E = e.lab('kve')
    e(f'''s_mov_b32 {sT1}, 0
    {L}:
    s_barrier
    s_cmp_lg_u32 {sW}, 0
    s_cbranch_scc1 {N}''')
    set_flag(e, sFL, sT1, 1)
    trace(e, 64, 1, sS)
    e(f'{N}:')
    gemm(e, kind, ACC, FR, h_dma(), 3)
    for i in range(8): e(f'v_cvt_pk_bf16_f32 v{PK+i}, v{ACC+2*i}, v{ACC+2*i+1}')
    e(f'''buffer_store_dwordx4 {vr(PK,4)}, v{vA16}, {WS}, {sOUT} offen sc1
    buffer_store_dwordx4 {vr(PK+4,4)}, v{vA16}, {WS}, {sOUT} offen offset:1024 sc1
    s_add_u32 {sOUT}, {sOUT}, {32*8192}
    s_mov_b32 {sT1}, {sS}
    s_add_u32 {sS}, {sS}, 1
    s_cmp_gt_u32 {sS}, 2
    s_cbranch_scc1 {E}
    s_waitcnt vmcnt(0)
    s_mov_b32 {sT1}, {sS}
    {E}:
    s_cmp_lt_u32 {sS}, 64
    s_waitcnt vmcnt(12)
    s_cbranch_scc1 {L}
    s_waitcnt vmcnt(0)
    s_barrier''')
    set_flag(e, sFL, 64, 1)
    trace(e, 4, 1)
    e(f's_mov_b32 s27, {3 if kind == "k" else 4}\ns_branch L_join')

def mem0_in(e):
    Lt = e.lab('m0b'); Lg = e.lab('m0c')
    srd(e, 12, 'mem0')
    e(f'''s_and_b32 s36, {sW}, 1
    s_mul_i32 s37, s36, 640
    v_and_b32 v20, 7, v0
    v_bfe_u32 v21, v0, 4, 1
    s_waitcnt lgkmcnt(0)''')
    srd_fin(e, 12, 'mem0')
    e(f'''s_cmp_ge_u32 {sW}, 2
    s_cbranch_scc1 {Lt}
    s_mov_b32 s38, {sH}
    s_and_b32 {sT0}, {sH}, 3
    s_mul_i32 {sT0}, {sT0}, 2560
    s_lshr_b32 {sT1}, {sH}, 2
    s_lshl_b32 {sT1}, {sT1}, 4
    s_add_u32 {sT0}, {sT0}, {sT1}
    s_add_u32 {sT0}, {sT0}, s37
    v_mul_u32_u24 v22, 1280, v21
    v_lshl_add_u32 v22, v20, 1, v22
    buffer_load_ushort v23, v22, s[12:15], {sT0} offen
    buffer_load_ushort v24, v22, s[12:15], {sT0} offen offset:128
    buffer_load_ushort v25, v22, s[12:15], {sT0} offen offset:256
    buffer_load_ushort v26, v22, s[12:15], {sT0} offen offset:384
    s_waitcnt vmcnt(0)
    v_lshl_or_b32 v24, v24, 16, v23
    v_lshl_or_b32 v25, v26, 16, v25
    s_branch {Lg}
    {Lt}:
    s_and_b32 s38, {sH}, 7
    s_and_b32 {sT0}, s38, 1
    s_mul_i32 {sT0}, {sT0}, 5120
    s_lshr_b32 {sT1}, s38, 1
    s_lshl_b32 {sT1}, {sT1}, 5
    s_add_u32 {sT0}, {sT0}, {sT1}
    s_add_u32 {sT0}, {sT0}, s37
    s_add_u32 {sT0}, {sT0}, 512
    s_add_u32 s38, s38, 32
    v_lshrrev_b32 v22, 2, v20
    v_lshl_add_u32 v22, v22, 1, v21
    v_mul_u32_u24 v22, 1280, v22
    v_and_b32 v23, 3, v20
    v_lshl_add_u32 v22, v23, 3, v22
    buffer_load_dwordx2 v[24:25], v22, s[12:15], {sT0} offen
    s_waitcnt vmcnt(0)
    {Lg}:
    v_min_u32 v24, -2, v24
    v_min_u32 v25, -2, v25
    v_lshlrev_b32 v22, 3, v20
    v_lshl_add_u32 v22, v21, 6, v22
    s_lshl_b32 s38, s38, 7
    s_lshl_b32 s36, s36, 14
    s_add_u32 s38, s38, s36
    s_add_u32 s38, s38, {WS_M}
    s_add_u32 s37, s38, 8192''')

def mem0_out(e):
    e(f'''s_mov_b64 exec, 0x00ff00ff
    buffer_store_dwordx2 v[24:25], v22, {WS}, s38 offen sc1
    buffer_store_dwordx2 v[24:25], v22, {WS}, s37 offen sc1
    s_mov_b64 exec, -1''')

def gen_QA(e, cfg={}):
    def pt(i):
        if cfg.get('qprof'): e(f's_memtime s[{64+2*i}:{65+2*i}]')
    sKV, sKM, sVM, sC, sN = 's37', 's38', 's39', 's40', 's41'
    e(f's_lshl_b32 {sFL}, {sH}, 8\ns_add_u32 {sFL}, {sFL}, {F_QA}')
    mem0_in(e)
    claim_issue(e); claim_check(e)
    La = e.lab('arm')
    e(f'''v_mov_b64 v[8:9], -1
    v_mov_b64 v[10:11], -1
    v_mov_b64 v[12:13], 0
    v_lshlrev_b32 v6, 4, v0
    v_lshlrev_b32 v7, 3, v0
    s_lshl_b32 {sT0}, {sH}, 11
    s_add_u32 {sT0}, {sT0}, {WS_FLAG}
    buffer_store_dwordx2 v[12:13], v7, {WS}, {sT0} offen sc1
    s_max_u32 {sT0}, {sH}, 8
    s_lshl_b32 {sT0}, {sT0}, 12
    s_add_u32 {sT0}, {sT0}, {WS_M}
    buffer_store_dwordx4 v[8:11], v6, {WS}, {sT0} offen sc1
    s_mul_i32 {sT0}, {sH}, {18*4096}
    s_add_u32 {sT0}, {sT0}, {WS_VX}''')
    for j in range(18): e(f'buffer_store_dwordx4 v[8:11], v6, {WS}, {sT0} offen sc1\ns_add_u32 {sT0}, {sT0}, 4096')
    mem0_out(e)
    e(f's_waitcnt vmcnt(0)\ns_barrier\ns_cmp_lg_u32 {sW}, 0\ns_cbranch_scc1 {La}')
    count_in(e, D_ARM, 32, G_ARM, 8)
    e(f'{La}:')
    load_weights(e, 'wq', 'q', False)
    NP = cfg.get('park', 4)
    start_h(e, first=64-NP if NP else 0)
    LQ = 3*HB
    vQw, vQr, vK, vV, vFL, vF, vVM, vLF = 4, 5, 6, 7, 8, 9, 10, 11
    vKr, vVr = 170, 171
    BIAS = 12
    ACC = 20; FR = 36
    KX = 64; VX = 96; KM = 112; VM = 128; Q = 136
    S = 152; PX = 164; PM = 168; ONE = 172; O = 176; SUM = 192; T = 196; OP = 200
    e(f'''v_and_b32 v20, 15, v1            ; rho
    v_lshrrev_b32 v21, 4, v1         ; g
    s_and_b32 {sT0}, {sW}, 1
    s_lshr_b32 {sT1}, {sW}, 1        ; e half
    s_lshl_b32 s42, {sW}, 11
    s_add_u32 s42, s42, {LQ}
    v_add_u32 v{vQw}, s42, v{vA16}
    v_lshlrev_b32 v22, 9, v21
    v_lshl_add_u32 v23, v20, 4, v22
    s_lshl_b32 s42, {sT0}, 8
    s_add_u32 s42, s42, {LQ}
    v_add_u32 v{vQr}, s42, v23
    s_lshl_b32 s42, {sW}, 11
    v_add_u32 v{vV}, s42, v23
    v_add_u32 v22, s42, v22
    s_lshl_b32 s47, {sW}, 10
    s_lshl_b32 s48, {sW}, 12
    v_add_u32 v{vKr}, {LQ + 8192 + 256}, v{vA16}
    s_lshl_b32 s42, {sT1}, 13
    v_add_u32 v{vVr}, s42, v{vKr}
    v_lshrrev_b32 v24, 3, v20
    v_lshl_add_u32 v24, v24, 8, v22
    v_and_b32 v25, 7, v20
    v_lshl_add_u32 v{vK}, v25, 4, v24
    s_lshl_b32 s42, {sT1}, 11
    v_lshl_add_u32 v{vVM}, v1, 3, s42
    s_lshl_b32 {sOUT}, {sT0}, 17
    s_lshl_b32 s42, {sH}, 12
    s_add_u32 {sOUT}, {sOUT}, s42
    s_add_u32 {sKM}, s42, {WS_KM}
    s_add_u32 {sVM}, s42, {WS_VM}
    s_lshl_b32 s42, {sT1}, 11
    s_add_u32 {sOUT}, {sOUT}, s42
    s_add_u32 {sOUT}, {sOUT}, {WS_O}
    s_lshl_b32 {sKV}, {sH}, 13
    s_add_u32 {sKV}, {sKV}, {WS_K}
    s_mov_b32 {sC}, {f2u(128 ** -0.5 * math.log2(math.e))}
    s_lshl_b32 s42, {sT0}, 4
    v_add_u32 v20, s42, v20
    v_lshrrev_b32 v22, 1, v21
    v_and_b32 v23, 1, v21
    v_lshlrev_b32 v23, 2, v23
    v_lshl_add_u32 v22, v22, 4, v23
    v_mov_b32 v24, {f2u(-1e30)}''')
    for kt in range(2):
        for r in range(4):
            e(f'v_add_u32 v23, {8*kt+r}, v22\nv_cmp_gt_u32 vcc, v23, v20\nv_cndmask_b32 v{BIAS+4*kt+r}, 0, v24, vcc')
    e(f'''v_lshlrev_b32 v{vFL}, 13, v1
    s_lshl_b32 s43, {sH}, 8
    s_add_u32 s43, s43, {F_K}''')
    for i in range(4): e(f'v_mov_b32 v{ONE+i}, 0x3f803f80')
    e(f'v_mov_b32 v{T}, 0x3f803f80\nv_mov_b32 v{T+1}, 0')
    LF = LQ + 8192
    M, M2 = FR, FR+1
    LK = LF + 256
    def fetch():
        ld = [f's_add_u32 m0, s47, {LK + 16384}\ns_add_u32 s45, {sKM}, s47\nbuffer_load_dwordx4 v{vA16}, {WS}, s45 offen sc1 lds']
        for kk in range(2): ld.append(J(f'buffer_load_dwordx2 {vr(VM+4*kk+2*a,2)}, v{vVM}, {WS}, {sVM} offen offset:{1024*kk+512*a} sc1' for a in range(2)))
        ld.append(f's_add_u32 m0, s48, {LK}\ns_sub_u32 s45, {sKV}, {1024-128}\nbuffer_load_dwordx4 v{vK}, {WS}, {sKV} offen sc1 lds')
        ld.append(f'buffer_load_dwordx4 v{vK}, {WS}, s45 offen offset:1024 sc1 lds')
        ld.append(f's_add_u32 s45, {sKV}, {WS_V - WS_K - 2048}\nbuffer_load_dwordx4 v{vV}, {WS}, s45 offen offset:2048 sc1 lds')
        ld.append(f's_add_u32 s45, {sKV}, {WS_V - WS_K - 3072 + 256}\nbuffer_load_dwordx4 v{vV}, {WS}, s45 offen offset:3072 sc1 lds')
        return ld
    def qout(young):
        for i in range(8): e(f'v_cvt_pk_bf16_f32 v{FR+i}, v{ACC+2*i}, v{ACC+2*i+1}')
        e(f"""ds_write_b128 v{vQw}, {vr(FR,4)}
        ds_write_b128 v{vQw}, {vr(FR+4,4)} offset:1024
        s_waitcnt vmcnt({young}) lgkmcnt(0)
        s_barrier""")
    qrd = [f'ds_read_b128 {vr(Q+4*kap,4)}, v{vQr} offset:{2048*kap}' for kap in range(4)]
    def attend(last, Qr=None):
        Qo = (lambda k: vr(Q+4*k, 4)) if Qr is None else (lambda k: f'a[{Qr+4*k}:{Qr+4*k+3}]')
        for kap in range(4):
            for kt in range(2): e(f'ds_read_b128 {vr(KX+8*kap+4*kt,4)}, v{vKr} offset:{4096*kap + 1024*kt}')
            e(f'ds_read_b128 {vr(KM+4*kap,4)}, v{vKr} offset:{16384 + 1024*kap}')
        for kap in range(4):
            for kt in range(2):
                e(f'@wl\nv_mfma_f32_16x16x32_bf16 {vr(S+4*kt,4)}, {vr(KX+8*kap+4*kt,4)}, {Qo(kap)}, {vr(BIAS+4*kt,4) if kap == 0 else vr(S+4*kt,4)}')
            e(f'@wl\nv_mfma_f32_16x16x32_bf16 {vr(S+8,4)}, {vr(KM+4*kap,4)}, {Qo(kap)}, {"0" if kap == 0 else vr(S+8,4)}')
            if kap < 2: e(f'v_swap_b32 v{VM+4*kap+1}, v{VM+4*kap+2}')
        for i in range(4): e(f'ds_read_b128 {vr(VX+4*i,4)}, v{vVr} offset:{4096*(i//2) + 2048 + 1024*(i%2)}')
        e(f"""s_add_u32 {sKV}, {sKV}, {32*8192}
        s_add_u32 {sKM}, {sKM}, {32*4096}
        s_add_u32 {sVM}, {sVM}, {32*4096}""")
        if not last: e(J(qrd)); pt(4)
        e(f"""v_max3_f32 v{M}, v{S}, v{S+1}, v{S+2}
        v_max3_f32 v{M}, v{M}, v{S+3}, v{S+4}
        v_max3_f32 v{M}, v{M}, v{S+5}, v{S+6}
        v_max3_f32 v{M}, v{M}, v{S+7}, v{S+10}
        v_max_f32 v{M2}, v{M}, v{S+11}
        v_max_f32 v{M}, v{M}, v{S+11}
        v_permlane16_swap_b32 v{M}, v{M2}
        v_max_f32 v{M2+1}, v{M}, v{M2}
        v_max_f32 v{M}, v{M}, v{M2}
        v_permlane32_swap_b32 v{M}, v{M2+1}
        v_max_f32 v{M}, v{M}, v{M2+1}
        v_mul_f32 v{M}, {sC}, v{M}""")
        sv = [S+i for i in range(8)] + [S+10, S+11]
        for x in sv: e(f'v_fma_f32 v{x}, v{x}, {sC}, -v{M}')
        for x in sv: e(f'v_exp_f32 v{x}, v{x}')
        for i in range(4): e(f'v_cvt_pk_bf16_f32 v{PX+i}, v{S+2*i}, v{S+2*i+1}')
        e(f"""v_cvt_pk_bf16_f32 v{PM}, v{S+10}, v{S+11}
        v_cvt_pk_bf16_f32 v{PM+1}, v{S+10}, v{S+11}
        v_mfma_f32_16x16x32_bf16 {vr(SUM,4)}, {vr(ONE,4)}, {vr(PX,4)}, 0""")
        for i in range(4): e(f'@wl\nv_mfma_f32_16x16x32_bf16 {vr(O+4*i,4)}, {vr(VX+4*i,4)}, {vr(PX,4)}, 0')
        e(f'v_mfma_f32_16x16x16_bf16 {vr(SUM,4)}, {vr(T,2)}, {vr(PM,2)}, {vr(SUM,4)}')
        for i in range(4): e(f'v_mfma_f32_16x16x16_bf16 {vr(O+4*i,4)}, {vr(VM+2*i,2)}, {vr(PM,2)}, {vr(O+4*i,4)}')
        if not last: pt(5)
        if not last:
            W = e.lab('qaw')
            e(f"""s_cmp_lg_u32 {sW}, 0
            s_cbranch_scc1 {W}
            s_waitcnt vmcnt(1)
            ds_write_b32 v{vLF}, v{vF}
            {W}:""")
        if not last: pt(6)
        e(f'v_rcp_f32 v{M}, v{SUM}')
        for i in range(8): e(f'v_pk_mul_f32 {vr(O+2*i,2)}, {vr(O+2*i,2)}, {vr(M,2)} op_sel_hi:[1,0]')
        for i in range(8): e(f'v_cvt_pk_bf16_f32 v{OP+i}, v{O+2*i}, v{O+2*i+1}')
        e(f"""buffer_store_dwordx4 {vr(OP,4)}, v{vA16}, {WS}, {sOUT} offen sc1
        buffer_store_dwordx4 {vr(OP+4,4)}, v{vA16}, {WS}, {sOUT} offen offset:1024 sc1
        s_add_u32 {sOUT}, {sOUT}, {2*32*4096}""")
    e(f"""v_lshlrev_b32 v{vLF}, 2, v1
    v_add_u32 v{vLF}, {LF}, v{vLF}
    v_mov_b32 v{vF}, 0
    ds_write_b32 v{vLF}, v{vF}
    s_waitcnt vmcnt(10)
    s_barrier""")
    for i in range(NP):
        if i == NP - 2: e(f's_sub_u32 {sHS}, {sHS}, {64*HB}')
        gemm(e, 'q', ACC, FR, h_dma(), 3)
        qout(10)
        for kap in range(4): e(f'ds_read_b128 a[{160+16*i+4*kap}:{163+16*i+4*kap}], v{vQr} offset:{2048*kap}')
        e('s_waitcnt lgkmcnt(0)\ns_barrier')
    gemm(e, 'q', ACC, FR, h_dma(), 3)
    qout(10)
    e(J(qrd))
    L = e.lab('qa'); G = e.lab('qag'); N = e.lab('qan'); N2 = e.lab('qan2'); Z = e.lab('qaz')
    e(f'{L}:\ns_cmp_eq_u32 {sS}, {63-NP}\ns_cbranch_scc1 {Z}'); pt(0)
    e(f"""s_waitcnt lgkmcnt(0)
    s_barrier
    ds_read_b32 v{vF}, v{vLF}
    s_add_u32 {sN}, {sS}, 1
    s_mov_b64 exec, 15
    s_waitcnt lgkmcnt(0)
    v_cmp_gt_u32 vcc, {sN}, v{vF}
    s_mov_b64 exec, -1
    s_cbranch_vccz {G}
    s_waitcnt vmcnt(0)
    s_barrier
    s_cmp_lg_u32 {sW}, 0
    s_cbranch_scc1 {N}""")
    set_flag(e, sFL, sS, vF)
    wait_flags(e, vFL, 's43', 15, sN, vF, sleep=1)
    e(f'{N}:\ns_barrier\n{G}:')
    trace(e, 192, vF, sS)
    pt(1)
    gemm(e, 'q', ACC, FR, fetch() + h_dma(), 2)
    pt(2)
    qout(10)
    pt(3)
    e(f"""s_cmp_lg_u32 {sW}, 0
    s_cbranch_scc1 {N2}
    s_mov_b64 exec, 15
    buffer_load_dword v{vF}, v{vFL}, {WS}, s43 offen sc1""")
    trace(e, 64, M, sS)
    set_flag(e, sFL, sS, M)
    e(f'{N2}:')
    attend(False)
    pt(7)
    if cfg.get('qprof'):
        X = e.lab('tp')
        e(f's_cmp_lg_u32 {sS}, {cfg["qprof"]}\ns_cbranch_scc1 {X}\ns_waitcnt lgkmcnt(0)')
        for i in range(16): e(f'v_mov_b32 v{220+i}, s{64+2*i}')
        e(f's_lshl_b32 {sT0}, {sH}, 2\ns_add_u32 {sT0}, {sT0}, {sW}\ns_lshl_b32 {sT0}, {sT0}, 6\ns_add_u32 {sT0}, {sT0}, {WS_DBG}\ns_mov_b64 exec, 1')
        for j in range(4): e(f'buffer_store_dwordx4 {vr(220+4*j,4)}, off, {WS}, {sT0} offset:{16*j}')
        e(f's_mov_b64 exec, -1\n{X}:')
    e(f's_mov_b32 {sS}, {sN}\ns_branch {L}\n{Z}:')
    wait_flags(e, vFL, 's43', 3, 64, vF, sleep=1)
    for i in range(NP + 1):
        N3 = e.lab('qan3'); N4 = e.lab('qan4'); N5 = e.lab('qan5'); N6 = e.lab('qan6'); f = fetch()
        e('s_waitcnt lgkmcnt(0)\ns_barrier')
        e(J(f[3:]))
        e(f'''s_mov_b64 exec, 12
        buffer_load_dword v{vF}, v{vFL}, {WS}, s43 offen sc1
        s_waitcnt vmcnt(0)
        v_cmp_gt_u32 vcc, {64-NP+i}, v{vF}
        s_mov_b64 exec, -1
        s_cbranch_vccnz {N3}
        {J(f[:3])}
        {N3}:
        s_barrier
        s_cmp_lg_u32 {sW}, 1
        s_cbranch_scc1 {N4}''')
        set_flag(e, sFL, 63-NP+i, vF)
        e(f's_waitcnt vmcnt(1)\ns_cbranch_vccz {N6}\n{N4}:\ns_cbranch_vccz {N5}')
        wait_flags(e, vFL, 's43', 12, 64-NP+i, vF)
        e(J(f[:3]))
        e(f'{N5}:\ns_waitcnt vmcnt(0)\n{N6}:\ns_waitcnt lgkmcnt(0)\ns_barrier\ns_mov_b32 {sS}, {63-NP+i}')
        trace(e, 192, vF, sS)
        attend(True, 160 + 16*(i-1) if i else None)
    e(f's_waitcnt vmcnt(0)\ns_barrier\ns_cmp_lg_u32 {sW}, 0\ns_cbranch_scc1 L_exit')
    set_flag(e, sFL, 64, vF)
    trace(e, 4, vF); diag(e, 58, 20)
    e('s_branch L_exit')
```

```python
from common import *

def f2u(x): return struct.unpack('<I', struct.pack('<f', x))[0]
SCALE_LOG2E = f2u(128 ** -0.5 * math.log2(math.e))

WS = 's[4:7]'
sH, sW, sA = 's25', 's26', 's27'
sSTEP, sUNIT, sNEAR, sSPIN = 's28', 's29', 's30', 's31'
sMP, sPubS, sPubF, sRstS, sRstF = 's32', 's33', 's34', 's35', 's36'
sVXst, sVXld, sVXrs = 's37', 's38', 's39'
sPst, sPld, sPrst = 's40', 's41', 's42'
sK, sV, sKM = 's43', 's44', 's45'
sC = 's46'
sMPc, sSc, sFc, sVXo, sVXp, sPc = 's47', 's48', 's49', 's50', 's51', 's52'
sT0, sT1, sT2, sT3 = 's53', 's54', 's55', 's56'
sEB0 = 's[58:59]'
sEPUB = 's[60:61]'
sEKM = 's[12:13]'; sEVM = 's[14:15]'; sVM = 's16'; sPro = 's17'; sNEED = 's18'; sPrst2 = 's19'; sV2 = 's20'; sEX = 's[62:63]'; sSEEN = 's22'; sFK = 's23'; sFR = 's2'; sK2 = 's21'; sXo = 's57'; sXd = 's35'; sFP = 's[10:11]'; sSN = 's[8:9]'

L_MEM, L_SX, L_SM, L_O, L_SEL, L_KV = 0, 10240, 14336, 15360, 17408, 18432

vIDX = 1; vID = 2
vA16, vM16, vM4, vMrd, vMrd4, vPerm, vSwr, vSwr2, vOwr, vPst4, vPst1, vPub, vKld, vVld, vStg, vStg2 = range(4, 20)
vT = 20
vPL = 22
vVrd = 0
vA = 32
vACC = 52
vKX = 76; vVX = 84; vREM = 92; vA8 = 94; vZERO = 95
vSTG = 96

def vr(b, n=1): return f'v{b}' if n == 1 else f'v[{b}:{b+n-1}]'

def srd(e, s, name):
    e(f's_load_dwordx2 s[{s}:{s+1}], s[0:1], {KA[name]}')
def srd_fin(e, s, name):
    e(f's_mov_b32 s{s+2}, {SZ[name]}\ns_mov_b32 s{s+3}, 0x20000')

def interleave(e, mf, fill, per=1, start=0):
    fill = list(fill)
    for i, m in enumerate(mf):
        e(m)
        if i >= start:
            for _ in range(per):
                if fill: e(fill.pop(0))
    for f in fill: e(f)

class RCfg:
    fast = 1; stamps = 0; nsteps = 64; standalone = 1; near = -1; cap = 40
    d1 = 20; d2 = 150; gap = 120; gapA = 140; KA = 2; rmode = 2; rp = 24; vl = 50; smax = 1; xp = 3; warm = 63
    dp = (9, 10, 30, 60); early = 0; quick = 0; lazy = 5; hotA = None; hotL = 0; sup = 26; lim = 32.0; nb = 2; egap = 60; lsp = 1; vck = 1; nl = 2; vmp = 33; vrp = 60; prp = 35
    nokv = 0; nokm = 0

def tiles_plan():
    lds = [('q','L',0), ('k','L',0), ('q','R',0), ('k','R',0), ('o','',3), ('o','',4)]
    allt = [(m,'L',c) for c in range(5) for m in 'vqk'] + [(m,'R',c) for c in range(5) for m in 'qk'] + [('o','',t) for t in range(5)]
    reg = [t for t in allt if t not in lds]
    loc = {}
    for i, t in enumerate(reg):
        loc[t] = ('a', 16*i) if i < 16 else ('v', 128 + 16*(i-16))
    order = reg + lds
    slot = {t: n % 10 for n, t in enumerate(order)}
    for i, t in enumerate(lds): loc[t] = ('v', vSTG + 16*(i % 2))
    return order, loc, slot, lds

def gen_R(e, cfg):
    order, loc, slot, lds = tiles_plan()
    def W(t, j):
        k, b = loc[t]; return f'{k}[{b+8*j}:{b+8*j+7}]'
    def stamp(i):
        if cfg.stamps == 1: e(f's_memtime s[{64+2*i}:{65+2*i}]')
        e(f'; MARK {i}')
    def mk(i):
        if cfg.stamps == 4: e(f's_memtime s[{64+2*i}:{65+2*i}]')
    def nops(c):
        n = c // 4
        while n > 0:
            k = min(n, 16); e(f's_nop {k-1}'); n -= k
    srd(e, 8, 'wq'); srd(e, 12, 'wk'); srd(e, 16, 'wv'); srd(e, 20, 'wo')
    e(f'''
    v_and_b32 v0, 63, v0
    v_and_b32 v40, 15, v0            ; rho
    v_lshrrev_b32 v41, 4, v0         ; g
    v_lshlrev_b32 {vr(vA16)}, 4, v0
    s_waitcnt lgkmcnt(0)''')
    srd_fin(e, 8, 'wq'); srd_fin(e, 12, 'wk'); srd_fin(e, 16, 'wv'); srd_fin(e, 20, 'wo')
    e(f'''
    v_and_b32 v42, 1, v41
    v_lshrrev_b32 v43, 1, v41        ; rr>>1
    s_lshr_b32 {sT0}, {sW}, 1
    s_and_b32 {sT1}, {sW}, 1
    v_lshlrev_b32 v44, 2, v41
    v_xor_b32 v44, v44, v40
    v_lshlrev_b32 v44, 4, v44
    s_lshl_b32 {sT2}, {sH}, 8
    v_add_u32 v44, {sT2}, v44
    v_lshlrev_b32 v45, 6, v42
    v_lshl_add_u32 v45, v43, 1, v45
    s_lshl_b32 {sT2}, {sT0}, 2
    s_add_u32 {sT2}, {sT2}, {sT1}
    v_add_u32 v45, {sT2}, v45
    v_lshl_add_u32 v60, v45, 13, v44
    v_lshl_add_u32 v45, v43, 3, v42
    s_lshl_b32 {sT2}, {sT0}, 4
    s_lshl_b32 {sT3}, {sT1}, 2
    s_add_u32 {sT2}, {sT2}, {sT3}
    v_add_u32 v45, {sT2}, v45
    v_lshl_add_u32 v61, v45, 13, v44
    v_bfe_u32 v45, v0, 3, 1
    v_bfe_u32 v46, v0, 4, 1
    v_lshl_add_u32 v45, v46, 3, v45
    v_lshrrev_b32 v46, 5, v0
    v_lshl_add_u32 v45, v46, 2, v45
    s_lshl_b32 {sT2}, {sT0}, 6
    s_lshl_b32 {sT3}, {sT1}, 4
    s_add_u32 {sT2}, {sT2}, {sT3}
    v_add_u32 v45, {sT2}, v45
    v_mul_u32_u24 v45, 1280, v45
    v_and_b32 v46, 7, v0
    v_lshlrev_b32 v47, 1, v41
    v_xor_b32 v46, v46, v47
    v_lshl_add_u32 v45, v46, 4, v45
    s_mul_i32 {sT2}, {sH}, 163840
    s_mul_i32 {sT3}, {sA}, 640
    s_add_u32 {sT2}, {sT2}, {sT3}
    v_add_u32 v62, {sT2}, v45
    v_bfe_u32 v45, v0, 2, 2          ; rr
    v_and_b32 v46, 3, v0             ; cc
    v_xor_b32 v47, {sW}, v45
    v_lshl_add_u32 v47, v47, 2, v46
    v_lshlrev_b32 v47, 4, v47
    v_lshl_add_u32 v47, v45, 8, v47
    v_lshl_add_u32 v63, v41, 12, v47
    v_lshl_add_u32 v47, v42, 2, v45  ; (gB&1)*4+rr
    v_lshrrev_b32 v48, 1, v47
    v_xor_b32 v48, {sW}, v48
    v_lshlrev_b32 v48, 5, v48
    v_lshl_add_u32 v48, v46, 3, v48
    v_lshl_add_u32 v48, v47, 7, v48
    v_lshl_add_u32 v64, v43, 12, v48
    s_mul_i32 s57, {sA}, {320*8192}
    s_sub_u32 s62, {320*8192}, s57
    s_lshl_b32 s63, {sW}, 12
    v_add_u32 {vr(vStg)}, s63, {vr(vA16)}''')
    def dma(n):
        m, side, c = order[n]
        e(f's_add_u32 m0, s63, {slot[order[n]]*16384}')
        for t4 in range(4):
            if m == 'o':
                so = (32*(t4 >> 1) + 2*(t4 & 1))*1280 - 1024*t4 + 128*c
                e(f's_mov_b32 {sT0}, {so}')
                e(f'buffer_load_dwordx4 v62, s[20:23], {sT0} offen offset:{1024*t4} lds')
            else:
                rows = (16*c + 128*(t4 & 1) + 8*(t4 >> 1)) if c < 4 else (256 + 32*(t4 >> 1) + 2*(t4 & 1))
                so = rows*8192 - 1024*t4
                e(f's_add_u32 {sT0}, {"s57" if side == "L" else "s62"}, {so}')
                s = dict(q=8, k=12, v=16)[m]
                e(f'buffer_load_dwordx4 {"v60" if c < 4 else "v61"}, s[{s}:{s+3}], {sT0} offen offset:{1024*t4} lds')
    e(f'''    ; reducer unit
    s_mov_b32 {sUNIT}, -1
    s_cmp_eq_u32 {sW}, 0
    s_cselect_b32 {sUNIT}, {sH}, {sUNIT}
    s_and_b32 {sT0}, {sH}, 3
    s_lshl_b32 {sT0}, {sT0}, 2
    s_or_b32 {sT0}, {sT0}, {sW}
    s_lshr_b32 {sT1}, {sH}, 2
    s_add_u32 {sT1}, {sT1}, 32
    s_cmp_eq_u32 {sT0}, 1
    s_cselect_b32 {sUNIT}, {sT1}, {sUNIT}
    s_cmp_lt_i32 {sUNIT}, 0
    s_cselect_b32 {sT0}, {sH}, {sUNIT}
    s_lshl_b32 {sT0}, {sT0}, 7
    v_and_b32 v54, 7, v0
    v_lshlrev_b32 v55, 3, v54
    v_lshl_add_u32 v55, v42, 6, v55
    v_add_u32 {vr(vPub)}, {sT0}, v55
    s_mov_b32 s60, 0x00ff00ff
    s_mov_b32 s61, 0
    s_lshl_b32 {sT0}, {sA}, 5
    s_add_u32 {sT0}, {sT0}, {sH}
    s_lshl_b32 {sT0}, {sT0}, 8
    s_add_u32 {sFR}, {sT0}, {F_R}''')
    for n in range(10): dma(n)
    e(f'''
    v_bfe_u32 v45, v0, 1, 1          ; b
    v_and_b32 v46, 1, v0             ; i&1
    v_lshrrev_b32 v47, 2, v40        ; i>>1
    v_lshl_add_u32 v48, v47, 1, v46  ; i
    v_mov_b32 {vr(vIDX)}, 0x4444
    v_mov_b32 v49, 0xeeee
    v_cmp_eq_u32 vcc, 1, v45
    v_cndmask_b32 {vr(vIDX)}, {vr(vIDX)}, v49, vcc
    v_lshlrev_b32 v49, 4, v48
    v_lshl_add_u32 v50, v45, 7, v49
    v_lshl_add_u32 {vr(vPerm)}, v41, 8, v50
    s_lshl_b32 {sT0}, {sW}, 10
    v_add_u32 {vr(vSwr)}, {sT0}, {vr(vPerm)}
    s_lshl_b32 {sT0}, {sW}, 2
    s_add_u32 {sT0}, {sT0}, {L_SM}
    v_add_u32 {vr(vSwr2)}, {sT0}, {vr(vPerm)}
    v_lshl_add_u32 v50, v41, 7, v49
    s_lshl_b32 {sT0}, {sW}, 9
    v_add_u32 {vr(vOwr)}, {sT0}, v50
    v_lshlrev_b32 v50, 4, v45
    v_lshl_add_u32 v50, v46, 6, v50
    v_lshl_add_u32 v51, v42, 5, v50
    v_lshl_add_u32 v51, v47, 7, v51
    v_lshl_add_u32 {vr(vMrd)}, v43, 9, v51
    v_and_b32 v51, 1, v47
    v_lshl_add_u32 v51, v51, 5, v50
    v_lshrrev_b32 v52, 1, v47
    v_lshl_add_u32 v51, v52, 7, v51
    v_lshl_add_u32 {vr(vMrd4)}, v41, 8, v51
    s_mul_i32 {sT0}, {sW}, 1280
    v_add_u32 {vr(vM16)}, {sT0}, {vr(vA16)}
    s_add_u32 {sT0}, {sT0}, 1024
    v_lshlrev_b32 v51, 2, v0
    v_add_u32 {vr(vM4)}, {sT0}, v51
    v_lshl_add_u32 v51, v52, 2, v41
    s_lshl_b32 {sT0}, {sW}, 3
    v_add_u32 v51, {sT0}, v51
    v_and_b32 v53, 7, v0
    v_lshlrev_b32 v54, 4, v53
    v_lshl_add_u32 v51, v51, 12, v54
    s_lshl_b32 {sT1}, {sH}, 7
    v_add_u32 {vr(vPst4)}, {sT1}, v51
    s_lshl_b32 {sT0}, {sW}, 1
    s_add_u32 {sT0}, {sT0}, 32
    v_add_u32 v51, {sT0}, v43
    v_and_b32 v55, 31, v0
    v_lshlrev_b32 v55, 2, v55
    v_lshl_add_u32 v51, v51, 12, v55
    v_add_u32 {vr(vPst1)}, {sT1}, v51
    s_lshl_b32 {sT0}, {sW}, 11
    v_lshl_add_u32 v51, v41, 9, {sT0}
    v_lshl_add_u32 {vr(vVld)}, v40, 4, v51
    v_lshl_add_u32 v51, v52, 8, v51
    v_add_u32 {vr(vKld)}, v51, v54
    v_mov_b32 v55, 0x3f80
    v_lshlrev_b32 v56, 4, v46
    v_lshlrev_b32 v55, v56, v55
    v_cmp_eq_u32 vcc, v47, v41
    v_cndmask_b32 v55, 0, v55, vcc
    v_cmp_eq_u32 vcc, 0, v45
    v_cndmask_b32 {vr(vID)}, 0, v55, vcc
    v_cndmask_b32 {vr(vID+1)}, v55, 0, vcc
    v_mov_b32 v65, 0x3f80
    v_bfe_u32 v66, v0, 2, 1
    v_lshlrev_b32 v66, 4, v66
    v_lshlrev_b32 v65, v66, v65
    v_cmp_gt_u32 vcc, 8, v40
    v_cndmask_b32 v65, 0, v65, vcc
    v_and_b32 v66, 3, v0''')
    for j in range(4):
        e(f'v_cmp_eq_u32 vcc, {j}, v66\nv_cndmask_b32 v{56+j}, 0, v65, vcc')
    e(f'''
    s_mov_b32 s58, 0x33333333
    s_mov_b32 s59, 0x33333333
    s_mov_b32 {sC}, {SCALE_LOG2E}
    v_add_u32 {vr(vStg2)}, 0x10000, {vr(vStg)}''')
    vdma = [f'buffer_load_dwordx4 {vr(vVld)}, {WS}, {sV} offen sc1 lds',
            f'buffer_load_dwordx4 {vr(vVld)}, {WS}, {sV2} offen offset:1024 sc1 lds']
    kdma = [f'buffer_load_dwordx4 {vr(vKld)}, {WS}, {sK} offen offset:2048 sc1 lds',
            f'buffer_load_dwordx4 {vr(vKld)}, {WS}, {sK2} offen offset:3072 sc1 lds']
    def kvwait(target):
        e(f'v_lshlrev_b32 v{vT}, 9, {vr(vA16)}')
        wait_flags(e, vT, sFK, 3, target, vT + 1, sleep=1)
        e(f'v_readlane_b32 {sSEEN}, v{vT+1}, 0\nv_readlane_b32 {sT3}, v{vT+1}, 1\ns_min_u32 {sSEEN}, {sSEEN}, {sT3}')
    def startup():
        L = e.lab('su'); D = e.lab('sud'); L2 = e.lab('sv'); D2 = e.lab('svd')
        e(f"""s_lshl_b32 {sFK}, {sH}, 8
        s_add_u32 {sFK}, {sFK}, {F_K}
        s_add_u32 s10, s4, {sFK}
        s_addc_u32 s11, s5, 0
        s_load_dwordx8 s[12:19], {DBG}, 128
        s_waitcnt lgkmcnt(0)
        s_min_u32 {sT0}, s12, s16
        s_min_u32 {sT0}, {sT0}, s17
        s_cmp_lg_u32 {sT0}, 0
        s_cbranch_scc1 {D}""")
        wait_go(e, 49, 66)
        e(f"""v_readlane_b32 s12, v67, 0
        v_readlane_b32 s16, v67, 4
        {D}:
        s_cmp_eq_u32 s12, 1
        s_cselect_b32 {sFAST}, 1, 0
        s_and_b32 {sNEAR}, s16, 2
        s_lshl_b32 {sNEAR}, {sNEAR}, 12""")
        if cfg.near >= 0: e(f's_mov_b32 {sNEAR}, {cfg.near}')
        trace(e, 2, 66)
        e(f"""s_lshl_b32 {sT0}, {sA}, 5
        s_add_u32 {sT0}, {sT0}, {sH}
        s_lshl_b32 {sT0}, {sT0}, 2
        s_add_u32 {sT0}, {sT0}, {sW}
        s_mul_i32 {sT0}, {sT0}, 5120
        s_add_u32 {sT0}, {sT0}, {WS_P}
        v_lshlrev_b32 v66, 3, {vr(vA16)}
        s_mov_b32 exec_hi, 0xff
        buffer_load_dword v{vVX}, v66, {WS}, {sT0} offen sc1
        s_lshl_b32 {sT0}, {sW}, 15
        s_lshl_b32 {sT1}, {sA}, 14
        s_add_u32 {sT0}, {sT0}, {sT1}
        s_sub_u32 {sT0}, {sT0}, {sNEAR}
        s_add_u32 {sT0}, {sT0}, {WS_M + 8192}
        buffer_load_dword v{vVX+1}, v66, {WS}, {sT0} offen sc1
        s_mov_b32 exec_hi, -1
        s_getpc_b64 s[12:13]
        global_load_dword v{vVX+2}, v66, s[12:13] offset:1024
        {L2}:
        s_load_dword s8, {sFP}, 0 glc
        s_load_dword s9, {sFP}, {F_V - F_K} glc
        s_waitcnt lgkmcnt(0)
        s_min_u32 {sSEEN}, s8, s9
        s_cmp_lg_u32 {sSEEN}, 0
        s_cbranch_scc1 {D2}
        s_sleep 1""")
        spin(e)
        e(f"""s_branch {L2}
        {D2}:
        s_lshl_b32 {sT0}, {sH}, 13
        s_add_u32 {sV}, {sT0}, {WS_V}
        s_add_u32 {sV2}, {sT0}, {WS_V - 768}
        s_add_u32 {sK}, {sT0}, {WS_K - 2048}
        s_add_u32 {sK2}, {sT0}, {WS_K - 3072 + 128}
        s_add_u32 m0, s63, {L_KV}
        v_add_u32 {vr(vVrd)}, s63, {vr(vA16)}""")
        e(J(kdma + vdma))
    def wb(t):
        base = slot[t]*16384; k, b = loc[t]
        e(f'v_add_u32 v66, {base}, {vr(vStg)}')
        for j in range(4): e(f'ds_write_b128 v66, {k}[{b+4*j}:{b+4*j+3}] offset:{1024*j}')
    last = 9
    for n in range(30):
        t = order[n]
        e(f's_waitcnt vmcnt({4*(last-n) + (7 if n > cfg.sup else 0)})\ns_barrier')
        if n == cfg.sup: startup()
        if n == 10 and not cfg.standalone: claim_check(e)
        if n >= 1 and n+9 < 30: dma(n+9); last = n+9
        if n >= 1 and order[n-1] in lds: wb(order[n-1])
        k, b = loc[t]
        e(f'v_add_u32 v65, {slot[t]*16384}, {"v64" if t[0] == "o" else "v63"}')
        for j in range(2):
            for t4 in range(4):
                off = 1024*t4 + (8192*j if t[0] == 'o' else 8*j)
                e(f'ds_read_b64_tr_b16 {k}[{b+8*j+2*t4}:{b+8*j+2*t4+1}], v65 offset:{off}')
        e('s_waitcnt lgkmcnt(0)')
        if n == 9 and not cfg.standalone: claim_issue(e)
    e('s_barrier')
    wb(order[29])
    e(f'ds_write_b128 {vr(vA16)}, v[56:59] offset:{L_SEL}')
    e(f'v_add_u32 {vr(vStg)}, {4*16384}, {vr(vStg)}\nv_add_u32 {vr(vStg2)}, {4*16384}, {vr(vStg2)}')
    def stage(i):
        out = []
        for t in lds[2*i:2*i+2]:
            o = (slot[t]-4)*16384; k, b = loc[t]
            for j in range(4):
                oo = o + 1024*j
                out.append(f'ds_read_b128 v[{b+4*j}:{b+4*j+3}], {vr(vStg if oo < 65536 else vStg2)} offset:{oo % 65536}')
        return out
    def body(fast):
        sc = '' if fast else ' sc1'
        e(f'''
        s_lshl_b32 {sT0}, {sA}, 14
        s_add_u32 {sSc}, {sT0}, {sNEAR}
        s_add_u32 {sSc}, {sSc}, {WS_M}''')
        if fast: e(f's_xor_b32 {sFc}, {sSc}, 8192')
        else: e(f's_mov_b32 {sFc}, {sSc}')
        e(f'''
        s_xor_b32 {sMPc}, {sSc}, 16384
        s_lshl_b32 {sT0}, {sA}, 5
        s_add_u32 {sT0}, {sT0}, {sH}
        s_lshl_b32 {sT0}, {sT0}, 14
        s_lshl_b32 {sT1}, {sW}, 9
        s_add_u32 {sT0}, {sT0}, {sT1}
        s_add_u32 {sT0}, {sT0}, {sNEAR}
        s_add_u32 {sVXo}, {sT0}, {WS_VX}
        s_mul_i32 {sT0}, {sA}, 655360
        s_add_u32 {sPc}, {sT0}, {WS_P}
        s_lshl_b32 {sT0}, {sH}, 12
        s_lshl_b32 {sT1}, {sW}, 10
        s_add_u32 {sT0}, {sT0}, {sT1}
        s_add_u32 {sKM}, {sT0}, {WS_KM}
        s_lshl_b32 {sT1}, {sA}, 9
        s_add_u32 {sT0}, {sT0}, {sT1}
        s_add_u32 {sVM}, {sT0}, {WS_VM}
        s_cmp_eq_u32 {sA}, 0
        s_cselect_b32 s14, -1, 0
        s_cselect_b32 s15, 0, -1
        s_mul_i32 {sT0}, {sH}, 5120
        s_add_u32 {sPro}, {sT0}, {sPc}
        v_lshrrev_b32 v{vA8}, 1, {vr(vA16)}
        v_mov_b32 v{vZERO}, 0
        s_mov_b32 s12, {sC}
        s_mov_b32 s13, {sC}
        s_add_u32 {sPst}, {sPc}, {3*163840}
        s_mov_b32 {sSTEP}, 0''')
        def step_scalars():
            return f'''s_and_b32 {sT0}, {sSTEP}, 3
        s_xor_b32 {sT1}, {sT0}, 2
        s_mul_i32 {sT1}, {sT1}, 163840
        s_add_u32 {sPrst}, {sPro}, {sT1}
        s_mul_i32 {sT1}, {sT0}, 163840
        s_add_u32 {sPst}, {sPc}, {sT1}
        s_lshl_b32 {sT0}, {sT0}, 15
        s_add_u32 {sMP}, {sMPc}, {sT0}
        s_add_u32 {sPubS}, {sSc}, {sT0}
        s_add_u32 {sPubF}, {sFc}, {sT0}
        s_xor_b32 {sT1}, {sT0}, {2 << 15}
        s_add_u32 {sRstF}, {sFc}, {sT1}
        s_add_u32 {sT1}, {sSc}, {sT1}
        s_cmp_lt_i32 {sUNIT}, 0
        s_cselect_b32 {sXo}, {sFR}, {sT1}
        s_cselect_b32 {sXd}, {sSTEP}, -1
        s_add_u32 {sNEED}, {sSTEP}, 2
        s_min_u32 {sNEED}, {sNEED}, 64
        s_add_u32 {sT0}, {sSTEP}, {sH}
        s_and_b32 {sT0}, {sT0}, 3
        s_lshl_b32 {sT0}, {sT0}, 11
        s_add_u32 {sVXst}, {sVXo}, {sT0}
        s_xor_b32 {sVXld}, {sVXst}, {1 << 19}
        s_xor_b32 {sVXrs}, {sVXst}, 4096'''.split('\n')
        e('s_waitcnt lgkmcnt(0)\ns_barrier')
        if cfg.stamps:
            for i in range(84, 100): e(f's_mov_b32 s{i}, 0')
            e('s_memtime s[82:83]\ns_memtime s[64:65]\ns_memtime s[66:67]')

        Ldone = e.lab('rdone'); Labort = 'L_exit'
        q0, q1, k0, k1, v0, v1 = (vACC + 4*i for i in range(6))
        M = vT; M2 = vT + 1
        e(f"""s_cmp_eq_u32 {sW}, 3
        s_cselect_b32 {sT0}, {sFR}, {WS_BYTES}
        s_mov_b32 {sFR}, {sT0 if not cfg.standalone else WS_BYTES}
        s_cmp_lt_i32 {sUNIT}, 0
        s_cselect_b32 s62, 1, s60
        s_mov_b32 s63, 0
        s_cselect_b64 vcc, -1, 0
        v_cndmask_b32 {vr(vPub)}, {vr(vPub)}, 0, vcc""")
        land = [(vPL, vPL+4), (vPL+6, vPL+5), (vKX, vKX+4)]
        def mloads(rem, st=None):
            p, q = land[rem if st is None else st]; so = sMP if rem else sPubF
            return [f'buffer_load_dwordx4 {vr(p,4)}, {vr(vM16)}, {WS}, {so} offen sc1',
                    f'buffer_load_dword {vr(q)}, {vr(vM4)}, {WS}, {so} offen sc1']
        def dump():
            e(f"""s_lshl_b32 {sT0}, {sA}, 5
            s_add_u32 {sT0}, {sT0}, {sH}
            s_lshl_b32 {sT0}, {sT0}, 2
            s_add_u32 {sT0}, {sT0}, {sW}
            s_lshl_b32 {sT0}, {sT0}, 6
            s_add_u32 {sT0}, {sT0}, {WS_DBG}""")
            for i in range(16): e(f'v_mov_b32 v{vA+4+i}, s{84+i if cfg.stamps < 3 else 64+2*i}')
            e('s_mov_b64 exec, 1')
            for j in range(4): e(f'buffer_store_dwordx4 {vr(vA+4+4*j,4)}, {vr(vA16)}, {WS}, {sT0} offen offset:{16*j}')
        def steplog():
            if TRACE[0] != 4: return
            e(f'''ds_read_b64 {vr(vA,2)}, v{vA8} offset:36000
            s_lshl_b32 {sT0}, {sA}, 5
            s_add_u32 {sT0}, {sT0}, {sH}
            s_lshl_b32 {sT0}, {sT0}, 9
            s_add_u32 {sT0}, {sT0}, {WS_DBG}
            s_waitcnt lgkmcnt(0)
            buffer_store_dwordx2 {vr(vA,2)}, v{vA8}, {WS}, {sT0} offen''')
        tail = []
        def retry(R, body, L, cnt):
            tail.append(f"""{R}:
            s_sub_u32 {sSPIN}, {sSPIN}, 1
            s_cbranch_scc1 {Labort}
            {f's_add_u32 s{cnt}, s{cnt}, 1' if cfg.stamps in (1,2) else ''}
            {body}
            {f's_branch {L}' if L else ''}""")
        def mchk(rem, st=None):
            p, q = land[rem if st is None else st]; o = L_MEM + (0 if rem else 5120)
            return [f'ds_write_b128 {vr(vM16)}, {vr(p,4)} offset:{o}',
                    f'ds_write_b32 {vr(vM4)}, {vr(q)} offset:{o}',
                    f'v_max3_u32 v{M}, v{p}, v{p+1}, v{p+2}',
                    f'v_max3_u32 v{M}, v{M}, v{p+3}, v{q}',
                    f'v_cmp_eq_u32 vcc, -1, v{M}']
        def aread(base, c): return f'ds_read_b128 {vr(vA+4*c,4)}, {vr(vMrd if c < 4 else vMrd4)} offset:{base+1024*c}'
        def smf(acc, c, t, j): return f'@wl\nv_smfmac_f32_16x16x64_bf16 {vr(acc,4)}, {vr(vA+4*c,4)}, {W(t,j)}, {vr(vIDX)}'
        def zero(b, n): return [f'v_mov_b64 {vr(b+i,2)}, 0' for i in range(0, n, 2)]
        def em(l):
            for x in l: e(x)
        def younger(line):
            n = 0
            for l in reversed(e.lines):
                if l == line: return n
                n += l.startswith('buffer_')
        def paced(l, cyc):
            k = max(0, (cyc // 4 - len(l)) // max(len(l), 1))
            for x in l:
                e(x)
                if k: e(f's_nop {k-1}')
        def m4(i): return f's_memtime s[{64+2*i}:{65+2*i}]' if cfg.stamps == 4 else ''

        Lstep = e.lab('step')
        em(stage(0)); em(step_scalars())
        e(f'{Lstep}:')
        e('; MARK 1')
        z = zero(vACC, 24)
        paced(z[:6], cfg.d2)
        mk(5)
        em(mloads(0))
        paced(z[6:] + [f'v_mov_b32 v{vREM}, {sXd}', f'v_mov_b32 v{vREM+1}, {sXd}'], cfg.gap)
        em(mloads(0, 1))
        Lok = e.lab('lok'); Lre = e.lab('lre')
        W0 = 's_waitcnt lgkmcnt(0)'
        if cfg.early == 2: nops(cfg.egap); em(mloads(1, 2))
        for i in range(cfg.hotL): e(f'v_mfma_f32_16x16x4_f32 {vr(vVX+4,4)}, v{vZERO}, v{vZERO}, 0')
        e(f's_waitcnt vmcnt({4 if cfg.early == 2 else 2})'); mk(6); em(mchk(0))
        if cfg.early == 1: em(mloads(1, 2))
        e(f's_waitcnt lgkmcnt(0)\ns_cbranch_vccnz {Lre}\n{Lok}:')
        if cfg.early:
            tail.append(J([f'{Lre}:'] + mloads(0,0) + ['s_waitcnt vmcnt(4)'] + mchk(0,1) + [W0, f's_cbranch_vccz {Lok}']))
            Lre = e.lab('lre')
            retry(Lre, J(mloads(0,1) + ['s_waitcnt vmcnt(2)'] + mchk(0,0) + [W0, f's_cbranch_vccz {Lok}'] + mloads(0,0) + ['s_waitcnt vmcnt(2)'] + mchk(0,1) + [W0, f's_cbranch_vccz {Lok}']), Lre, 96)
        elif cfg.quick & 1:
            m1 = mchk(0,1)
            tail.append(J([f'{Lre}:', 's_waitcnt vmcnt(0)'] + m1 + mloads(0,0) + [W0, f's_cbranch_vccz {Lok}']))
            Lre = e.lab('lre')
            retry(Lre, J(mloads(0,1) + ['s_waitcnt vmcnt(2)'] + mchk(0,0) + [W0, f's_cbranch_vccz {Lok}'] + mloads(0,0) + ['s_waitcnt vmcnt(2)'] + mchk(0,1) + [W0, f's_cbranch_vccz {Lok}']), Lre, 96)
        else:
            retry(Lre, J(mloads(0,0) + ['s_waitcnt vmcnt(2)'] + mchk(0,1) + [W0, f's_cbranch_vccz {Lok}'] + mloads(0,1) + ['s_waitcnt vmcnt(2)'] + mchk(0,0) + [W0, f's_cbranch_vccz {Lok}']), Lre, 96)
        mk(7)
        e('s_barrier')
        stamp(2); mk(8)
        for c in range(5): e(aread(L_MEM + 5120, c))
        em(mloads(1)[:2-cfg.lsp])
        mf = []
        for c in range(5): mf += [smf(v0, c, ('v','L',c), 0), smf(v1, c, ('v','L',c), 1)]
        for c in range(5): mf += [smf(q0,c,('q','L',c),0), smf(k0,c,('k','L',c),0), smf(q1,c,('q','L',c),1), smf(k1,c,('k','L',c),1)]
        for c in range(5): mf += [smf(q0,c,('q','R',c),0), smf(k0,c,('k','R',c),0)]
        for c in range(5): mf += [smf(q1,c,('q','R',c),1), smf(k1,c,('k','R',c),1)]
        slots = [[] for _ in mf]
        def put(i, l, step=1):
            for x in l: slots[i].append(x); i += step
        half = lambda st: [st[i] for i in (0,1,4,5,2,3,6,7)]
        st1 = half(stage(1)); st2 = half(stage(2))
        kvrd = [f'ds_read_b128 {vr(r,4)}, {vr(vVrd)} offset:{L_KV+1024*j}' for j, r in enumerate((vVX, vVX+4, vKX, vKX+4))]
        inc = 0 if cfg.nokv else 32*8192
        put(0, mloads(1)[2-cfg.lsp:])
        put(2, [f's_add_u32 {x}, {x}, {inc}\n{r}' for x, r in zip((sV, sV2), kvrd)], 2)
        put(31 if cfg.early else 5, [f's_add_u32 {x}, {x}, {inc}\n{r}' for x, r in zip((sK, sK2), kvrd[2:])])
        if not cfg.standalone:
            put(6, ['s_min_u32 s8, s8, s9', f's_max_u32 {sSEEN}, {sSEEN}, s8'])
        Kok = e.lab('kok'); Kre = e.lab('kre')
        if not cfg.standalone:
            put(8, [f's_cmp_lt_u32 {sSEEN}, {sNEED}\ns_cbranch_scc1 {Kre}\n{Kok}:'])
        put(9, ['s_waitcnt lgkmcnt(0)'])
        VL = v1; NEG = v0
        late = []; later = []
        def place(p, x):
            if p < 50: put(p, [x])
            else: (late if p == 60 else later).append(x)
        for p, x in zip(cfg.dp, vdma + kdma): place(p, x)
        for p in (10, 11):
            if p not in cfg.dp: put(p, ['s_nop 0'])
        put(12, [f'v_add_f32 v{v0}, v{v0}, v{v0+2}\nv_add_f32 v{v0+1}, v{v0+1}, v{v0+3}', f'v_add_f32 v{v0+2}, v{v1}, v{v1+2}\nv_add_f32 v{v0+3}, v{v1+1}, v{v1+3}',
                 f'v_cvt_pk_bf16_f32 v{VL}, v{v0}, v{v0+1}\nv_cvt_pk_bf16_f32 v{VL+1}, v{v0+2}, v{v0+3}',
                 f'buffer_store_dwordx2 {vr(VL,2)}, v{vA8}, {WS}, {sVXst} offen sc1'])
        rp = cfg.rp
        free = [i for i in range(16, 29) if not rp <= i <= rp + 4]
        if cfg.early: free = [i for i in free if i < rp] + [i for i in free if i > rp + 6]
        n1 = min(8, len(free))
        for i, x in zip(free, st1): put(i, [x])
        put(cfg.xp, [f's_mov_b64 exec, {sEX}\nbuffer_store_dwordx2 {vr(vREM,2)}, {vr(vPub)}, {WS}, {sXo} offen sc1\ns_mov_b64 exec, -1'])
        if not cfg.nokm: place(cfg.vmp, f'buffer_store_dwordx2 {vr(VL,2)}, v{vA8}, {WS}, {sVM} offen sc1')
        Rok = e.lab('rok'); Rre = e.lab('rre')
        mc = mchk(1, 2 if cfg.early else 1)
        put(rp, [J(['@wr', m4(9), mc[0]]), J(mc[1:3]), J(mc[3:5]), f'v_mov_b64 {vr(NEG,2)}, -1\nv_mov_b64 {vr(NEG+2,2)}, -1'])
        bp = rp + 4
        put(bp, [J([W0, f's_cbranch_vccnz {Rre}', f'{Rok}:', 's_barrier', 's_memtime s[70:71]' if cfg.stamps == 1 else m4(10)])])
        if cfg.early:
            put(bp, ['@r2'])
            put(44, ['@wx'])
            R2 = Rre; Rre = e.lab('rre')
        retry(Rre, J(mloads(1) + ['s_waitcnt vmcnt(0)'] + mchk(1) + [W0, f's_cbranch_vccz {Rok}']), Rre, 97)
        pos = bp
        for c in range(5):
            pos = max(pos, 13 + 4*c)
            put(pos, [aread(L_MEM, c)])
            if pos < 29 and c >= 1: pos += 1
        put(29, st1[n1:], 0)
        place(cfg.prp, f'buffer_store_dwordx4 {vr(NEG,4)}, {vr(vM16)}, {WS}, {sPrst} offen{sc}')
        place(cfg.prp + (2 if cfg.prp < 50 else 0), f'buffer_store_dword v{NEG}, {vr(vM4)}, {WS}, {sPrst} offen{sc}')
        place(cfg.vrp, f'buffer_store_dwordx2 {vr(NEG,2)}, v{vA8}, {WS}, {sVXrs} offen sc1')
        put(38, st2[:4])
        put(49, ['s_waitcnt lgkmcnt(4)'])
        X = vA; T = vPL; D0 = vPL + 6; D1 = vA + 4; XA = vA + 12; XB = vA + 16; MK = vT; MK1 = vT + 1
        put(42, [f'v_add_f32 v{q0}, v{q0}, v{q0+2}', f'v_add_f32 v{q0+1}, v{q0+1}, v{q0+3}', f'v_add_f32 v{k0}, v{k0}, v{k0+2}', f'v_add_f32 v{k0+1}, v{k0+1}, v{k0+3}',
                 f'v_cvt_pk_bf16_f32 v{T}, v{q0}, v{q0+1}', f'v_cvt_pk_bf16_f32 v{T+1}, v{k0}, v{k0+1}', f'v_bfe_i32 v{MK1}, {vr(vIDX)}, 1, 1'])
        vld = f'buffer_load_dwordx2 {vr(vREM,2)}, v{vA8}, {WS}, {sVXld} offen sc1'
        if cfg.vl < 50: put(cfg.vl, [vld])
        for m, f in zip(mf, slots):
            e(m)
            for x in f:
                if x.startswith('@wr'): x = x.replace('@wr', f's_waitcnt vmcnt({younger(mloads(1, 2 if cfg.early else 1)[1])})')
                if x == '@wx': x = f's_waitcnt vmcnt({younger(mloads(1)[1])})'
                if x == '@r2':
                    tail.append(J([f'{R2}:', f's_add_u32 s95, s95, 1' if cfg.stamps in (1,2) else '', f's_waitcnt vmcnt({younger(mloads(1)[1])})'] + mchk(1) + [W0, f's_cbranch_vccz {Rok}', f's_branch {Rre}']))
                    continue
                e(x)
        dq = 'quad_perm:[0,1,0,1] row_mask:0xf bank_mask:0xf'
        S0, SM = q0, k0
        PX = vA + 12; PM = vA + 8; ONE = vPL; vLIM = vA + 10; sC2 = 's[12:13]'
        def hot(d, bit, short=False):
            if not cfg.warm & bit: return ''
            if short: return f'v_mfma_f32_16x16x16_bf16 {vr(d,4)}, {vr(vID,2)}, {vr(vID,2)}, 0'
            return f'v_mfma_f32_16x16x4_f32 {vr(d,4)}, v{vZERO}, v{vZERO}, 0'
        kmst = f'buffer_store_dwordx4 {vr(X,4)}, {vr(vA16)}, {WS}, {sKM} offen sc1' if not cfg.nokm else 's_nop 0'
        e(f"""v_mfma_f32_16x16x16_bf16 {vr(D0,4)}, {vr(T,2)}, {vr(vID,2)}, 0
        {vld if cfg.vl == 50 else ''}
        {J(st2[4:])}
        v_not_b32 v{MK}, v{MK1}
        v_add_f32 v{q1}, v{q1}, v{q1+2}
        v_add_f32 v{q1+1}, v{q1+1}, v{q1+3}
        v_pk_add_f32 {vr(k1,2)}, {vr(k1,2)}, {vr(k1+2,2)}
        v_cvt_pk_bf16_f32 v{T+2}, v{q1}, v{q1+1}
        v_cvt_pk_bf16_f32 v{T+3}, v{k1}, v{k1+1}
        v_cvt_pk_bf16_f32 v{X}, v{D0}, v{D0+1}
        v_cvt_pk_bf16_f32 v{X+1}, v{D0+2}, v{D0+3}
        v_mfma_f32_16x16x16_bf16 {vr(D1,4)}, {vr(T+2,2)}, {vr(vID,2)}, 0
        {vld if cfg.vl == 51 else ''}
        v_and_b32 v{XA}, v{X}, v{MK}
        v_and_b32 v{XA+1}, v{X+1}, v{MK}
        v_and_b32_dpp v{XB}, v{X}, v{MK1} {dq}
        v_and_b32_dpp v{XB+1}, v{X+1}, v{MK1} {dq}
        v_mov_b32 v{ONE}, 0x3f803f80
        v_mov_b32 v{ONE+1}, 0x3f803f80
        v_mov_b32 v{VL+2}, v{VL+1}
        s_cmp_eq_u32 {sSTEP}, {cfg.nsteps-1}
        v_cvt_pk_bf16_f32 v{X+2}, v{D1}, v{D1+1}
        v_cvt_pk_bf16_f32 v{X+3}, v{D1+2}, v{D1+3}
        v_and_b32 v{XA+2}, v{X+2}, v{MK}
        v_and_b32 v{XA+3}, v{X+3}, v{MK}
        v_mfma_f32_16x16x32_bf16 {vr(SM,4)}, {vr(X,4)}, {vr(X,4)}, 0
        v_and_b32_dpp v{XB+2}, v{X+2}, v{MK1} {dq}
        v_and_b32_dpp v{XB+3}, v{X+3}, v{MK1} {dq}""")
        stamp(4); mk(11)
        e(f"""@wl
        v_mfma_f32_16x16x32_bf16 {vr(S0,4)}, {vr(vKX,4)}, {vr(XA,4)}, 0
        {vld if cfg.vl == 52 else 's_nop 0'}
        @wl
        v_mfma_f32_16x16x32_bf16 {vr(S0,4)}, {vr(vKX+4,4)}, {vr(XB,4)}, {vr(S0,4)}
        s_cbranch_scc1 {Ldone}
        s_nop 0
        s_mov_b64 exec, {sEB0}
        ds_write2_b32 {vr(vSwr2)}, v{SM+2}, v{SM+3} offset0:0 offset1:32
        s_mov_b64 exec, -1
        s_nop 1
        {hot(D0, 1) or 's_nop 0'}
        ds_write_b128 {vr(vSwr)}, {vr(S0,4)} offset:{L_SX}
        {hot(D0, 1)}
        s_mov_b64 exec, {sEVM}
        {kmst}
        s_mov_b64 exec, -1
        {J(late[:cfg.nb])}
        {hot(D0, 32)}
        s_waitcnt lgkmcnt(0)
        s_barrier""")
        stamp(5); mk(12)
        R = [q0, q1, k0, k1]; RM = D1
        e(f'ds_read_b128 {vr(R[0],4)}, {vr(vPerm)} offset:{L_SX}')
        e(hot(D0, 2))
        for w in range(1, 4): e(f'ds_read_b128 {vr(R[w],4)}, {vr(vPerm)} offset:{L_SX+1024*w}')
        e(f'ds_read_b128 {vr(RM,4)}, {vr(vPerm)} offset:{L_SM}')
        late = late[cfg.nb:]
        em(late[:cfg.nl])
        e(f'v_mov_b32 v{ONE+2}, 0x3f803f80\nv_mov_b32 v{ONE+3}, 0x3f803f80')
        if not cfg.smax: e(f'v_mov_b32 v{vLIM}, {f2u(cfg.lim)}')
        lt = late[cfg.nl:] + ['']*3
        e(f"""@wl
        v_pk_add_f32 {vr(q0,2)}, {vr(q0,2)}, {vr(q1,2)}
        v_pk_add_f32 {vr(q0+2,2)}, {vr(q0+2,2)}, {vr(q1+2,2)}
        @wl
        v_pk_add_f32 {vr(q0,2)}, {vr(q0,2)}, {vr(k0,2)}
        v_pk_add_f32 {vr(q0+2,2)}, {vr(q0+2,2)}, {vr(k0+2,2)}
        s_waitcnt lgkmcnt(0)
        v_pk_add_f32 {vr(q0,2)}, {vr(q0,2)}, {vr(k1,2)}
        v_pk_add_f32 {vr(RM,2)}, {vr(RM,2)}, {vr(RM+2,2)}
        v_pk_add_f32 {vr(q0+2,2)}, {vr(q0+2,2)}, {vr(k1+2,2)}
        v_add_f32 v{RM}, v{RM}, v{RM+1}""")
        zz = zero(q1, 12)
        mx = f"""v_max3_f32 v{M}, v{q0}, v{q0+1}, v{q0+2}
        v_max3_f32 v{M}, v{M}, v{q0+3}, v{RM}
        {zz[0]}
        {zz[1]}
        {lt[0]}
        v_max_f32_dpp v{M2}, v{M}, v{M} quad_perm:[2,3,0,1] row_mask:0xf bank_mask:0xf
        v_max_f32_dpp v{M}, v{M}, v{M} quad_perm:[2,3,0,1] row_mask:0xf bank_mask:0xf
        {zz[2]}
        {zz[3]}
        {lt[1]}
        v_permlane16_swap_b32 v{M}, v{M2}
        v_max_f32 v{RM+1}, v{M}, v{M2}
        v_max_f32 v{M}, v{M}, v{M2}
        {zz[4]}
        {zz[5]}
        {lt[2]}
        v_permlane32_swap_b32 v{M}, v{RM+1}
        v_max_f32 v{M}, v{M}, v{RM+1}
        v_mul_f32 v{M}, {sC}, v{M}
        v_fma_f32 v{q0}, v{q0}, {sC}, -v{M}
        v_fma_f32 v{q0+1}, v{q0+1}, {sC}, -v{M}
        v_fma_f32 v{q0+2}, v{q0+2}, {sC}, -v{M}
        v_fma_f32 v{q0+3}, v{q0+3}, {sC}, -v{M}
        v_fma_f32 v{RM}, v{RM}, {sC}, -v{M}"""
        E0 = q0; EM = RM
        if cfg.smax: e(mx)
        else:
            Sok = e.lab('sok'); Smx = e.lab('smx')
            E0 = vA + 16; EM = RM + 2
            e(J(lt))
            e(f"""v_pk_mul_f32 {vr(E0,2)}, {vr(q0,2)}, {sC2}
            v_pk_mul_f32 {vr(E0+2,2)}, {vr(q0+2,2)}, {sC2}
            v_mul_f32 v{EM}, {sC}, v{RM}
            v_max3_f32 v{M}, |v{E0}|, |v{E0+1}|, |v{E0+2}|
            v_max3_f32 v{M}, v{M}, |v{E0+3}|, |v{EM}|
            v_cmp_nlt_f32 vcc, v{M}, v{vLIM}
            {Sok}:""")
            mx2 = J(l for l in mx.split('\n') if 'buffer_' not in l and 'v_mov_b64' not in l)
            tail.append(J([f'{Smx}:', mx2] + [f'v_mov_b32 v{E0+j}, v{q0+j}' for j in range(4)] + [f'v_mov_b32 v{EM}, v{RM}', 's_mov_b64 vcc, 0', f's_branch {Sok}']))
        e(f"""
        v_exp_f32 v{E0}, v{E0}
        v_exp_f32 v{E0+1}, v{E0+1}
        v_exp_f32 v{E0+2}, v{E0+2}
        v_exp_f32 v{E0+3}, v{E0+3}
        v_cvt_pk_bf16_f32 v{PX}, v{E0}, v{E0+1}
        v_cvt_pk_bf16_f32 v{PX+1}, v{E0+2}, v{E0+3}
        v_exp_f32 v{EM}, v{EM}
        v_mov_b32_dpp v{PX+2}, v{PX} quad_perm:[2,3,2,3] row_mask:0xf bank_mask:0xf
        v_mov_b32_dpp v{PX+3}, v{PX+1} quad_perm:[2,3,2,3] row_mask:0xf bank_mask:0xf
        v_mov_b32_dpp v{EM+1}, v{EM} quad_perm:[2,3,2,3] row_mask:0xf bank_mask:0xf
        v_cvt_pk_bf16_f32 v{PM}, v{EM}, v{EM+1}
        {'' if cfg.smax else f's_cbranch_vccnz {Smx}'}""")
        stamp(6); mk(13)
        O0, O1 = vKX, vKX + 4; SUM = vA + 16; OP = vPL + 6
        z0 = zero(q0, 4); z4 = zero(v0, 4)
        Vok = e.lab('vok'); Vre = e.lab('vre')
        vw = f's_waitcnt vmcnt({younger(vld)})'
        retry(Vre, J([vld, 's_waitcnt vmcnt(0)']), Vok, 98)
        e(f"""{vw}
        {Vok}:
        v_mfma_f32_16x16x32_bf16 {vr(O0,4)}, {vr(vVX,4)}, {vr(PX,4)}, 0
        v_mov_b32 v{VL+1}, v{vREM}
        v_mov_b32 v{PM+1}, v{PM}
        v_mfma_f32_16x16x32_bf16 {vr(O1,4)}, {vr(vVX+4,4)}, {vr(PX,4)}, 0
        v_mov_b32 v{VL+3}, v{vREM+1}
        v_max_u32 v{M}, v{vREM}, v{vREM+1}
        v_cmp_eq_u32 vcc, -1, v{M}
        {m4(14)}
        v_mfma_f32_16x16x16_bf16 {vr(O0,4)}, {vr(VL,2)}, {vr(PM,2)}, {vr(O0,4)}
        {z0[0]}
        {z0[1]}
        v_mfma_f32_16x16x16_bf16 {vr(O1,4)}, {vr(VL+2,2)}, {vr(PM,2)}, {vr(O1,4)}
        {z4[0]}
        {z4[1]}
        v_mfma_f32_16x16x16_bf16 {vr(SUM,4)}, {vr(PM,2)}, {vr(ONE,2)}, 0
        s_cbranch_vccnz {Vre}
        v_cvt_pk_bf16_f32 v{OP}, v{O0}, v{O0+1}
        v_cvt_pk_bf16_f32 v{OP+1}, v{O0+2}, v{O0+3}
        v_cvt_pk_bf16_f32 v{OP+2}, v{O1}, v{O1+1}
        v_cvt_pk_bf16_f32 v{OP+3}, v{O1+2}, v{O1+3}
        v_mfma_f32_16x16x32_bf16 {vr(D1,4)}, {vr(PX,4)}, {vr(ONE,4)}, 0
        s_mov_b64 exec, {sEB0}
        ds_write_b128 {vr(vOwr)}, {vr(OP,4)} offset:{L_O}
        s_mov_b64 exec, -1
        {hot(vVX+4, 4) if cfg.smax else J(x + chr(10) + 's_nop 0' for x in zz)}
        {hot(vVX+4, 16)}
        s_waitcnt lgkmcnt(0)
        s_barrier""")
        stamp(7); mk(15)
        OA = vKX
        def wo(t, kap): return f'@wl\nv_smfmac_f32_16x16x64_bf16 {vr(vACC+4*t,4)}, {vr(OA+4*kap,4)}, {W(("o","",t),kap)}, {vr(vIDX)}'
        PO = vPL; SEL = vVX
        def fin(t):
            a = vACC + 4*t
            return [f'v_pk_add_f32 {vr(a,2)}, {vr(a,2)}, {vr(a+2,2)}', f'v_pk_mul_f32 {vr(a,2)}, {vr(a,2)}, {vr(M,2)}', f'v_cvt_pk_bf16_f32 v{PO+t}, v{a}, v{a+1}']
        a0, a1, a2, a3 = (vACC + 4*t for t in range(4))
        e(f"""ds_read_b128 {vr(OA,4)}, {vr(vPerm)} offset:{L_O}
        {hot(vA, 8, True)}
        ds_read_b128 {vr(OA+4,4)}, {vr(vPerm)} offset:{L_O+1024}
        {J(later)}
        s_add_u32 {sKM}, {sKM}, {32*4096}
        v_fma_f32 v{SUM}, v{SUM}, 0.5, v{D1}
        s_add_u32 {sVM}, {sVM}, {32*4096}
        v_fma_f32 v{SUM+1}, v{SUM+1}, 0.5, v{D1+1}
        s_add_u32 {sSTEP}, {sSTEP}, 1
        v_rcp_f32 v{M}, v{SUM}
        s_lshl_b32 {sT2}, {sUNIT}, 12
        s_add_u32 {sPld}, {sPst}, {sT2}
        v_rcp_f32 v{M2}, v{SUM+1}
        {wo(0,0)}
        {wo(0,1)}
        ds_read_b128 {vr(SEL,4)}, {vr(vA16)} offset:{L_SEL}
        {wo(1,0)}
        s_nop 0
        {wo(1,1)}
        s_nop 0
        {wo(2,0)}
        s_nop 0
        {wo(2,1)}
        v_add_f32 v{a0}, v{a0}, v{a0+2}
        {wo(3,0)}
        v_add_f32 v{a0+1}, v{a0+1}, v{a0+3}
        {wo(3,1)}
        v_add_f32 v{a1}, v{a1}, v{a1+2}
        {wo(4,0)}
        v_add_f32 v{a1+1}, v{a1+1}, v{a1+3}
        {wo(4,1)}
        v_add_f32 v{a2}, v{a2}, v{a2+2}
        v_add_f32 v{a2+1}, v{a2+1}, v{a2+3}
        v_mul_f32 v{a0}, v{a0}, v{M}
        v_mul_f32 v{a0+1}, v{a0+1}, v{M2}
        v_cvt_pk_bf16_f32 v{PO}, v{a0}, v{a0+1}""")
        em([fin(3)[0], fin(1)[1], fin(2)[1], fin(3)[1], fin(1)[2], fin(2)[2], fin(3)[2], fin(4)[0], fin(4)[1]])
        e(f'buffer_store_dwordx4 {vr(PO,4)}, {vr(vPst4)}, {WS}, {sPst} offen{sc}')
        e(fin(4)[2])
        e(f'buffer_store_dword v{PO+4}, {vr(vPst1)}, {WS}, {sPst} offen{sc}')
        if cfg.stamps == 1: e('s_memtime s[80:81]')
        e('; MARK 8')
        if cfg.stamps == 4:
            Lc = e.lab('cap')
            e(f's_memtime s[64:65]\ns_cmp_lg_u32 {sSTEP}, {cfg.cap}\ns_cbranch_scc1 {Lc}\ns_waitcnt lgkmcnt(0)')
            dump()
            e(f's_mov_b64 exec, -1\n{Lc}:'); mk(1)
        em(stage(0)); em(step_scalars())
        e('s_waitcnt lgkmcnt(0)')
        Lsl = e.lab('nosl')
        if cfg.lazy: e(f's_add_u32 {sT0}, {sSTEP}, {cfg.lazy}\ns_min_u32 {sT0}, {sT0}, 64\ns_cmp_ge_u32 {sSEEN}, {sT0}\ns_cbranch_scc1 {Lsl}')
        e(f's_load_dword s8, {sFP}, 0 glc\ns_load_dword s9, {sFP}, {F_V - F_K} glc\n{Lsl}:')
        Lnr = e.lab('nored'); Lr = e.lab('red'); Lrr = e.lab('redr')
        e(f's_cmp_lt_i32 {sUNIT}, 0\ns_cbranch_scc1 {Lnr}')
        nops(cfg.d1)
        RD = vA + 16; RO = vPL + 6
        def rl(RA): return J(f'buffer_load_dwordx4 {vr(RA+4*j,4)}, {vr(vA16)}, {WS}, {sPld} offen offset:{1024*j} sc1' for j in range(4))
        def rsum(RA, o):
            x = [f's_waitcnt vmcnt({o+3})', f'v_mfma_f32_16x16x32_bf16 {vr(RD,4)}, {vr(SEL,4)}, {vr(RA,4)}, 0', f'v_max3_u32 v{M}, v{RA}, v{RA+1}, v{RA+2}']
            for j in range(1, 4):
                r = RA + 4*j
                x += [f's_waitcnt vmcnt({o+3-j})', f'v_mfma_f32_16x16x32_bf16 {vr(RD,4)}, {vr(SEL,4)}, {vr(r,4)}, {vr(RD,4)}',
                      f'v_max3_u32 v{M}, v{M}, v{r-1}, v{r}', f'v_max3_u32 v{M}, v{M}, v{r+1}, v{r+2}']
            x += [f'v_max_u32 v{M}, v{M}, v{RA+15}', f'v_cmp_eq_u32 vcc, -1, v{M}']
            return J(x)
        rfin = J([f'v_add_f32_dpp v{RO+j}, v{RD+j}, v{RD+j} row_ror:8 row_mask:0xf bank_mask:0xf' for j in range(4)] +
                 [f'v_cvt_pk_bf16_f32 v{RO}, v{RO}, v{RO+1}', f'v_cvt_pk_bf16_f32 v{RO+1}, v{RO+2}, v{RO+3}'])
        mk(2)
        e(rl(vA))
        if cfg.hotA:
            for i in range(cfg.hotA[0]): e(hot(vVX+4, 1))
            e(rl(vACC))
            for i in range(cfg.hotA[1]): e(hot(vVX+4, 1))
        else:
            nops(cfg.gapA); e(rl(vACC))
        e(rsum(vA, 4))
        if cfg.quick & 2:
            L2 = e.lab('redr')
            tail.append(J([f'{Lrr}:', rsum(vACC, 0), f's_cbranch_vccz {Lr}', rl(vACC), 's_nop 15']))
            retry(L2, J([rl(vA), rsum(vACC, 4), f's_cbranch_vccz {Lr}', rl(vACC), rsum(vA, 4), f's_cbranch_vccz {Lr}']), L2, 99)
            e(f's_nop 1\ns_cbranch_vccnz {Lrr}\n{Lr}:\n{rfin}')
        else:
            retry(Lrr, J([rl(vA), rsum(vACC, 4), rfin, f's_cbranch_vccz {Lr}', rl(vACC), rsum(vA, 4), rfin, f's_cbranch_vccz {Lr}']), Lrr, 99)
            e(f'{rfin}\ns_cbranch_vccnz {Lrr}\n{Lr}:')
        e(f"""
        {m4(3)}
        s_mov_b64 exec, {sEPUB}
        buffer_store_dwordx2 {vr(RO,2)}, {vr(vPub)}, {WS}, {sPubS} offen sc1""")
        if fast: e(f"""buffer_store_dwordx2 {vr(RO,2)}, {vr(vPub)}, {WS}, {sPubF} offen
        v_mov_b64 {vr(RO+2,2)}, -1
        s_barrier
        buffer_store_dwordx2 {vr(RO+2,2)}, {vr(vPub)}, {WS}, {sRstF} offen""")
        else: e('s_barrier')
        Lj = e.lab('join')
        e(f"""s_mov_b64 exec, -1
        s_waitcnt vmcnt({3 if fast else 1})
        {Lj}:""")
        lg = ''
        if TRACE[0] == 4:
            lg = f'''s_memrealtime s[64:65]
            s_memtime s[66:67]
            s_waitcnt lgkmcnt(0)
            v_writelane_b32 v{vPub}, s64, 1
            v_writelane_b32 v{vPub}, s66, 2
            s_lshl_b32 s64, {sSTEP}, 3
            s_add_u32 s64, s64, 36000
            v_mov_b32 v{vT}, s64
            v_readlane_b32 s65, v{vPub}, 1
            v_mov_b32 v{vA}, s65
            v_mov_b32 v{vA+1}, s66
            ds_write_b64 v{vT}, {vr(vA,2)}'''
        tail.append(f'{Lnr}:\n{lg}\ns_barrier\ns_branch {Lj}')
        if cfg.stamps == 1:
            e('s_memtime s[100:101]\ns_waitcnt lgkmcnt(0)')
            for i in range(8): e(f's_sub_u32 {sT0}, s{66+2*i}, s{64+2*i}\ns_add_u32 s{84+i}, s{84+i}, {sT0}')
            e('s_mov_b32 s64, s80\ns_mov_b32 s66, s100')
        trace(e, 64, vT, sSTEP)
        mk(4)
        e('; MARK 9')
        e(f's_branch {Lstep}')
        em(tail)
        if not cfg.standalone:
            e(f'{Kre}:')
            kvwait(sNEED)
            e(f's_branch {Kok}')
        e(f'{Ldone}:\ns_mov_b64 exec, {sEVM}\n{kmst}\ns_mov_b64 exec, -1')
        if not cfg.standalone:
            e(f's_waitcnt vmcnt(0)\ns_barrier'); trace(e, 4, vT); diag(e, 56, vT); steplog(); e(f's_cmp_lg_u32 {sW}, 3\ns_cbranch_scc1 {Ldone}x'); set_flag(e, sFR, 64, vT); e(f'{Ldone}x:')
        if cfg.stamps in (1, 2, 3):
            if cfg.stamps != 3: e('s_memtime s[80:81]\ns_waitcnt lgkmcnt(0)\ns_sub_u32 s92, s80, s82\ns_sub_u32 s93, s82, s24')
            e('s_waitcnt lgkmcnt(0)')
            dump()
        e('s_waitcnt vmcnt(0)\ns_branch L_exit')

    trace(e, 1, 66); diag(e, 52, 66)
    trace(e, 3, 66); diag(e, 54, 66)
    if True:
        LS = e.lab('rslow')
        e(f's_cmp_eq_u32 {sFAST}, 0\ns_cbranch_scc1 {LS}')
        body(1)
        e(f'{LS}:')
        body(0)
```

```python
import sys
from asmlib import Asm
from common import *
from role_r import gen_R, RCfg
from role_g import gen_KV, gen_QA
from role_t import gen_T
NAME = 'adaLN_cond__memory_aug_recurrent_mem_tr__mixer_channel_mlp__prompt_kernel'
REF = 'adaLN_cond__memory_aug_recurrent_mem_tr__mixer_channel_mlp__prompt.s'
def gen(head='', **kw):
    rc = RCfg(); rc.standalone = 0
    for k, v in kw.items():
        if hasattr(rc, k): setattr(rc, k, v)
    e = Asm()
    TRACE[0] = kw.get('trace', 0); DIAG[0] = kw.get('diag', 0)
    e(f'''s_cmp_lt_u32 s2, 256
    s_cbranch_scc1 L_start
    L_exit:
    s_endpgm
    L_start:
    s_load_dwordx2 s[4:5], s[0:1], {KA['ws']}
    s_load_dwordx2 {DBG}, s[0:1], {KA['dbg']}
    v_lshrrev_b32 v1, 6, v0
    v_readfirstlane_b32 {sW}, v1
    s_mov_b32 s6, {WS_BYTES}
    s_mov_b32 s7, 0x20000
    s_mov_b32 {sSPIN}, {kw.get('spin', 100000)}
    s_waitcnt lgkmcnt(0)''')
    e(f'''s_getreg_b32 {sGRP}, hwreg(HW_REG_XCC_ID, 0, 3)
    s_lshr_b32 {sIDX}, s2, 3
    s_mov_b32 {sOWN}, 0''')
    trace(e, 0, 1)
    if DIAG[0]: e('s_memrealtime s[100:101]\ns_waitcnt lgkmcnt(0)\ns_mov_b32 s94, s100')
    e('L_dispatch:')
    e(f'''s_cmp_ge_u32 {sGRP}, 5
    s_cbranch_scc1 L_team
    s_cmp_eq_u32 {sGRP}, 4
    s_cbranch_scc1 L_qa
    s_cmp_eq_u32 {sGRP}, 3
    s_cbranch_scc1 L_v
    s_cmp_eq_u32 {sGRP}, 2
    s_cbranch_scc1 L_k
    s_mov_b32 s27, {sGRP}''')
    gen_R(e, rc)
    reclaim(e)
    e('L_k:'); gen_KV(e, 'k')
    e('L_v:'); gen_KV(e, 'v')
    e('L_qa:'); gen_QA(e, kw)
    e('L_team:'); gen_T(e, kw)
    if kw.get('slow'):
        e.lines = [(f's_mov_b32 {sFAST}, 0' if l.startswith(f's_cselect_b32 {sFAST},') else l) for l in e.lines]
    global PROF
    PROF = []
    if kw.get('prof'):
        m0, m1, every, skip = kw['prof']
        e.resolve_waits()
        a = e.lines.index(f'; MARK {m0}') + skip; b = e.lines.index(f'; MARK {m1}')
        new = []; n = 0
        for k, l in enumerate(e.lines[a+1:b]):
            if k % every == 0 and n < 16:
                new.append(f's_memtime s[{64+2*n}:{65+2*n}]'); n += 1; PROF.append([])
            new.append(l); PROF[-1].append(l)
        if n < 16: new.append(f's_memtime s[{64+2*n}:{65+2*n}]'); PROF.append([])
        e.lines[a+1:b] = new
    e.lines = [l for l in e.lines if not l.startswith('; MARK')]
    body = e.finalize()
    return f'''{head}; @launch grid=(256,1,1) block=(256,1,1) lds=163840
.amdgcn_target "amdgcn-amd-amdhsa--gfx950"
.text
.globl {NAME}
.p2align 8
.type {NAME},@function
{NAME}:
{body}.section .rodata,"a"
.p2align 6
.amdhsa_kernel {NAME}
  .amdhsa_next_free_vgpr 512
  .amdhsa_next_free_sgpr 102
  .amdhsa_accum_offset 256
  .amdhsa_group_segment_fixed_size 0
  .amdhsa_kernarg_size 136
  .amdhsa_user_sgpr_count 2
  .amdhsa_user_sgpr_kernarg_segment_ptr 1
  .amdhsa_system_sgpr_workgroup_id_x 1
.end_amdhsa_kernel
'''
if __name__ == '__main__':
    head = ''.join(l for l in open(REF + '.ref') if l.startswith(';') and '@launch' not in l and 'Override' not in l and 'grid=ceil' not in l)
    open(sys.argv[1] if len(sys.argv) > 1 else REF, 'w').write(gen(head))
```

```python
from common import *
sH = sIDX
sS, sBUF, sHS, sOUT, sFL, sT0, sT1 = 's28', 's29', 's30', 's32', 's33', 's34', 's35'
vA16, vRD = 2, 3
HB = 40960

def load_weights(e, name, kind, claim=True):
    srd(e, 8, name)
    e(f'''v_and_b32 v1, 63, v0
    v_lshlrev_b32 v{vA16}, 4, v1
    v_and_b32 v4, 15, v1
    v_lshrrev_b32 v5, 4, v1
    v_lshlrev_b32 v6, 2, v5
    v_xor_b32 v6, v6, v4
    v_lshlrev_b32 v6, 4, v6
    v_lshl_add_u32 v6, v5, 13, v6
    s_lshl_b32 {sT0}, {sH}, 8
    s_lshl_b32 {sT1}, {sW}, 17
    s_add_u32 {sT0}, {sT0}, {sT1}
    v_add_u32 v6, {sT0}, v6
    s_lshl_b32 {sT1}, {sW}, 12
    s_waitcnt lgkmcnt(0)''')
    srd_fin(e, 8, name)
    for n in range(10):
        e(f's_add_u32 m0, {sT1}, {n*16384}')
        for t in range(4):
            e(f's_mov_b32 {sT0}, {(64*n + 4*t)*8192 - 1024*t}')
            e(f'buffer_load_dwordx4 v6, s[8:11], {sT0} offen offset:{1024*t} lds')
    e(f'''v_bfe_u32 v7, v1, 2, 2           ; rr
    v_and_b32 v8, 3, v1              ; cc
    v_and_b32 v9, 1, v5              ; G&1
    v_lshrrev_b32 v10, 1, v5         ; kh''')
    if kind == 'v':
        e('v_mov_b32 v11, v8\nv_mov_b32 v12, v9')
    else:
        e('v_and_b32 v11, 1, v8\nv_lshl_add_u32 v11, v9, 1, v11\nv_lshrrev_b32 v12, 1, v8')
    e(f'''v_xor_b32 v13, {sW}, v7
    v_lshl_add_u32 v11, v13, 2, v11
    v_lshlrev_b32 v11, 4, v11
    v_lshl_add_u32 v11, v12, 3, v11
    v_lshl_add_u32 v11, v7, 8, v11
    v_lshl_add_u32 v11, v10, 11, v11''')
    for n in range(10):
        e(f's_waitcnt vmcnt({4*(9-n)})\ns_barrier')
        e(f'v_add_u32 v12, {n*16384}, v11')
        for k in range(4):
            for t in range(2):
                a = 4*(4*n + k) + 2*t
                e(f'ds_read_b64_tr_b16 a[{a}:{a+1}], v12 offset:{4096*k + 1024*t}')
        e('s_waitcnt lgkmcnt(0)')
        if n == 7 and claim: claim_issue(e)
    if claim: claim_check(e, 0)

def h_dma():
    out = []
    for j in range(10):
        x = f's_add_u32 m0, {sBUF}, {1024*j}\ns_add_u32 {sT0}, {sHS}, {1024*j}\n' if j % 4 == 0 else ''
        out.append(x + f'buffer_load_dwordx4 v{vA16}, {WS}, {sT0} offen offset:{1024*(j%4)} sc1 lds')
    out.append(f'''s_add_u32 {sHS}, {sHS}, {HB}
    s_add_u32 {sBUF}, {sBUF}, {HB}
    s_sub_u32 {sT0}, {sBUF}, {3*HB}
    s_cselect_b32 {sBUF}, {sBUF}, {sT0}''')
    return out

def start_h(e, mask=40, first=0):
    trace(e, 1, 4)
    wait_go(e, mask, 4)
    trace(e, 3, 4); diag(e, 62, 4)
    e(f'''s_barrier
    s_mul_i32 {sBUF}, {sW}, 10240
    s_add_u32 {sHS}, {sBUF}, {WS_H + first*HB}
    s_mov_b32 {sS}, 0
    s_mov_b32 s36, 0''')
    e(J(h_dma() + h_dma()))

def gemm(e, kind, ACC, FR, extra=(), every=1):
    D = 5; extra = list(extra)
    e(f'v_add_u32 v{vRD}, s36, v{vA16}')
    def rd(k): return f'ds_read_b128 {vr(FR+4*(k%(D+2)),4)}, v{vRD} offset:{1024*k}'
    for k in range(D): e(rd(k))
    e(f'''s_add_u32 s36, s36, {HB}
    s_cmp_eq_u32 s36, {3*HB}
    s_cselect_b32 s36, 0, s36''')
    for k in range(40):
        if k + D < 40: e(rd(k+D))
        e(f's_waitcnt lgkmcnt({min(D, 39-k)})')
        w = f'a[{4*k}:{4*k+3}]'; f = vr(FR+4*(k%(D+2)), 4)
        a, b = (f, w) if kind == 'v' else (w, f)
        e(f'v_mfma_f32_32x32x16_bf16 {vr(ACC,16)}, {a}, {b}, {"0" if k == 0 else vr(ACC,16)}')
        if extra and k % every == 0: e(extra.pop(0))
    assert not extra

def gen_KV(e, kind):
    F = F_K if kind == 'k' else F_V
    e(f's_lshl_b32 {sFL}, {sH}, 8\ns_add_u32 {sFL}, {sFL}, {F}')
    load_weights(e, 'wk' if kind == 'k' else 'wv', kind)
    if kind == 'k':
        P = e.lab('nopr')
        e(f's_or_b32 {sT0}, {sH}, {sW}\ns_cbranch_scc1 {P}')
        probe_near(e, 4)
        e(f'{P}:')
    start_h(e)
    ACC = 16; FR = 32; PK = 8
    e(f'''s_lshl_b32 {sOUT}, {sH}, 13
    s_lshl_b32 {sT0}, {sW}, 11
    s_add_u32 {sOUT}, {sOUT}, {sT0}
    s_add_u32 {sOUT}, {sOUT}, {WS_K if kind == 'k' else WS_V}
    s_waitcnt vmcnt(10)''')
    L = e.lab('kv'); N = e.lab('kvn'); E = e.lab('kve')
    e(f'''s_mov_b32 {sT1}, 0
    {L}:
    s_barrier
    s_cmp_lg_u32 {sW}, 0
    s_cbranch_scc1 {N}''')
    set_flag(e, sFL, sT1, 1)
    trace(e, 64, 1, sS)
    e(f'{N}:')
    gemm(e, kind, ACC, FR, h_dma(), 3)
    for i in range(8): e(f'v_cvt_pk_bf16_f32 v{PK+i}, v{ACC+2*i}, v{ACC+2*i+1}')
    e(f'''buffer_store_dwordx4 {vr(PK,4)}, v{vA16}, {WS}, {sOUT} offen sc1
    buffer_store_dwordx4 {vr(PK+4,4)}, v{vA16}, {WS}, {sOUT} offen offset:1024 sc1
    s_add_u32 {sOUT}, {sOUT}, {32*8192}
    s_mov_b32 {sT1}, {sS}
    s_add_u32 {sS}, {sS}, 1
    s_cmp_gt_u32 {sS}, 2
    s_cbranch_scc1 {E}
    s_waitcnt vmcnt(0)
    s_mov_b32 {sT1}, {sS}
    {E}:
    s_cmp_lt_u32 {sS}, 64
    s_waitcnt vmcnt(12)
    s_cbranch_scc1 {L}
    s_waitcnt vmcnt(0)
    s_barrier''')
    set_flag(e, sFL, 64, 1)
    trace(e, 4, 1)
    e(f's_mov_b32 s27, {3 if kind == "k" else 4}\ns_branch L_join')

def mem0_in(e):
    Lt = e.lab('m0b'); Lg = e.lab('m0c')
    srd(e, 12, 'mem0')
    e(f'''s_and_b32 s36, {sW}, 1
    s_mul_i32 s37, s36, 640
    v_and_b32 v20, 7, v0
    v_bfe_u32 v21, v0, 4, 1
    s_waitcnt lgkmcnt(0)''')
    srd_fin(e, 12, 'mem0')
    e(f'''s_cmp_ge_u32 {sW}, 2
    s_cbranch_scc1 {Lt}
    s_mov_b32 s38, {sH}
    s_and_b32 {sT0}, {sH}, 3
    s_mul_i32 {sT0}, {sT0}, 2560
    s_lshr_b32 {sT1}, {sH}, 2
    s_lshl_b32 {sT1}, {sT1}, 4
    s_add_u32 {sT0}, {sT0}, {sT1}
    s_add_u32 {sT0}, {sT0}, s37
    v_mul_u32_u24 v22, 1280, v21
    v_lshl_add_u32 v22, v20, 1, v22
    buffer_load_ushort v23, v22, s[12:15], {sT0} offen
    buffer_load_ushort v24, v22, s[12:15], {sT0} offen offset:128
    buffer_load_ushort v25, v22, s[12:15], {sT0} offen offset:256
    buffer_load_ushort v26, v22, s[12:15], {sT0} offen offset:384
    s_waitcnt vmcnt(0)
    v_lshl_or_b32 v24, v24, 16, v23
    v_lshl_or_b32 v25, v26, 16, v25
    s_branch {Lg}
    {Lt}:
    s_and_b32 s38, {sH}, 7
    s_and_b32 {sT0}, s38, 1
    s_mul_i32 {sT0}, {sT0}, 5120
    s_lshr_b32 {sT1}, s38, 1
    s_lshl_b32 {sT1}, {sT1}, 5
    s_add_u32 {sT0}, {sT0}, {sT1}
    s_add_u32 {sT0}, {sT0}, s37
    s_add_u32 {sT0}, {sT0}, 512
    s_add_u32 s38, s38, 32
    v_lshrrev_b32 v22, 2, v20
    v_lshl_add_u32 v22, v22, 1, v21
    v_mul_u32_u24 v22, 1280, v22
    v_and_b32 v23, 3, v20
    v_lshl_add_u32 v22, v23, 3, v22
    buffer_load_dwordx2 v[24:25], v22, s[12:15], {sT0} offen
    s_waitcnt vmcnt(0)
    {Lg}:
    v_min_u32 v24, -2, v24
    v_min_u32 v25, -2, v25
    v_lshlrev_b32 v22, 3, v20
    v_lshl_add_u32 v22, v21, 6, v22
    s_lshl_b32 s38, s38, 7
    s_lshl_b32 s36, s36, 14
    s_add_u32 s38, s38, s36
    s_add_u32 s38, s38, {WS_M}
    s_add_u32 s37, s38, 8192''')

def mem0_out(e):
    e(f'''s_mov_b64 exec, 0x00ff00ff
    buffer_store_dwordx2 v[24:25], v22, {WS}, s38 offen sc1
    buffer_store_dwordx2 v[24:25], v22, {WS}, s37 offen sc1
    s_mov_b64 exec, -1''')

def gen_QA(e, cfg={}):
    def pt(i):
        if cfg.get('qprof'): e(f's_memtime s[{64+2*i}:{65+2*i}]')
    sKV, sKM, sVM, sC, sN = 's37', 's38', 's39', 's40', 's41'
    e(f's_lshl_b32 {sFL}, {sH}, 8\ns_add_u32 {sFL}, {sFL}, {F_QA}')
    mem0_in(e)
    claim_issue(e); claim_check(e)
    La = e.lab('arm')
    e(f'''v_mov_b64 v[8:9], -1
    v_mov_b64 v[10:11], -1
    v_mov_b64 v[12:13], 0
    v_lshlrev_b32 v6, 4, v0
    v_lshlrev_b32 v7, 3, v0
    s_lshl_b32 {sT0}, {sH}, 11
    s_add_u32 {sT0}, {sT0}, {WS_FLAG}
    buffer_store_dwordx2 v[12:13], v7, {WS}, {sT0} offen sc1
    s_max_u32 {sT0}, {sH}, 8
    s_lshl_b32 {sT0}, {sT0}, 12
    s_add_u32 {sT0}, {sT0}, {WS_M}
    buffer_store_dwordx4 v[8:11], v6, {WS}, {sT0} offen sc1
    s_mul_i32 {sT0}, {sH}, {18*4096}
    s_add_u32 {sT0}, {sT0}, {WS_VX}''')
    for j in range(18): e(f'buffer_store_dwordx4 v[8:11], v6, {WS}, {sT0} offen sc1\ns_add_u32 {sT0}, {sT0}, 4096')
    mem0_out(e)
    e(f's_waitcnt vmcnt(0)\ns_barrier\ns_cmp_lg_u32 {sW}, 0\ns_cbranch_scc1 {La}')
    count_in(e, D_ARM, 32, G_ARM, 8)
    e(f'{La}:')
    if cfg.get('noqa'): e('s_branch L_exit')
    load_weights(e, 'wq', 'q', False)
    NP = cfg.get('park', 4)
    start_h(e, first=64-NP if NP else 0)
    LQ = 3*HB
    vQw, vQr, vK, vV, vFL, vF, vVM, vLF = 4, 5, 6, 7, 8, 9, 10, 11
    vKr, vVr = 170, 171
    BIAS = 12
    ACC = 20; FR = 36
    KX = 64; VX = 96; KM = 112; VM = 128; Q = 136
    S = 152; PX = 164; PM = 168; ONE = 172; O = 176; SUM = 192; T = 196; OP = 200
    e(f'''v_and_b32 v20, 15, v1            ; rho
    v_lshrrev_b32 v21, 4, v1         ; g
    s_and_b32 {sT0}, {sW}, 1
    s_lshr_b32 {sT1}, {sW}, 1        ; e half
    s_lshl_b32 s42, {sW}, 11
    s_add_u32 s42, s42, {LQ}
    v_add_u32 v{vQw}, s42, v{vA16}
    v_lshlrev_b32 v22, 9, v21
    v_lshl_add_u32 v23, v20, 4, v22
    s_lshl_b32 s42, {sT0}, 8
    s_add_u32 s42, s42, {LQ}
    v_add_u32 v{vQr}, s42, v23
    s_lshl_b32 s42, {sW}, 11
    v_add_u32 v{vV}, s42, v23
    v_add_u32 v22, s42, v22
    s_lshl_b32 s47, {sW}, 10
    s_lshl_b32 s48, {sW}, 12
    s_mov_b32 s49, s47
    v_add_u32 v{vKr}, {LQ + 8192 + 256}, v{vA16}
    s_lshl_b32 s42, {sT1}, 13
    v_add_u32 v{vVr}, s42, v{vKr}
    v_lshrrev_b32 v24, 3, v20
    v_lshl_add_u32 v24, v24, 8, v22
    v_and_b32 v25, 7, v20
    v_lshl_add_u32 v{vK}, v25, 4, v24
    s_lshl_b32 s42, {sT1}, 11
    v_lshl_add_u32 v{vVM}, v1, 3, s42
    s_lshl_b32 {sOUT}, {sT0}, 17
    s_lshl_b32 s42, {sH}, 12
    s_add_u32 {sOUT}, {sOUT}, s42
    s_add_u32 {sKM}, s42, {WS_KM}
    s_add_u32 {sVM}, s42, {WS_VM}
    s_lshl_b32 s42, {sT1}, 11
    s_add_u32 {sOUT}, {sOUT}, s42
    s_add_u32 {sOUT}, {sOUT}, {WS_O}
    s_lshl_b32 {sKV}, {sH}, 13
    s_add_u32 {sKV}, {sKV}, {WS_K}
    s_mov_b32 {sC}, {f2u(128 ** -0.5 * math.log2(math.e))}
    s_lshl_b32 s42, {sT0}, 4
    v_add_u32 v20, s42, v20
    v_lshrrev_b32 v22, 1, v21
    v_and_b32 v23, 1, v21
    v_lshlrev_b32 v23, 2, v23
    v_lshl_add_u32 v22, v22, 4, v23
    v_mov_b32 v24, {f2u(-1e30)}''')
    for kt in range(2):
        for r in range(4):
            e(f'v_add_u32 v23, {8*kt+r}, v22\nv_cmp_gt_u32 vcc, v23, v20\nv_cndmask_b32 v{BIAS+4*kt+r}, 0, v24, vcc')
    e(f'''v_lshlrev_b32 v{vFL}, 13, v1
    s_lshl_b32 s43, {sH}, 8
    s_add_u32 s43, s43, {F_K}''')
    for i in range(4): e(f'v_mov_b32 v{ONE+i}, 0x3f803f80')
    e(f'v_mov_b32 v{T}, 0x3f803f80\nv_mov_b32 v{T+1}, 0')
    LF = LQ + 8192
    M, M2 = FR, FR+1
    LK = LF + 256
    def fetch():
        ld = [f's_add_u32 m0, s49, {LK + 16384}\ns_add_u32 s45, {sKM}, s47\nbuffer_load_dwordx4 v{vA16}, {WS}, s45 offen sc1 lds']
        for kk in range(2): ld.append(J(f'buffer_load_dwordx2 {vr(VM+4*kk+2*a,2)}, v{vVM}, {WS}, {sVM} offen offset:{1024*kk+512*a} sc1' for a in range(2)))
        ld.append(f's_add_u32 m0, s48, {LK}\ns_sub_u32 s45, {sKV}, {1024-128}\nbuffer_load_dwordx4 v{vK}, {WS}, {sKV} offen sc1 lds')
        ld.append(f'buffer_load_dwordx4 v{vK}, {WS}, s45 offen offset:1024 sc1 lds')
        ld.append(f's_add_u32 s45, {sKV}, {WS_V - WS_K - 2048}\nbuffer_load_dwordx4 v{vV}, {WS}, s45 offen offset:2048 sc1 lds')
        ld.append(f's_add_u32 s45, {sKV}, {WS_V - WS_K - 3072 + 256}\nbuffer_load_dwordx4 v{vV}, {WS}, s45 offen offset:3072 sc1 lds')
        return ld
    def qout(young):
        for i in range(8): e(f'v_cvt_pk_bf16_f32 v{FR+i}, v{ACC+2*i}, v{ACC+2*i+1}')
        e(f"""ds_write_b128 v{vQw}, {vr(FR,4)}
        ds_write_b128 v{vQw}, {vr(FR+4,4)} offset:1024
        s_waitcnt vmcnt({young}) lgkmcnt(0)
        s_barrier""")
    qrd = [f'ds_read_b128 {vr(Q+4*kap,4)}, v{vQr} offset:{2048*kap}' for kap in range(4)]
    ost = f"""buffer_store_dwordx4 {vr(OP,4)}, v{vA16}, {WS}, {sOUT} offen sc1
        buffer_store_dwordx4 {vr(OP+4,4)}, v{vA16}, {WS}, {sOUT} offen offset:1024 sc1
        s_add_u32 {sOUT}, {sOUT}, {2*32*4096}"""
    def attend(last, mid=''):
        Qo = lambda k: vr(Q+4*k, 4)
        for kap in range(4):
            for kt in range(2): e(f'ds_read_b128 {vr(KX+8*kap+4*kt,4)}, v{vKr} offset:{4096*kap + 1024*kt}')
            e(f'ds_read_b128 {vr(KM+4*kap,4)}, v{vKr} offset:{16384 + 1024*kap}')
        for kap in range(4):
            for kt in range(2):
                e(f'@wl\nv_mfma_f32_16x16x32_bf16 {vr(S+4*kt,4)}, {vr(KX+8*kap+4*kt,4)}, {Qo(kap)}, {vr(BIAS+4*kt,4) if kap == 0 else vr(S+4*kt,4)}')
            e(f'@wl\nv_mfma_f32_16x16x32_bf16 {vr(S+8,4)}, {vr(KM+4*kap,4)}, {Qo(kap)}, {"0" if kap == 0 else vr(S+8,4)}')
            if kap < 2: e(f'v_swap_b32 v{VM+4*kap+1}, v{VM+4*kap+2}')
        for i in range(4): e(f'ds_read_b128 {vr(VX+4*i,4)}, v{vVr} offset:{4096*(i//2) + 2048 + 1024*(i%2)}')
        e(f"""s_add_u32 {sKV}, {sKV}, {32*8192}
        s_add_u32 {sKM}, {sKM}, {32*4096}
        s_add_u32 {sVM}, {sVM}, {32*4096}""")
        if not last: e(J(qrd)); pt(4)
        e(mid)
        e(f"""v_max3_f32 v{M}, v{S}, v{S+1}, v{S+2}
        v_max3_f32 v{M}, v{M}, v{S+3}, v{S+4}
        v_max3_f32 v{M}, v{M}, v{S+5}, v{S+6}
        v_max3_f32 v{M}, v{M}, v{S+7}, v{S+10}
        v_max_f32 v{M2}, v{M}, v{S+11}
        v_max_f32 v{M}, v{M}, v{S+11}
        v_permlane16_swap_b32 v{M}, v{M2}
        v_max_f32 v{M2+1}, v{M}, v{M2}
        v_max_f32 v{M}, v{M}, v{M2}
        v_permlane32_swap_b32 v{M}, v{M2+1}
        v_max_f32 v{M}, v{M}, v{M2+1}
        v_mul_f32 v{M}, {sC}, v{M}""")
        sv = [S+i for i in range(8)] + [S+10, S+11]
        for x in sv: e(f'v_fma_f32 v{x}, v{x}, {sC}, -v{M}')
        for x in sv: e(f'v_exp_f32 v{x}, v{x}')
        for i in range(4): e(f'v_cvt_pk_bf16_f32 v{PX+i}, v{S+2*i}, v{S+2*i+1}')
        e(f"""v_cvt_pk_bf16_f32 v{PM}, v{S+10}, v{S+11}
        v_cvt_pk_bf16_f32 v{PM+1}, v{S+10}, v{S+11}
        v_mfma_f32_16x16x32_bf16 {vr(SUM,4)}, {vr(ONE,4)}, {vr(PX,4)}, 0""")
        for i in range(4): e(f'@wl\nv_mfma_f32_16x16x32_bf16 {vr(O+4*i,4)}, {vr(VX+4*i,4)}, {vr(PX,4)}, 0')
        e(f'v_mfma_f32_16x16x16_bf16 {vr(SUM,4)}, {vr(T,2)}, {vr(PM,2)}, {vr(SUM,4)}')
        for i in range(4): e(f'v_mfma_f32_16x16x16_bf16 {vr(O+4*i,4)}, {vr(VM+2*i,2)}, {vr(PM,2)}, {vr(O+4*i,4)}')
        if not last: pt(5)
        if not last:
            W = e.lab('qaw')
            e(f"""s_cmp_lg_u32 {sW}, 0
            s_cbranch_scc1 {W}
            s_waitcnt vmcnt(1)
            ds_write_b32 v{vLF}, v{vF}
            {W}:""")
        if not last: pt(6)
        e(f'v_rcp_f32 v{M}, v{SUM}')
        for i in range(8): e(f'v_pk_mul_f32 {vr(O+2*i,2)}, {vr(O+2*i,2)}, {vr(M,2)} op_sel_hi:[1,0]')
        for i in range(8): e(f'v_cvt_pk_bf16_f32 v{OP+i}, v{O+2*i}, v{O+2*i+1}')
        if not last: e(ost)
    e(f"""v_lshlrev_b32 v{vLF}, 2, v1
    v_add_u32 v{vLF}, {LF}, v{vLF}
    v_mov_b32 v{vF}, 0
    ds_write_b32 v{vLF}, v{vF}
    s_waitcnt vmcnt(10)
    s_barrier""")
    for i in range(NP):
        if i == NP - 2: e(f's_sub_u32 {sHS}, {sHS}, {64*HB}')
        gemm(e, 'q', ACC, FR, h_dma(), 3)
        qout(10)
        for kap in range(4): e(f'ds_read_b128 a[{160+16*i+4*kap}:{163+16*i+4*kap}], v{vQr} offset:{2048*kap}')
        e('s_waitcnt lgkmcnt(0)\ns_barrier')
    gemm(e, 'q', ACC, FR, h_dma(), 3)
    qout(10)
    e(J(qrd))
    L = e.lab('qa'); G = e.lab('qag'); N = e.lab('qan'); N2 = e.lab('qan2'); Z = e.lab('qaz')
    e(f'{L}:\ns_cmp_eq_u32 {sS}, {63-NP}\ns_cbranch_scc1 {Z}'); pt(0)
    e(f"""s_waitcnt lgkmcnt(0)
    s_barrier
    ds_read_b32 v{vF}, v{vLF}
    s_add_u32 {sN}, {sS}, 1
    s_mov_b64 exec, 15
    s_waitcnt lgkmcnt(0)
    v_cmp_gt_u32 vcc, {sN}, v{vF}
    s_mov_b64 exec, -1
    s_cbranch_vccz {G}
    s_waitcnt vmcnt(0)
    s_barrier
    s_cmp_lg_u32 {sW}, 0
    s_cbranch_scc1 {N}""")
    set_flag(e, sFL, sS, vF)
    wait_flags(e, vFL, 's43', 15, sN, vF, sleep=1)
    e(f'{N}:\ns_barrier\n{G}:')
    trace(e, 192, vF, sS)
    pt(1)
    gemm(e, 'q', ACC, FR, fetch() + h_dma(), 2)
    pt(2)
    qout(10)
    pt(3)
    e(f"""s_cmp_lg_u32 {sW}, 0
    s_cbranch_scc1 {N2}
    s_mov_b64 exec, 15
    buffer_load_dword v{vF}, v{vFL}, {WS}, s43 offen sc1""")
    trace(e, 64, M, sS)
    set_flag(e, sFL, sS, M)
    e(f'{N2}:')
    attend(False)
    pt(7)
    if cfg.get('qprof'):
        X = e.lab('tp')
        e(f's_cmp_lg_u32 {sS}, {cfg["qprof"]}\ns_cbranch_scc1 {X}\ns_waitcnt lgkmcnt(0)')
        for i in range(16): e(f'v_mov_b32 v{220+i}, s{64+2*i}')
        e(f's_lshl_b32 {sT0}, {sH}, 2\ns_add_u32 {sT0}, {sT0}, {sW}\ns_lshl_b32 {sT0}, {sT0}, 6\ns_add_u32 {sT0}, {sT0}, {WS_DBG}\ns_mov_b64 exec, 1')
        for j in range(4): e(f'buffer_store_dwordx4 {vr(220+4*j,4)}, off, {WS}, {sT0} offset:{16*j}')
        e(f's_mov_b64 exec, -1\n{X}:')
    e(f's_mov_b32 {sS}, {sN}\ns_branch {L}\n{Z}:')
    wait_flags(e, vFL, 's43', 3, 64, vF, sleep=1)
    ZL = e.lab('qz'); Z1 = e.lab('qz1'); Z2 = e.lab('qz2'); Z3 = e.lab('qz3'); Z4 = e.lab('qz4'); f = fetch()
    FLIP = 0x8000 ^ 0x20000 ^ 0x10000
    e(f'''s_waitcnt lgkmcnt(0)
    s_barrier
    s_cmp_lg_u32 {sW}, 1
    s_cbranch_scc1 {Z1}''')
    set_flag(e, sFL, sS, vF)
    e(f'{Z1}:\ns_mul_i32 s42, {sW}, {4096*NP}\nv_add_u32 v{vQw}, s42, v{vA16}')
    e(J(f[3:]))
    for i in range(4*NP): e(f'ds_write_b128 v{vQw}, a[{160+4*i}:{163+4*i}] offset:{1024*i}')
    e(f'''s_mov_b32 s50, 0
    {ZL}:
    s_add_u32 {sN}, {sS}, 1''')
    wait_flags(e, vFL, 's43', 12, sN, vF)
    e(J(f[:3]))
    e(f'''s_cmp_eq_u32 s50, 0
    s_cbranch_scc1 {Z2}
    {ost}
    s_waitcnt vmcnt(2)
    s_branch {Z3}
    {Z2}:
    s_waitcnt vmcnt(0)
    {Z3}:
    s_waitcnt lgkmcnt(0)
    s_barrier
    s_add_u32 s48, s48, {LK}
    s_xor_b32 s48, s48, {FLIP}
    s_sub_u32 s48, s48, {LK}
    s_add_u32 s49, s49, {LK}
    s_xor_b32 s49, s49, {FLIP}
    s_sub_u32 s49, s49, {LK}
    s_cmp_lg_u32 {sW}, 1
    s_cbranch_scc1 {Z4}
    s_sub_u32 s42, {sS}, s50''')
    set_flag(e, sFL, 's42', vF)
    e(f'{Z4}:')
    trace(e, 192, vF, sS)
    attend(True, J(f[3:] + [f'ds_read_b128 {vr(Q+4*k,4)}, v{vQw} offset:{1024*k}' for k in range(4)] + [f'v_add_u32 v{vQw}, 4096, v{vQw}']))
    e(f'''v_xor_b32 v{vKr}, {FLIP}, v{vKr}
    v_xor_b32 v{vVr}, {FLIP}, v{vVr}
    s_mov_b32 s50, 1
    s_mov_b32 {sS}, {sN}
    s_cmp_lt_u32 {sS}, 64
    s_cbranch_scc1 {ZL}
    {ost}''')
    e(f's_waitcnt vmcnt(0)\ns_barrier\ns_cmp_lg_u32 {sW}, 0\ns_cbranch_scc1 L_exit')
    set_flag(e, sFL, 64, vF)
    trace(e, 4, vF); diag(e, 58, 20)
    e('s_branch L_exit')
```

```python
from common import *

def f2u(x): return struct.unpack('<I', struct.pack('<f', x))[0]
SCALE_LOG2E = f2u(128 ** -0.5 * math.log2(math.e))

WS = 's[4:7]'
sH, sW, sA = 's25', 's26', 's27'
sSTEP, sUNIT, sNEAR, sSPIN = 's28', 's29', 's30', 's31'
sMP, sPubS, sPubF, sRstS, sRstF = 's32', 's33', 's34', 's35', 's36'
sVXst, sVXld, sVXrs = 's37', 's38', 's39'
sPst, sPld, sPrst = 's40', 's41', 's42'
sK, sV, sKM = 's43', 's44', 's45'
sC = 's46'
sMPc, sSc, sFc, sVXo, sVXp, sPc = 's47', 's48', 's49', 's50', 's51', 's52'
sT0, sT1, sT2, sT3 = 's53', 's54', 's55', 's56'
sEB0 = 's[58:59]'
sEPUB = 's[60:61]'
sEKM = 's[12:13]'; sEVM = 's[14:15]'; sVM = 's16'; sPro = 's17'; sNEED = 's18'; sPrst2 = 's19'; sV2 = 's20'; sEX = 's[62:63]'; sSEEN = 's22'; sFK = 's23'; sFR = 's2'; sK2 = 's21'; sXo = 's57'; sXd = 's35'; sFP = 's[10:11]'; sSN = 's[8:9]'

L_MEM, L_SX, L_SM, L_O, L_SEL, L_KV = 0, 10240, 14336, 15360, 17408, 18432

vIDX = 1; vID = 2
vA16, vM16, vM4, vMrd, vMrd4, vPerm, vSwr, vSwr2, vOwr, vPst4, vPst1, vPub, vKld, vVld, vStg, vStg2 = range(4, 20)
vT = 20
vPL = 22
vVrd = 0
vA = 32
vACC = 52
vKX = 76; vVX = 84; vREM = 92; vA8 = 94; vZERO = 95
vSTG = 96

def vr(b, n=1): return f'v{b}' if n == 1 else f'v[{b}:{b+n-1}]'

def srd(e, s, name):
    e(f's_load_dwordx2 s[{s}:{s+1}], s[0:1], {KA[name]}')
def srd_fin(e, s, name):
    e(f's_mov_b32 s{s+2}, {SZ[name]}\ns_mov_b32 s{s+3}, 0x20000')

def interleave(e, mf, fill, per=1, start=0):
    fill = list(fill)
    for i, m in enumerate(mf):
        e(m)
        if i >= start:
            for _ in range(per):
                if fill: e(fill.pop(0))
    for f in fill: e(f)

class RCfg:
    fast = 1; stamps = 0; nsteps = 64; standalone = 1; near = -1; cap = 40
    d1 = 30; d2 = 150; gap = 170; gapA = 140; KA = 2; rmode = 2; rp = 22; vl = 50; smax = 0; xp = 3; warm = 63
    dp = (9, 10, 30, 60); early = 0; quick = 0; t4 = 1; kmp = 0; kr = 30; pin = 0; tch = (3, 21, 4); depth = 3; wpol = ''; lazy = 5; hotA = None; hotL = 0; sup = 26; lim = 32.0; nb = 3; egap = 60; lsp = 1; vck = 1; nl = 2; vmp = 33; vrp = 60; prp = 60
    nokv = 0; nokm = 0

def tiles_plan():
    lds = [('q','L',0), ('k','L',0), ('q','R',0), ('k','R',0), ('o','',3), ('o','',4)]
    allt = [(m,'L',c) for c in range(5) for m in 'vqk'] + [(m,'R',c) for c in range(5) for m in 'qk'] + [('o','',t) for t in range(5)]
    reg = [t for t in allt if t not in lds]
    loc = {}
    for i, t in enumerate(reg):
        loc[t] = ('a', 16*i) if i < 16 else ('v', 128 + 16*(i-16))
    order = reg + lds
    slot = {t: n % 10 for n, t in enumerate(order)}
    for i, t in enumerate(lds): loc[t] = ('v', vSTG + 16*(i % 2))
    return order, loc, slot, lds

def gen_R(e, cfg):
    order, loc, slot, lds = tiles_plan()
    def W(t, j):
        k, b = loc[t]; return f'{k}[{b+8*j}:{b+8*j+7}]'
    def stamp(i):
        if cfg.stamps == 1: e(f's_memtime s[{64+2*i}:{65+2*i}]')
        e(f'; MARK {i}')
    def mk(i):
        if cfg.stamps == 4: e(f's_memtime s[{64+2*i}:{65+2*i}]')
    def nops(c):
        n = c // 4
        while n > 0:
            k = min(n, 16); e(f's_nop {k-1}'); n -= k
    srd(e, 8, 'wq'); srd(e, 12, 'wk'); srd(e, 16, 'wv'); srd(e, 20, 'wo')
    e(f'''
    v_and_b32 v0, 63, v0
    v_and_b32 v40, 15, v0            ; rho
    v_lshrrev_b32 v41, 4, v0         ; g
    v_lshlrev_b32 {vr(vA16)}, 4, v0
    s_waitcnt lgkmcnt(0)''')
    srd_fin(e, 8, 'wq'); srd_fin(e, 12, 'wk'); srd_fin(e, 16, 'wv'); srd_fin(e, 20, 'wo')
    e(f'''
    v_and_b32 v42, 1, v41
    v_lshrrev_b32 v43, 1, v41        ; rr>>1
    s_lshr_b32 {sT0}, {sW}, 1
    s_and_b32 {sT1}, {sW}, 1
    v_lshlrev_b32 v44, 2, v41
    v_xor_b32 v44, v44, v40
    v_lshlrev_b32 v44, 4, v44
    s_lshl_b32 {sT2}, {sH}, 8
    v_add_u32 v44, {sT2}, v44
    v_lshlrev_b32 v45, 6, v42
    v_lshl_add_u32 v45, v43, 1, v45
    s_lshl_b32 {sT2}, {sT0}, 2
    s_add_u32 {sT2}, {sT2}, {sT1}
    v_add_u32 v45, {sT2}, v45
    v_lshl_add_u32 v60, v45, 13, v44
    v_lshl_add_u32 v45, v43, 3, v42
    s_lshl_b32 {sT2}, {sT0}, 4
    s_lshl_b32 {sT3}, {sT1}, 2
    s_add_u32 {sT2}, {sT2}, {sT3}
    v_add_u32 v45, {sT2}, v45
    v_lshl_add_u32 v61, v45, 13, v44
    v_bfe_u32 v45, v0, 3, 1
    v_bfe_u32 v46, v0, 4, 1
    v_lshl_add_u32 v45, v46, 3, v45
    v_lshrrev_b32 v46, 5, v0
    v_lshl_add_u32 v45, v46, 2, v45
    s_lshl_b32 {sT2}, {sT0}, 6
    s_lshl_b32 {sT3}, {sT1}, 4
    s_add_u32 {sT2}, {sT2}, {sT3}
    v_add_u32 v45, {sT2}, v45
    v_mul_u32_u24 v45, 1280, v45
    v_and_b32 v46, 7, v0
    v_lshlrev_b32 v47, 1, v41
    v_xor_b32 v46, v46, v47
    v_lshl_add_u32 v45, v46, 4, v45
    s_mul_i32 {sT2}, {sH}, 163840
    s_mul_i32 {sT3}, {sA}, 640
    s_add_u32 {sT2}, {sT2}, {sT3}
    v_add_u32 v62, {sT2}, v45
    v_bfe_u32 v45, v0, 2, 2          ; rr
    v_and_b32 v46, 3, v0             ; cc
    v_xor_b32 v47, {sW}, v45
    v_lshl_add_u32 v47, v47, 2, v46
    v_lshlrev_b32 v47, 4, v47
    v_lshl_add_u32 v47, v45, 8, v47
    v_lshl_add_u32 v63, v41, 12, v47
    v_lshl_add_u32 v47, v42, 2, v45  ; (gB&1)*4+rr
    v_lshrrev_b32 v48, 1, v47
    v_xor_b32 v48, {sW}, v48
    v_lshlrev_b32 v48, 5, v48
    v_lshl_add_u32 v48, v46, 3, v48
    v_lshl_add_u32 v48, v47, 7, v48
    v_lshl_add_u32 v64, v43, 12, v48
    s_mul_i32 s57, {sA}, {320*8192}
    s_sub_u32 s62, {320*8192}, s57
    s_lshl_b32 s63, {sW}, 12
    v_add_u32 {vr(vStg)}, s63, {vr(vA16)}''')
    def dma(n):
        m, side, c = order[n]
        e(f's_add_u32 m0, s63, {slot[order[n]]*16384}')
        for t4 in range(4):
            if m == 'o':
                so = (32*(t4 >> 1) + 2*(t4 & 1))*1280 - 1024*t4 + 128*c
                e(f's_mov_b32 {sT0}, {so}')
                e(f'buffer_load_dwordx4 v62, s[20:23], {sT0} offen offset:{1024*t4}{cfg.wpol} lds')
            else:
                rows = (16*c + 128*(t4 & 1) + 8*(t4 >> 1)) if c < 4 else (256 + 32*(t4 >> 1) + 2*(t4 & 1))
                so = rows*8192 - 1024*t4
                e(f's_add_u32 {sT0}, {"s57" if side == "L" else "s62"}, {so}')
                s = dict(q=8, k=12, v=16)[m]
                e(f'buffer_load_dwordx4 {"v60" if c < 4 else "v61"}, s[{s}:{s+3}], {sT0} offen offset:{1024*t4}{cfg.wpol} lds')
    e(f'''    ; reducer unit
    s_mov_b32 {sUNIT}, -1
    s_cmp_eq_u32 {sW}, 0
    s_cselect_b32 {sUNIT}, {sH}, {sUNIT}
    s_and_b32 {sT0}, {sH}, 3
    s_lshl_b32 {sT0}, {sT0}, 2
    s_or_b32 {sT0}, {sT0}, {sW}
    s_lshr_b32 {sT1}, {sH}, 2
    s_add_u32 {sT1}, {sT1}, 32
    s_cmp_eq_u32 {sT0}, 1
    s_cselect_b32 {sUNIT}, {sT1}, {sUNIT}
    s_cmp_lt_i32 {sUNIT}, 0
    s_cselect_b32 {sT0}, {sH}, {sUNIT}
    s_lshl_b32 {sT0}, {sT0}, 7
    v_and_b32 v54, 7, v0
    v_lshlrev_b32 v55, 3, v54
    v_lshl_add_u32 v55, v42, 6, v55
    v_add_u32 {vr(vPub)}, {sT0}, v55
    s_mov_b32 s60, 0x00ff00ff
    s_mov_b32 s61, 0
    s_lshl_b32 {sT0}, {sA}, 5
    s_add_u32 {sT0}, {sT0}, {sH}
    s_lshl_b32 {sT0}, {sT0}, 8
    s_add_u32 {sFR}, {sT0}, {F_R}''')
    DW = cfg.depth
    for n in range(DW + 1): dma(n)
    e(f'''
    v_bfe_u32 v45, v0, 1, 1          ; b
    v_and_b32 v46, 1, v0             ; i&1
    v_lshrrev_b32 v47, 2, v40        ; i>>1
    v_lshl_add_u32 v48, v47, 1, v46  ; i
    v_mov_b32 {vr(vIDX)}, 0x4444
    v_mov_b32 v49, 0xeeee
    v_cmp_eq_u32 vcc, 1, v45
    v_cndmask_b32 {vr(vIDX)}, {vr(vIDX)}, v49, vcc
    v_lshlrev_b32 v49, 4, v48
    v_lshl_add_u32 v50, v45, 7, v49
    v_lshl_add_u32 {vr(vPerm)}, v41, 8, v50
    s_lshl_b32 {sT0}, {sW}, 10
    v_add_u32 {vr(vSwr)}, {sT0}, {vr(vPerm)}
    s_lshl_b32 {sT0}, {sW}, 2
    s_add_u32 {sT0}, {sT0}, {L_SM}
    v_add_u32 {vr(vSwr2)}, {sT0}, {vr(vPerm)}
    v_lshl_add_u32 v50, v41, 7, v49
    s_lshl_b32 {sT0}, {sW}, 9
    v_add_u32 {vr(vOwr)}, {sT0}, v50
    v_lshlrev_b32 v50, 4, v45
    v_lshl_add_u32 v50, v46, 6, v50
    v_lshl_add_u32 v51, v42, 5, v50
    v_lshl_add_u32 v51, v47, 7, v51
    v_lshl_add_u32 {vr(vMrd)}, v43, 9, v51
    v_and_b32 v51, 1, v47
    v_lshl_add_u32 v51, v51, 5, v50
    v_lshrrev_b32 v52, 1, v47
    v_lshl_add_u32 v51, v52, 7, v51
    v_lshl_add_u32 {vr(vMrd4)}, v41, 8, v51
    s_mul_i32 {sT0}, {sW}, 1280
    v_add_u32 {vr(vM16)}, {sT0}, {vr(vA16)}
    s_add_u32 {sT0}, {sT0}, 1024
    v_lshlrev_b32 v51, 2, v0
    v_add_u32 {vr(vM4)}, {sT0}, v51
    v_lshl_add_u32 v51, v52, 2, v41
    s_lshl_b32 {sT0}, {sW}, 3
    v_add_u32 v51, {sT0}, v51
    v_and_b32 v53, 7, v0
    v_lshlrev_b32 v54, 4, v53
    v_lshl_add_u32 v51, v51, 12, v54
    s_lshl_b32 {sT1}, {sH}, 7
    v_add_u32 {vr(vPst4)}, {sT1}, v51
    s_lshl_b32 {sT0}, {sW}, 1
    s_add_u32 {sT0}, {sT0}, 32
    v_add_u32 v51, {sT0}, v43
    v_and_b32 v55, 31, v0
    v_lshlrev_b32 v55, 2, v55
    v_lshl_add_u32 v51, v51, 12, v55
    v_add_u32 {vr(vPst1)}, {sT1}, v51
    s_lshl_b32 {sT0}, {sW}, 11
    v_lshl_add_u32 v51, v41, 9, {sT0}
    v_lshl_add_u32 {vr(vVld)}, v40, 4, v51
    v_lshl_add_u32 v51, v52, 8, v51
    v_add_u32 {vr(vKld)}, v51, v54
    v_mov_b32 v55, 0x3f80
    v_lshlrev_b32 v56, 4, v46
    v_lshlrev_b32 v55, v56, v55
    v_cmp_eq_u32 vcc, v47, v41
    v_cndmask_b32 v55, 0, v55, vcc
    v_cmp_eq_u32 vcc, 0, v45
    v_cndmask_b32 {vr(vID)}, 0, v55, vcc
    v_cndmask_b32 {vr(vID+1)}, v55, 0, vcc
    v_mov_b32 v65, 0x3f80
    v_bfe_u32 v66, v0, 2, 1
    v_lshlrev_b32 v66, 4, v66
    v_lshlrev_b32 v65, v66, v65
    v_cmp_gt_u32 vcc, 8, v40
    v_cndmask_b32 v65, 0, v65, vcc
    v_and_b32 v66, 3, v0''')
    for j in range(4):
        e(f'v_cmp_eq_u32 vcc, {j}, v66\nv_cndmask_b32 v{56+j}, 0, v65, vcc')
    e(f'''
    s_mov_b32 s58, 0x33333333
    s_mov_b32 s59, 0x33333333
    s_mov_b32 {sC}, {SCALE_LOG2E}
    v_add_u32 {vr(vStg2)}, 0x10000, {vr(vStg)}''')
    vdma = [f'buffer_load_dwordx4 {vr(vVld)}, {WS}, {sV} offen sc1 lds',
            f'buffer_load_dwordx4 {vr(vVld)}, {WS}, {sV2} offen offset:1024 sc1 lds']
    kdma = [f'buffer_load_dwordx4 {vr(vKld)}, {WS}, {sK} offen offset:2048 sc1 lds',
            f'buffer_load_dwordx4 {vr(vKld)}, {WS}, {sK2} offen offset:3072 sc1 lds']
    def kvwait(target):
        e(f'v_lshlrev_b32 v{vT}, 9, {vr(vA16)}')
        wait_flags(e, vT, sFK, 3, target, vT + 1, sleep=1)
        e(f'v_readlane_b32 {sSEEN}, v{vT+1}, 0\nv_readlane_b32 {sT3}, v{vT+1}, 1\ns_min_u32 {sSEEN}, {sSEEN}, {sT3}')
    def startup():
        L = e.lab('su'); D = e.lab('sud'); L2 = e.lab('sv'); D2 = e.lab('svd')
        e(f"""s_lshl_b32 {sFK}, {sH}, 8
        s_add_u32 {sFK}, {sFK}, {F_K}
        s_add_u32 s10, s4, {sFK}
        s_addc_u32 s11, s5, 0
        s_load_dwordx8 s[12:19], {DBG}, 128
        s_waitcnt lgkmcnt(0)
        s_min_u32 {sT0}, s12, s16
        s_min_u32 {sT0}, {sT0}, s17
        s_cmp_lg_u32 {sT0}, 0
        s_cbranch_scc1 {D}""")
        wait_go(e, 49, 66)
        e(f"""v_readlane_b32 s12, v67, 0
        v_readlane_b32 s16, v67, 4
        {D}:
        s_cmp_eq_u32 s12, 1
        s_cselect_b32 {sFAST}, 1, 0
        s_and_b32 {sNEAR}, s16, 2
        s_lshl_b32 {sNEAR}, {sNEAR}, 12""")
        if cfg.near >= 0: e(f's_mov_b32 {sNEAR}, {cfg.near}')
        trace(e, 2, 66)
        e(f"""s_lshl_b32 {sT0}, {sA}, 5
        s_add_u32 {sT0}, {sT0}, {sH}
        s_lshl_b32 {sT0}, {sT0}, 2
        s_add_u32 {sT0}, {sT0}, {sW}
        s_mul_i32 {sT0}, {sT0}, 5120
        s_add_u32 {sT0}, {sT0}, {WS_P}
        v_lshlrev_b32 v66, 3, {vr(vA16)}
        s_mov_b32 exec_hi, 0xff
        buffer_load_dword v{vVX}, v66, {WS}, {sT0} offen sc1
        s_lshl_b32 {sT0}, {sW}, 15
        s_lshl_b32 {sT1}, {sA}, 14
        s_add_u32 {sT0}, {sT0}, {sT1}
        s_sub_u32 {sT0}, {sT0}, {sNEAR}
        s_add_u32 {sT0}, {sT0}, {WS_M + 8192}
        buffer_load_dword v{vVX+1}, v66, {WS}, {sT0} offen sc1
        s_mov_b32 exec_hi, -1
        s_getpc_b64 s[12:13]
        global_load_dword v{vVX+2}, v66, s[12:13] offset:1024
        {L2}:
        s_load_dword s8, {sFP}, 0 glc
        s_load_dword s9, {sFP}, {F_V - F_K} glc
        s_waitcnt lgkmcnt(0)
        s_min_u32 {sSEEN}, s8, s9
        s_cmp_lg_u32 {sSEEN}, 0
        s_cbranch_scc1 {D2}
        s_sleep 1""")
        spin(e)
        e(f"""s_branch {L2}
        {D2}:
        s_lshl_b32 {sT0}, {sH}, 13
        s_add_u32 {sV}, {sT0}, {WS_V}
        s_add_u32 {sV2}, {sT0}, {WS_V - 768}
        s_add_u32 {sK}, {sT0}, {WS_K - 2048}
        s_add_u32 {sK2}, {sT0}, {WS_K - 3072 + 128}
        s_add_u32 m0, s63, {L_KV}
        v_add_u32 {vr(vVrd)}, s63, {vr(vA16)}""")
        e(J(kdma + vdma))
    def wb(t):
        base = slot[t]*16384; k, b = loc[t]
        e(f'v_add_u32 v66, {base}, {vr(vStg)}')
        for j in range(4): e(f'ds_write_b128 v66, {k}[{b+4*j}:{b+4*j+3}] offset:{1024*j}')
    if cfg.tch:
        mode, first, dist = cfg.tch
        e(f'''s_and_b32 s3, {sH}, 3
        s_cmp_eq_u32 {sH}, 31
        s_cselect_b32 s3, 1, s3
        s_and_b32 {sT0}, {sH}, 28
        s_or_b32 {sT0}, {sT0}, 1''')
        for hh, cl in ((19, 0), (23, 2), (27, 3)):
            e(f's_cmp_eq_u32 {sH}, {hh}\ns_cselect_b32 {sT0}, 31, {sT0}\ns_cselect_b32 s3, {cl}, s3')
        e(f'''
        v_bfe_u32 v70, v0, 1, 4
        v_and_b32 v71, 1, v0
        v_lshlrev_b32 v71, 7, v71
        v_lshl_add_u32 v70, v70, 13, v71
        s_lshl_b32 {sT1}, {sT0}, 8
        v_add_u32 v70, {sT1}, v70
        s_lshl_b32 {sT1}, {sW}, 17
        v_add_u32 v71, {sT1}, v70
        s_lshl_b32 {sT1}, {sW}, 19
        v_add_u32 v70, {sT1}, v70
        s_lshl_b32 {sT1}, {sW}, 5
        v_add_u32 v72, {sT1}, v0
        v_mul_u32_u24 v72, 1280, v72
        s_mul_i32 {sT1}, {sT0}, 163840
        s_mul_i32 {sT2}, {sA}, 640
        s_add_u32 {sT1}, {sT1}, {sT2}
        v_add_u32 v72, {sT1}, v72
        ''')
    def touch(n):
        m, side, c = order[n]
        e('s_mov_b32 exec_hi, 0')
        fx = f's_cmp_eq_u32 s3, {(0,2,3)[n % 3]}\ns_cselect_b32 {sT0}, {sT0}, 0x600000\n' if mode == 3 else ''
        if m == 'o': e(f's_mov_b32 {sT0}, {128*c}\n{fx}buffer_load_dword v{vVX}, v72, s[20:23], {sT0} offen')
        else:
            sr = dict(q=8, k=12, v=16)[m]
            e(f's_add_u32 {sT0}, {"s57" if side == "L" else "s62"}, {(16*c if c < 4 else 256)*8192}')
            e(f'{fx}buffer_load_dword v{vVX}, {"v70" if c < 4 else "v71"}, s[{sr}:{sr+3}], {sT0} offen')
        e('s_mov_b32 exec_hi, -1')
    ops = [n for n in range(DW + 1) for _ in range(4)]
    last = DW
    for n in range(30):
        t = order[n]
        e(f's_waitcnt vmcnt({ops[::-1].index(n)})\ns_barrier')
        if n == 10 and not cfg.standalone: claim_check(e)
        if n >= 1 and n+DW < 30: dma(n+DW); ops += [n+DW]*4
        if cfg.tch and first <= n + dist < 30: touch(n + dist); ops.append(-1)
        if n == cfg.sup:
            assert n + DW >= 29 and (not cfg.tch or n + dist >= 29)
            startup(); ops += [-1]*7
        if n >= 1 and order[n-1] in lds: wb(order[n-1])
        k, b = loc[t]
        e(f'v_add_u32 v65, {slot[t]*16384}, {"v64" if t[0] == "o" else "v63"}')
        for j in range(2):
            for t4 in range(4):
                off = 1024*t4 + (8192*j if t[0] == 'o' else 8*j)
                e(f'ds_read_b64_tr_b16 {k}[{b+8*j+2*t4}:{b+8*j+2*t4+1}], v65 offset:{off}')
        e('s_waitcnt lgkmcnt(0)')
        if n == 9 and not cfg.standalone: claim_issue(e)
    e('s_barrier')
    wb(order[29])
    e(f'ds_write_b128 {vr(vA16)}, v[56:59] offset:{L_SEL}')
    e(f'v_add_u32 {vr(vStg)}, {4*16384}, {vr(vStg)}\nv_add_u32 {vr(vStg2)}, {4*16384}, {vr(vStg2)}')
    def stage(i):
        out = []
        for t in lds[2*i:2*i+2]:
            o = (slot[t]-4)*16384; k, b = loc[t]
            for j in range(4):
                oo = o + 1024*j
                out.append(f'ds_read_b128 v[{b+4*j}:{b+4*j+3}], {vr(vStg if oo < 65536 else vStg2)} offset:{oo % 65536}')
        return out
    def body(fast):
        sc = '' if fast else ' sc1'
        e(f'''
        s_lshl_b32 {sT0}, {sA}, 14
        s_add_u32 {sSc}, {sT0}, {sNEAR}
        s_add_u32 {sSc}, {sSc}, {WS_M}''')
        if fast: e(f's_xor_b32 {sFc}, {sSc}, 8192')
        else: e(f's_mov_b32 {sFc}, {sSc}')
        e(f'''
        s_xor_b32 {sMPc}, {sSc}, 16384
        s_lshl_b32 {sT0}, {sA}, 5
        s_add_u32 {sT0}, {sT0}, {sH}
        s_lshl_b32 {sT0}, {sT0}, 14
        s_lshl_b32 {sT1}, {sW}, 9
        s_add_u32 {sT0}, {sT0}, {sT1}
        s_add_u32 {sT0}, {sT0}, {sNEAR}
        s_add_u32 {sVXo}, {sT0}, {WS_VX}
        s_mul_i32 {sT0}, {sA}, 655360
        s_add_u32 {sPc}, {sT0}, {WS_P}
        s_lshl_b32 {sT0}, {sH}, 12
        s_lshl_b32 {sT1}, {sW}, 10
        s_add_u32 {sT0}, {sT0}, {sT1}
        s_add_u32 {sKM}, {sT0}, {WS_KM}
        s_lshl_b32 {sT1}, {sA}, 9
        s_add_u32 {sT0}, {sT0}, {sT1}
        s_add_u32 {sVM}, {sT0}, {WS_VM}
        s_cmp_eq_u32 {sA}, 0
        s_cselect_b32 s14, -1, 0
        s_cselect_b32 s15, 0, -1
        s_mul_i32 {sT0}, {sH}, 5120
        s_add_u32 {sPro}, {sT0}, {sPc}
        v_lshrrev_b32 v{vA8}, 1, {vr(vA16)}
        v_mov_b32 v{vZERO}, 0
        s_mov_b32 s12, {sC}
        s_mov_b32 s13, {sC}
        s_add_u32 {sPst}, {sPc}, {3*163840}
        s_mov_b32 {sSTEP}, 0''')
        def step_scalars():
            return f'''s_and_b32 {sT0}, {sSTEP}, 3
        s_xor_b32 {sT1}, {sT0}, 2
        s_mul_i32 {sT1}, {sT1}, 163840
        s_add_u32 {sPrst}, {sPro}, {sT1}
        s_mul_i32 {sT1}, {sT0}, 163840
        s_add_u32 {sPst}, {sPc}, {sT1}
        s_lshl_b32 {sT0}, {sT0}, 15
        s_add_u32 {sMP}, {sMPc}, {sT0}
        s_add_u32 {sPubS}, {sSc}, {sT0}
        s_add_u32 {sPubF}, {sFc}, {sT0}
        s_xor_b32 {sT1}, {sT0}, {2 << 15}
        s_add_u32 {sRstF}, {sFc}, {sT1}
        s_add_u32 {sT1}, {sSc}, {sT1}
        s_cmp_lt_i32 {sUNIT}, 0
        s_cselect_b32 {sXo}, {sFR}, {sT1}
        s_cselect_b32 {sXd}, {sSTEP}, -1
        s_add_u32 {sNEED}, {sSTEP}, 2
        s_min_u32 {sNEED}, {sNEED}, 64
        s_add_u32 {sT0}, {sSTEP}, {sH}
        s_and_b32 {sT0}, {sT0}, 3
        s_lshl_b32 {sT0}, {sT0}, 11
        s_add_u32 {sVXst}, {sVXo}, {sT0}
        s_xor_b32 {sVXld}, {sVXst}, {1 << 19}
        s_xor_b32 {sVXrs}, {sVXst}, 4096'''.split('\n')
        e('s_waitcnt lgkmcnt(0)\ns_barrier')
        if cfg.stamps:
            for i in range(84, 100): e(f's_mov_b32 s{i}, 0')
            e('s_memtime s[82:83]\ns_memtime s[64:65]\ns_memtime s[66:67]')

        Ldone = e.lab('rdone'); Labort = 'L_exit'
        q0, q1, k0, k1, v0, v1 = (vACC + 4*i for i in range(6))
        M = vT; M2 = vT + 1
        e(f"""s_cmp_eq_u32 {sW}, 3
        s_cselect_b32 {sT0}, {sFR}, {WS_BYTES}
        s_mov_b32 {sFR}, {sT0 if not cfg.standalone else WS_BYTES}
        s_cmp_lt_i32 {sUNIT}, 0
        s_cselect_b32 s62, 1, s60
        s_mov_b32 s63, 0
        s_cselect_b64 vcc, -1, 0
        v_cndmask_b32 {vr(vPub)}, {vr(vPub)}, 0, vcc""")
        land = [(vPL, vPL+4), (vPL+6, vPL+5), (vKX, vKX+4)]
        def mloads(rem, st=None):
            p, q = land[rem if st is None else st]; so = sMP if rem else sPubF
            return [f'buffer_load_dwordx4 {vr(p,4)}, {vr(vM16)}, {WS}, {so} offen sc1',
                    f'buffer_load_dword {vr(q)}, {vr(vM4)}, {WS}, {so} offen sc1']
        def dump():
            e(f"""s_lshl_b32 {sT0}, {sA}, 5
            s_add_u32 {sT0}, {sT0}, {sH}
            s_lshl_b32 {sT0}, {sT0}, 2
            s_add_u32 {sT0}, {sT0}, {sW}
            s_lshl_b32 {sT0}, {sT0}, 6
            s_add_u32 {sT0}, {sT0}, {WS_DBG}""")
            for i in range(16): e(f'v_mov_b32 v{vA+4+i}, s{84+i if cfg.stamps < 3 else 64+2*i}')
            e('s_mov_b64 exec, 1')
            for j in range(4): e(f'buffer_store_dwordx4 {vr(vA+4+4*j,4)}, {vr(vA16)}, {WS}, {sT0} offen offset:{16*j}')
        def steplog():
            if TRACE[0] not in (4, 5): return
            e(f'''s_lshl_b32 {sT0}, {sA}, 5
            s_add_u32 {sT0}, {sT0}, {sH}
            s_lshl_b32 {sT0}, {sT0}, 9
            s_add_u32 {sT0}, {sT0}, {WS_DBG}
            buffer_store_dword v{vZERO}, v{vA8}, {WS}, {sT0} offen''')
        tail = []
        def retry(R, body, L, cnt):
            tail.append(f"""{R}:
            s_sub_u32 {sSPIN}, {sSPIN}, 1
            s_cbranch_scc1 {Labort}
            {f's_add_u32 s{cnt}, s{cnt}, 1' if cfg.stamps in (1,2) else ''}
            {body}
            {f's_branch {L}' if L else ''}""")
        def mchk(rem, st=None):
            p, q = land[rem if st is None else st]; o = L_MEM + (0 if rem else 5120)
            return [f'ds_write_b128 {vr(vM16)}, {vr(p,4)} offset:{o}',
                    f'ds_write_b32 {vr(vM4)}, {vr(q)} offset:{o}',
                    f'v_max3_u32 v{M}, v{p}, v{p+1}, v{p+2}',
                    f'v_max3_u32 v{M}, v{M}, v{p+3}, v{q}',
                    f'v_cmp_eq_u32 vcc, -1, v{M}']
        def aread(base, c): return f'ds_read_b128 {vr(vA+4*c,4)}, {vr(vMrd if c < 4 else vMrd4)} offset:{base+1024*c}'
        def smf(acc, c, t, j): return f'@wl\nv_smfmac_f32_16x16x64_bf16 {vr(acc,4)}, {vr(vA+4*c,4)}, {W(t,j)}, {vr(vIDX)}'
        def zero(b, n): return [f'v_mov_b64 {vr(b+i,2)}, 0' for i in range(0, n, 2)]
        def em(l):
            for x in l: e(x)
        def younger(line):
            n = 0
            for l in reversed(e.lines):
                if l == line: return n
                n += l.startswith('buffer_')
        def paced(l, cyc):
            k = max(0, (cyc // 4 - len(l)) // max(len(l), 1))
            for x in l:
                e(x)
                if k: e(f's_nop {k-1}')
        def m4(i): return f's_memtime s[{64+2*i}:{65+2*i}]' if cfg.stamps == 4 else ''

        Lstep = e.lab('step')
        em(stage(0)); em(step_scalars())
        e(f'{Lstep}:')
        e('; MARK 1')
        z = zero(vACC, 24)
        if TRACE[0] in (4, 5): e(f's_lshl_b64 exec, 1, {sSTEP}\nv_mov_b32 v{vZERO}, s64\ns_mov_b64 exec, -1\n' + ('s_memtime' if TRACE[0] == 5 else 's_memrealtime') + ' s[64:65]')
        paced(z[:6], cfg.d2)
        mk(5)
        em(mloads(0))
        paced(z[6:] + [f'v_mov_b32 v{vREM}, {sXd}', f'v_mov_b32 v{vREM+1}, {sXd}'], cfg.gap)
        em(mloads(0, 1))
        Lok = e.lab('lok'); Lre = e.lab('lre')
        W0 = 's_waitcnt lgkmcnt(0)'
        if cfg.early == 2: nops(cfg.egap); em(mloads(1, 2))
        for i in range(cfg.hotL): e(f'v_mfma_f32_16x16x4_f32 {vr(vVX+4,4)}, v{vZERO}, v{vZERO}, 0')
        e(f's_waitcnt vmcnt({4 if cfg.early == 2 else 2})'); mk(6); em(mchk(0))
        if cfg.early == 1: em(mloads(1, 2))
        e(f's_waitcnt lgkmcnt(0)\ns_cbranch_vccnz {Lre}\n{Lok}:')
        if cfg.early:
            tail.append(J([f'{Lre}:'] + mloads(0,0) + ['s_waitcnt vmcnt(4)'] + mchk(0,1) + [W0, f's_cbranch_vccz {Lok}']))
            Lre = e.lab('lre')
            retry(Lre, J(mloads(0,1) + ['s_waitcnt vmcnt(2)'] + mchk(0,0) + [W0, f's_cbranch_vccz {Lok}'] + mloads(0,0) + ['s_waitcnt vmcnt(2)'] + mchk(0,1) + [W0, f's_cbranch_vccz {Lok}']), Lre, 96)
        elif cfg.quick & 1:
            m1 = mchk(0,1)
            tail.append(J([f'{Lre}:', 's_waitcnt vmcnt(0)'] + m1 + mloads(0,0) + [W0, f's_cbranch_vccz {Lok}']))
            Lre = e.lab('lre')
            retry(Lre, J(mloads(0,1) + ['s_waitcnt vmcnt(2)'] + mchk(0,0) + [W0, f's_cbranch_vccz {Lok}'] + mloads(0,0) + ['s_waitcnt vmcnt(2)'] + mchk(0,1) + [W0, f's_cbranch_vccz {Lok}']), Lre, 96)
        else:
            retry(Lre, J(mloads(0,0) + ['s_waitcnt vmcnt(2)'] + mchk(0,1) + [W0, f's_cbranch_vccz {Lok}'] + mloads(0,1) + ['s_waitcnt vmcnt(2)'] + mchk(0,0) + [W0, f's_cbranch_vccz {Lok}']), Lre, 96)
        mk(7)
        e('s_barrier')
        stamp(2); mk(8)
        for c in range(5): e(aread(L_MEM + 5120, c))
        em(mloads(1)[:2-cfg.lsp])
        mf = []
        for c in range(5): mf += [smf(v0, c, ('v','L',c), 0), smf(v1, c, ('v','L',c), 1)]
        for c in range(5): mf += [smf(q0,c,('q','L',c),0), smf(k0,c,('k','L',c),0), smf(q1,c,('q','L',c),1), smf(k1,c,('k','L',c),1)]
        for c in range(5): mf += [smf(q0,c,('q','R',c),0), smf(k0,c,('k','R',c),0)]
        for c in range(5): mf += [smf(q1,c,('q','R',c),1), smf(k1,c,('k','R',c),1)]
        slots = [[] for _ in mf]
        def put(i, l, step=1):
            for x in l: slots[i].append(x); i += step
        half = lambda st: [st[i] for i in (0,1,4,5,2,3,6,7)]
        st1 = half(stage(1)); st2 = half(stage(2))
        kvrd = [f'ds_read_b128 {vr(r,4)}, {vr(vVrd)} offset:{L_KV+1024*j}' for j, r in enumerate((vVX, vVX+4, vKX, vKX+4))]
        inc = 0 if cfg.nokv else 32*8192
        put(0, mloads(1)[2-cfg.lsp:])
        put(2, [f's_add_u32 {x}, {x}, {inc}\n{r}' for x, r in zip((sV, sV2), kvrd)], 2)
        put(cfg.kr if cfg.early else 5, [f's_add_u32 {x}, {x}, {inc}\n{r}' for x, r in zip((sK, sK2), kvrd[2:])])
        if not cfg.standalone:
            put(6, ['s_min_u32 s8, s8, s9', f's_max_u32 {sSEEN}, {sSEEN}, s8'])
        Kok = e.lab('kok'); Kre = e.lab('kre')
        if not cfg.standalone:
            put(8, [f's_cmp_lt_u32 {sSEEN}, {sNEED}\ns_cbranch_scc1 {Kre}\n{Kok}:'])
        put(9, ['s_waitcnt lgkmcnt(0)'])
        VL = v1; NEG = v0
        late = []; later = []
        def place(p, x):
            if p < 50: put(p, [x])
            else: (late if p == 60 else later).append(x)
        if cfg.early and cfg.dp[2] < 50:
            assert cfg.kr + 2 < cfg.dp[2] < 38
            put(cfg.dp[2], ['s_waitcnt lgkmcnt(0)'])
        for p, x in zip(cfg.dp, vdma + kdma): place(p, x)
        for p in (10, 11):
            if p not in cfg.dp: put(p, ['s_nop 0'])
        put(12, [f'v_add_f32 v{v0}, v{v0}, v{v0+2}\nv_add_f32 v{v0+1}, v{v0+1}, v{v0+3}', f'v_add_f32 v{v0+2}, v{v1}, v{v1+2}\nv_add_f32 v{v0+3}, v{v1+1}, v{v1+3}',
                 f'v_cvt_pk_bf16_f32 v{VL}, v{v0}, v{v0+1}\nv_cvt_pk_bf16_f32 v{VL+1}, v{v0+2}, v{v0+3}',
                 f'buffer_store_dwordx2 {vr(VL,2)}, v{vA8}, {WS}, {sVXst} offen sc1'])
        rp = cfg.rp
        free = [i for i in range(16, 29) if not rp <= i <= rp + 4]
        if cfg.early: free = [i for i in free if i < rp] + [i for i in free if i > rp + 6]
        n1 = min(8, len(free))
        for i, x in zip(free, st1): put(i, [x])
        put(cfg.xp, [f's_mov_b64 exec, {sEX}\nbuffer_store_dwordx2 {vr(vREM,2)}, {vr(vPub)}, {WS}, {sXo} offen sc1\ns_mov_b64 exec, -1'])
        if not cfg.nokm: place(cfg.vmp, f'buffer_store_dwordx2 {vr(VL,2)}, v{vA8}, {WS}, {sVM} offen sc1')
        Rok = e.lab('rok'); Rre = e.lab('rre')
        mc = mchk(1, 2 if cfg.early else 1)
        put(rp, [J(['@wr', m4(9), mc[0]]), J(mc[1:3]), J(mc[3:5]), f'v_mov_b64 {vr(NEG,2)}, -1\nv_mov_b64 {vr(NEG+2,2)}, -1'])
        bp = rp + 4
        put(bp, [J([W0, f's_cbranch_vccnz {Rre}', f'{Rok}:', 's_barrier', 's_memtime s[70:71]' if cfg.stamps == 1 else m4(10)])])
        if cfg.early:
            put(bp, ['@r2'])
            put(44, ['@wx'])
            R2 = Rre; Rre = e.lab('rre')
        retry(Rre, J(mloads(1) + ['s_waitcnt vmcnt(0)'] + mchk(1) + [W0, f's_cbranch_vccz {Rok}']), Rre, 97)
        pos = bp
        for c in range(5):
            pos = max(pos, 13 + 4*c)
            put(pos, [aread(L_MEM, c)])
            if pos < 29 and c >= 1: pos += 1
        put(29, st1[n1:], 0)
        place(cfg.prp, f'buffer_store_dwordx4 {vr(NEG,4)}, {vr(vM16)}, {WS}, {sPrst} offen{sc}')
        place(cfg.prp + (2 if cfg.prp < 50 else 0), f'buffer_store_dword v{NEG}, {vr(vM4)}, {WS}, {sPrst} offen{sc}')
        place(cfg.vrp, f'buffer_store_dwordx2 {vr(NEG,2)}, v{vA8}, {WS}, {sVXrs} offen sc1')
        put(38, st2[:4])
        put(49, ['s_waitcnt lgkmcnt(4)'])
        X = vA; T = vPL; D0 = vPL + 6; D1 = vA + 4; XA = vA + 12; XB = vA + 16; MK = vT; MK1 = vT + 1
        put(42, [f'v_add_f32 v{q0}, v{q0}, v{q0+2}', f'v_add_f32 v{q0+1}, v{q0+1}, v{q0+3}', f'v_add_f32 v{k0}, v{k0}, v{k0+2}', f'v_add_f32 v{k0+1}, v{k0+1}, v{k0+3}',
                 f'v_cvt_pk_bf16_f32 v{T}, v{q0}, v{q0+1}', f'v_cvt_pk_bf16_f32 v{T+1}, v{k0}, v{k0+1}', f'v_bfe_i32 v{MK1}, {vr(vIDX)}, 1, 1'])
        vld = f'buffer_load_dwordx2 {vr(vREM,2)}, v{vA8}, {WS}, {sVXld} offen sc1'
        if cfg.vl < 50: put(cfg.vl, [vld])
        for m, f in zip(mf, slots):
            e(m)
            for x in f:
                if x.startswith('@wr'): x = x.replace('@wr', f's_waitcnt vmcnt({younger(mloads(1, 2 if cfg.early else 1)[1])})')
                if x == '@wx': x = f's_waitcnt vmcnt({younger(mloads(1)[1])})'
                if x == '@r2':
                    tail.append(J([f'{R2}:', f's_add_u32 s95, s95, 1' if cfg.stamps in (1,2) else '', f's_waitcnt vmcnt({younger(mloads(1)[1])})'] + mchk(1) + [W0, f's_cbranch_vccz {Rok}', f's_branch {Rre}']))
                    continue
                e(x)
        dq = 'quad_perm:[0,1,0,1] row_mask:0xf bank_mask:0xf'
        S0, SM = q0, k0
        PX = vA + 12; PM = vA + 8; ONE = vPL; vLIM = vA + 10; sC2 = 's[12:13]'
        def hot(d, bit, short=False):
            if not cfg.warm & bit: return ''
            if short: return f'v_mfma_f32_16x16x16_bf16 {vr(d,4)}, {vr(vID,2)}, {vr(vID,2)}, 0'
            return f'v_mfma_f32_16x16x4_f32 {vr(d,4)}, v{vZERO}, v{vZERO}, 0'
        kmst = f'buffer_store_dwordx4 {vr(X,4)}, {vr(vA16)}, {WS}, {sKM} offen sc1' if not cfg.nokm else 's_nop 0'
        e(f"""v_mfma_f32_16x16x16_bf16 {vr(D0,4)}, {vr(T,2)}, {vr(vID,2)}, 0
        {vld if cfg.vl == 50 else ''}
        {J(st2[4:])}
        v_not_b32 v{MK}, v{MK1}
        v_add_f32 v{q1}, v{q1}, v{q1+2}
        v_add_f32 v{q1+1}, v{q1+1}, v{q1+3}
        v_pk_add_f32 {vr(k1,2)}, {vr(k1,2)}, {vr(k1+2,2)}
        v_cvt_pk_bf16_f32 v{T+2}, v{q1}, v{q1+1}
        v_cvt_pk_bf16_f32 v{T+3}, v{k1}, v{k1+1}
        v_cvt_pk_bf16_f32 v{X}, v{D0}, v{D0+1}
        v_cvt_pk_bf16_f32 v{X+1}, v{D0+2}, v{D0+3}
        v_mfma_f32_16x16x16_bf16 {vr(D1,4)}, {vr(T+2,2)}, {vr(vID,2)}, 0
        {vld if cfg.vl == 51 else ''}
        v_and_b32 v{XA}, v{X}, v{MK}
        v_and_b32 v{XA+1}, v{X+1}, v{MK}
        v_and_b32_dpp v{XB}, v{X}, v{MK1} {dq}
        v_and_b32_dpp v{XB+1}, v{X+1}, v{MK1} {dq}
        v_mov_b32 v{ONE}, 0x3f803f80
        v_mov_b32 v{ONE+1}, 0x3f803f80
        v_mov_b32 v{VL+2}, v{VL+1}
        s_cmp_eq_u32 {sSTEP}, {cfg.nsteps-1}
        v_cvt_pk_bf16_f32 v{X+2}, v{D1}, v{D1+1}
        v_cvt_pk_bf16_f32 v{X+3}, v{D1+2}, v{D1+3}
        v_and_b32 v{XA+2}, v{X+2}, v{MK}
        v_and_b32 v{XA+3}, v{X+3}, v{MK}
        v_mfma_f32_16x16x32_bf16 {vr(SM,4)}, {vr(X,4)}, {vr(X,4)}, 0
        v_and_b32_dpp v{XB+2}, v{X+2}, v{MK1} {dq}
        v_and_b32_dpp v{XB+3}, v{X+3}, v{MK1} {dq}""")
        stamp(4); mk(11)
        kx = f's_mov_b64 exec, {sEVM}\n{kmst}\ns_mov_b64 exec, -1'
        if cfg.kmp < 9: late.insert(cfg.kmp, kx)
        else: later.append(kx)
        e(f"""@wl
        v_mfma_f32_16x16x32_bf16 {vr(S0,4)}, {vr(vKX,4)}, {vr(XA,4)}, 0
        {vld if cfg.vl == 52 else 's_nop 0'}
        @wl
        v_mfma_f32_16x16x32_bf16 {vr(S0,4)}, {vr(vKX+4,4)}, {vr(XB,4)}, {vr(S0,4)}
        s_cbranch_scc1 {Ldone}
        s_nop 0
        s_mov_b64 exec, {sEB0}
        ds_write2_b32 {vr(vSwr2)}, v{SM+2}, v{SM+3} offset0:0 offset1:32
        s_mov_b64 exec, -1
        s_nop 1
        {hot(D0, 1) or 's_nop 0'}
        ds_write_b128 {vr(vSwr)}, {vr(S0,4)} offset:{L_SX}
        {hot(D0, 1)}
        {J(late[:cfg.nb])}
        {hot(D0, 32)}
        s_waitcnt lgkmcnt(0)
        s_barrier""")
        stamp(5); mk(12)
        R = [q0, q1, k0, k1]; RM = D1
        e(f'ds_read_b128 {vr(R[0],4)}, {vr(vPerm)} offset:{L_SX}')
        e(hot(D0, 2))
        for w in range(1, 4): e(f'ds_read_b128 {vr(R[w],4)}, {vr(vPerm)} offset:{L_SX+1024*w}')
        e(f'ds_read_b128 {vr(RM,4)}, {vr(vPerm)} offset:{L_SM}')
        late = late[cfg.nb:]
        em(late[:cfg.nl])
        e(f'v_mov_b32 v{ONE+2}, 0x3f803f80\nv_mov_b32 v{ONE+3}, 0x3f803f80')
        if not cfg.smax: e(f'v_mov_b32 v{vLIM}, {f2u(cfg.lim)}')
        lt = late[cfg.nl:] + ['']*3
        e(f"""@wl
        v_pk_add_f32 {vr(q0,2)}, {vr(q0,2)}, {vr(q1,2)}
        v_pk_add_f32 {vr(q0+2,2)}, {vr(q0+2,2)}, {vr(q1+2,2)}
        @wl
        v_pk_add_f32 {vr(q0,2)}, {vr(q0,2)}, {vr(k0,2)}
        v_pk_add_f32 {vr(q0+2,2)}, {vr(q0+2,2)}, {vr(k0+2,2)}
        s_waitcnt lgkmcnt(0)
        v_pk_add_f32 {vr(q0,2)}, {vr(q0,2)}, {vr(k1,2)}
        v_pk_add_f32 {vr(RM,2)}, {vr(RM,2)}, {vr(RM+2,2)}
        v_pk_add_f32 {vr(q0+2,2)}, {vr(q0+2,2)}, {vr(k1+2,2)}
        v_add_f32 v{RM}, v{RM}, v{RM+1}""")
        zz = zero(q1, 12)
        mx = f"""v_max3_f32 v{M}, v{q0}, v{q0+1}, v{q0+2}
        v_max3_f32 v{M}, v{M}, v{q0+3}, v{RM}
        {zz[0]}
        {zz[1]}
        {lt[0]}
        v_max_f32_dpp v{M2}, v{M}, v{M} quad_perm:[2,3,0,1] row_mask:0xf bank_mask:0xf
        v_max_f32_dpp v{M}, v{M}, v{M} quad_perm:[2,3,0,1] row_mask:0xf bank_mask:0xf
        {zz[2]}
        {zz[3]}
        {lt[1]}
        v_permlane16_swap_b32 v{M}, v{M2}
        v_max_f32 v{RM+1}, v{M}, v{M2}
        v_max_f32 v{M}, v{M}, v{M2}
        {zz[4]}
        {zz[5]}
        {lt[2]}
        v_permlane32_swap_b32 v{M}, v{RM+1}
        v_max_f32 v{M}, v{M}, v{RM+1}
        v_mul_f32 v{M}, {sC}, v{M}
        v_fma_f32 v{q0}, v{q0}, {sC}, -v{M}
        v_fma_f32 v{q0+1}, v{q0+1}, {sC}, -v{M}
        v_fma_f32 v{q0+2}, v{q0+2}, {sC}, -v{M}
        v_fma_f32 v{q0+3}, v{q0+3}, {sC}, -v{M}
        v_fma_f32 v{RM}, v{RM}, {sC}, -v{M}"""
        E0 = q0; EM = RM
        if cfg.smax: e(mx)
        else:
            Sok = e.lab('sok'); Smx = e.lab('smx')
            E0 = vA + 16; EM = RM + 2
            e(J(lt))
            e(f"""v_pk_mul_f32 {vr(E0,2)}, {vr(q0,2)}, {sC2}
            v_pk_mul_f32 {vr(E0+2,2)}, {vr(q0+2,2)}, {sC2}
            v_mul_f32 v{EM}, {sC}, v{RM}
            v_max3_f32 v{M}, |v{E0}|, |v{E0+1}|, |v{E0+2}|
            v_max3_f32 v{M}, v{M}, |v{E0+3}|, |v{EM}|
            v_cmp_nlt_f32 vcc, v{M}, v{vLIM}
            {Sok}:""")
            mx2 = J(l for l in mx.split('\n') if 'buffer_' not in l and 'v_mov_b64' not in l)
            tail.append(J([f'{Smx}:', mx2] + [f'v_mov_b32 v{E0+j}, v{q0+j}' for j in range(4)] + [f'v_mov_b32 v{EM}, v{RM}', 's_mov_b64 vcc, 0', f's_branch {Sok}']))
        e(f"""
        v_exp_f32 v{E0}, v{E0}
        v_exp_f32 v{E0+1}, v{E0+1}
        v_exp_f32 v{E0+2}, v{E0+2}
        v_exp_f32 v{E0+3}, v{E0+3}
        v_cvt_pk_bf16_f32 v{PX}, v{E0}, v{E0+1}
        v_cvt_pk_bf16_f32 v{PX+1}, v{E0+2}, v{E0+3}
        v_exp_f32 v{EM}, v{EM}
        v_mov_b32_dpp v{PX+2}, v{PX} quad_perm:[2,3,2,3] row_mask:0xf bank_mask:0xf
        v_mov_b32_dpp v{PX+3}, v{PX+1} quad_perm:[2,3,2,3] row_mask:0xf bank_mask:0xf
        v_mov_b32_dpp v{EM+1}, v{EM} quad_perm:[2,3,2,3] row_mask:0xf bank_mask:0xf
        v_cvt_pk_bf16_f32 v{PM}, v{EM}, v{EM+1}
        {'' if cfg.smax else f's_cbranch_vccnz {Smx}'}""")
        stamp(6); mk(13)
        O0, O1 = vKX, vKX + 4; SUM = vA + 16; OP = vPL + 6
        z0 = zero(q0, 4); z4 = zero(v0, 4)
        Vok = e.lab('vok'); Vre = e.lab('vre')
        vw = f's_waitcnt vmcnt({younger(vld)})'
        retry(Vre, J([vld, 's_waitcnt vmcnt(0)']), Vok, 98)
        e(f"""{vw}
        {Vok}:
        v_mfma_f32_16x16x32_bf16 {vr(O0,4)}, {vr(vVX,4)}, {vr(PX,4)}, 0
        v_mov_b32 v{VL+1}, v{vREM}
        v_mov_b32 v{PM+1}, v{PM}
        v_mfma_f32_16x16x32_bf16 {vr(O1,4)}, {vr(vVX+4,4)}, {vr(PX,4)}, 0
        v_mov_b32 v{VL+3}, v{vREM+1}
        v_max_u32 v{M}, v{vREM}, v{vREM+1}
        v_cmp_eq_u32 vcc, -1, v{M}
        {m4(14)}
        v_mfma_f32_16x16x16_bf16 {vr(O0,4)}, {vr(VL,2)}, {vr(PM,2)}, {vr(O0,4)}
        {z0[0]}
        {z0[1]}
        v_mfma_f32_16x16x16_bf16 {vr(O1,4)}, {vr(VL+2,2)}, {vr(PM,2)}, {vr(O1,4)}
        {z4[0]}
        {z4[1]}
        v_mfma_f32_16x16x16_bf16 {vr(SUM,4)}, {vr(PM,2)}, {vr(ONE,2)}, 0
        s_cbranch_vccnz {Vre}
        v_cvt_pk_bf16_f32 v{OP}, v{O0}, v{O0+1}
        v_cvt_pk_bf16_f32 v{OP+1}, v{O0+2}, v{O0+3}
        v_cvt_pk_bf16_f32 v{OP+2}, v{O1}, v{O1+1}
        v_cvt_pk_bf16_f32 v{OP+3}, v{O1+2}, v{O1+3}
        v_mfma_f32_16x16x32_bf16 {vr(D1,4)}, {vr(PX,4)}, {vr(ONE,4)}, 0
        s_mov_b64 exec, {sEB0}
        ds_write_b128 {vr(vOwr)}, {vr(OP,4)} offset:{L_O}
        s_mov_b64 exec, -1
        {hot(vVX+4, 4) if cfg.smax else J(x + chr(10) + 's_nop 0' for x in zz)}
        {hot(vVX+4, 16)}
        s_waitcnt lgkmcnt(0)
        s_barrier""")
        stamp(7); mk(15)
        OA = vKX
        def wo(t, kap): return f'@wl\nv_smfmac_f32_16x16x64_bf16 {vr(vACC+4*t,4)}, {vr(OA+4*kap,4)}, {W(("o","",t),kap)}, {vr(vIDX)}'
        PO = vPL; SEL = vVX
        def fin(t):
            a = vACC + 4*t
            return [f'v_pk_add_f32 {vr(a,2)}, {vr(a,2)}, {vr(a+2,2)}', f'v_pk_mul_f32 {vr(a,2)}, {vr(a,2)}, {vr(M,2)}', f'v_cvt_pk_bf16_f32 v{PO+t}, v{a}, v{a+1}']
        a0, a1, a2, a3 = (vACC + 4*t for t in range(4))
        e(f"""ds_read_b128 {vr(OA,4)}, {vr(vPerm)} offset:{L_O}
        {hot(vA+8, 8, True)}
        ds_read_b128 {vr(OA+4,4)}, {vr(vPerm)} offset:{L_O+1024}
        {J(later)}
        s_add_u32 {sKM}, {sKM}, {32*4096}
        v_fma_f32 v{SUM}, v{SUM}, 0.5, v{D1}
        s_add_u32 {sVM}, {sVM}, {32*4096}
        v_fma_f32 v{SUM+1}, v{SUM+1}, 0.5, v{D1+1}
        s_add_u32 {sSTEP}, {sSTEP}, 1
        v_rcp_f32 v{M}, v{SUM}
        s_lshl_b32 {sT2}, {sUNIT}, 12
        s_add_u32 {sPld}, {sPst}, {sT2}
        v_rcp_f32 v{M2}, v{SUM+1}
        """)
        a4 = vACC + 16
        if cfg.t4:
            e(f"""{wo(4,0)}
            {wo(4,1)}
            ds_read_b128 {vr(SEL,4)}, {vr(vA16)} offset:{L_SEL}
            {wo(0,0)}
            s_nop 0
            {wo(0,1)}
            s_nop 0
            {wo(1,0)}
            s_nop 0
            {wo(1,1)}
            v_add_f32 v{a4}, v{a4}, v{a4+2}
            {wo(2,0)}
            v_add_f32 v{a4+1}, v{a4+1}, v{a4+3}
            {wo(2,1)}
            v_mul_f32 v{a4}, v{a4}, v{M}
            {wo(3,0)}
            v_mul_f32 v{a4+1}, v{a4+1}, v{M2}
            {wo(3,1)}
            v_cvt_pk_bf16_f32 v{PO+4}, v{a4}, v{a4+1}
            v_add_f32 v{a0}, v{a0}, v{a0+2}
            v_add_f32 v{a0+1}, v{a0+1}, v{a0+3}
            buffer_store_dword v{PO+4}, {vr(vPst1)}, {WS}, {sPst} offen{sc}""")
            em([fin(1)[0], fin(2)[0], fin(0)[1], fin(1)[1], fin(3)[0], fin(2)[1], fin(3)[1], fin(0)[2], fin(1)[2], fin(2)[2], fin(3)[2]])
            e(f'buffer_store_dwordx4 {vr(PO,4)}, {vr(vPst4)}, {WS}, {sPst} offen{sc}')
        else:
            e(f"""
        {wo(0,0)}
        {wo(0,1)}
        ds_read_b128 {vr(SEL,4)}, {vr(vA16)} offset:{L_SEL}
        {wo(1,0)}
        s_nop 0
        {wo(1,1)}
        s_nop 0
        {wo(2,0)}
        s_nop 0
        {wo(2,1)}
        v_add_f32 v{a0}, v{a0}, v{a0+2}
        {wo(3,0)}
        v_add_f32 v{a0+1}, v{a0+1}, v{a0+3}
        {wo(3,1)}
        v_add_f32 v{a1}, v{a1}, v{a1+2}
        {wo(4,0)}
        v_add_f32 v{a1+1}, v{a1+1}, v{a1+3}
        {wo(4,1)}
        v_add_f32 v{a2}, v{a2}, v{a2+2}
        v_add_f32 v{a2+1}, v{a2+1}, v{a2+3}
        v_mul_f32 v{a0}, v{a0}, v{M}
        v_mul_f32 v{a0+1}, v{a0+1}, v{M2}
        v_cvt_pk_bf16_f32 v{PO}, v{a0}, v{a0+1}""")
            em([fin(3)[0], fin(1)[1], fin(2)[1], fin(3)[1], fin(1)[2], fin(2)[2], fin(3)[2], fin(4)[0], fin(4)[1]])
            e(f'buffer_store_dwordx4 {vr(PO,4)}, {vr(vPst4)}, {WS}, {sPst} offen{sc}')
            e(fin(4)[2])
            e(f'buffer_store_dword v{PO+4}, {vr(vPst1)}, {WS}, {sPst} offen{sc}')
        if cfg.stamps == 1: e('s_memtime s[80:81]')
        e('; MARK 8')
        if cfg.stamps == 4:
            Lc = e.lab('cap')
            e(f's_memtime s[64:65]\ns_cmp_lg_u32 {sSTEP}, {cfg.cap}\ns_cbranch_scc1 {Lc}\ns_waitcnt lgkmcnt(0)')
            dump()
            e(f's_mov_b64 exec, -1\n{Lc}:'); mk(1)
        def prep():
            Lsl = e.lab('nosl')
            return J(stage(0) + step_scalars() + ['s_waitcnt lgkmcnt(0)',
                f's_add_u32 {sT0}, {sSTEP}, {cfg.lazy}\ns_min_u32 {sT0}, {sT0}, 64\ns_cmp_ge_u32 {sSEEN}, {sT0}\ns_cbranch_scc1 {Lsl}',
                f's_load_dword s8, {sFP}, 0 glc\ns_load_dword s9, {sFP}, {F_V - F_K} glc\n{Lsl}:'])
        if not cfg.pin: e(prep())
        Lnr = e.lab('nored'); Lr = e.lab('red'); Lrr = e.lab('redr')
        e(f's_cmp_lt_i32 {sUNIT}, 0\ns_cbranch_scc1 {Lnr}')
        nops(cfg.d1)
        RD = vA + 16; RO = vPL + 6
        def rl(RA): return J(f'buffer_load_dwordx4 {vr(RA+4*j,4)}, {vr(vA16)}, {WS}, {sPld} offen offset:{1024*j} sc1' for j in range(4))
        def rsum(RA, o):
            x = [f's_waitcnt vmcnt({o+3})', f'v_mfma_f32_16x16x32_bf16 {vr(RD,4)}, {vr(SEL,4)}, {vr(RA,4)}, 0', f'v_max3_u32 v{M}, v{RA}, v{RA+1}, v{RA+2}']
            for j in range(1, 4):
                r = RA + 4*j
                x += [f's_waitcnt vmcnt({o+3-j})', f'v_mfma_f32_16x16x32_bf16 {vr(RD,4)}, {vr(SEL,4)}, {vr(r,4)}, {vr(RD,4)}',
                      f'v_max3_u32 v{M}, v{M}, v{r-1}, v{r}', f'v_max3_u32 v{M}, v{M}, v{r+1}, v{r+2}']
            x += [f'v_max_u32 v{M}, v{M}, v{RA+15}', f'v_cmp_eq_u32 vcc, -1, v{M}']
            return J(x)
        rfin = J([f'v_add_f32_dpp v{RO+j}, v{RD+j}, v{RD+j} row_ror:8 row_mask:0xf bank_mask:0xf' for j in range(4)] +
                 [f'v_cvt_pk_bf16_f32 v{RO}, v{RO}, v{RO+1}', f'v_cvt_pk_bf16_f32 v{RO+1}, v{RO+2}, v{RO+3}'])
        mk(2)
        e(rl(vA))
        if cfg.pin: e(prep())
        nops(cfg.gapA); e(rl(vACC))
        e(rsum(vA, 4))
        if cfg.quick & 2:
            L2 = e.lab('redr')
            tail.append(J([f'{Lrr}:', rsum(vACC, 0), f's_cbranch_vccz {Lr}', rl(vACC), 's_nop 15']))
            retry(L2, J([rl(vA), rsum(vACC, 4), f's_cbranch_vccz {Lr}', rl(vACC), rsum(vA, 4), f's_cbranch_vccz {Lr}']), L2, 99)
            e(f's_nop 1\ns_cbranch_vccnz {Lrr}\n{Lr}:\n{rfin}')
        else:
            retry(Lrr, J([rl(vA), rsum(vACC, 4), rfin, f's_cbranch_vccz {Lr}', rl(vACC), rsum(vA, 4), rfin, f's_cbranch_vccz {Lr}']), Lrr, 99)
            e(f'{rfin}\ns_cbranch_vccnz {Lrr}\n{Lr}:')
        e(f"""
        {m4(3)}
        s_mov_b64 exec, {sEPUB}
        buffer_store_dwordx2 {vr(RO,2)}, {vr(vPub)}, {WS}, {sPubS} offen sc1""")
        if fast: e(f"""buffer_store_dwordx2 {vr(RO,2)}, {vr(vPub)}, {WS}, {sPubF} offen
        v_mov_b64 {vr(RO+2,2)}, -1
        s_barrier
        buffer_store_dwordx2 {vr(RO+2,2)}, {vr(vPub)}, {WS}, {sRstF} offen""")
        else: e('s_barrier')
        Lj = e.lab('join')
        e(f"""s_mov_b64 exec, -1
        s_waitcnt vmcnt({3 if fast else 1})
        {Lj}:""")
        lg = prep() if cfg.pin else ''
        tail.append(f'{Lnr}:\n{lg}\ns_barrier\ns_branch {Lj}')
        if cfg.stamps == 1:
            e('s_memtime s[100:101]\ns_waitcnt lgkmcnt(0)')
            for i in range(8): e(f's_sub_u32 {sT0}, s{66+2*i}, s{64+2*i}\ns_add_u32 s{84+i}, s{84+i}, {sT0}')
            e('s_mov_b32 s64, s80\ns_mov_b32 s66, s100')
        trace(e, 64, vT, sSTEP)
        mk(4)
        e('; MARK 9')
        e(f's_branch {Lstep}')
        em(tail)
        if not cfg.standalone:
            e(f'{Kre}:')
            kvwait(sNEED)
            e(f's_branch {Kok}')
        e(f'{Ldone}:\ns_mov_b64 exec, {sEVM}\n{kmst}\ns_mov_b64 exec, -1')
        if not cfg.standalone:
            e(f's_waitcnt vmcnt(0)\ns_barrier'); trace(e, 4, vT); diag(e, 56, vT); steplog(); e(f's_cmp_lg_u32 {sW}, 3\ns_cbranch_scc1 {Ldone}x'); set_flag(e, sFR, 64, vT); e(f'{Ldone}x:')
        if cfg.stamps in (1, 2, 3):
            if cfg.stamps != 3: e('s_memtime s[80:81]\ns_waitcnt lgkmcnt(0)\ns_sub_u32 s92, s80, s82\ns_sub_u32 s93, s82, s24')
            e('s_waitcnt lgkmcnt(0)')
            dump()
        e('s_waitcnt vmcnt(0)\ns_branch L_exit')

    trace(e, 1, 66); diag(e, 52, 66)
    trace(e, 3, 66); diag(e, 54, 66)
    if cfg.sup > 50: e('s_branch L_exit')
    if True:
        LS = e.lab('rslow')
        e(f's_cmp_eq_u32 {sFAST}, 0\ns_cbranch_scc1 {LS}')
        body(1)
        e(f'{LS}:')
        body(0)
```

```python
from common import *
from role_pre import gen_mod, gen_ln_load, gen_ln, sT
sCU = sIDX
sTEAM, sS, sN = 's27', 's29', 's30'
sT0, sT1, sT2, sT3 = 's32', 's33', 's34', 's35'
sFWO, sFLN, sFM1, sFB = 's36', 's37', 's38', 's39'
sO, sAP, sAPr, sX, sX1, sY, sYr, sHID, sHIDr, sHIDt, sX1r, sOUT = 's40','s41','s42','s43','s44','s45','s46','s47','s48','s49','s50','s51'
sSEG = 's[14:15]'
def schedule(cfg):
    s0 = cfg.get('join', 33); nj = cfg.get('nj', 2)
    m = [0]*5
    for s in range(64):
        t = s % 3 if s < s0 or nj == 0 else ((3, 4, 0, 1, 2) if nj == 2 else (3, 0, 1, 2))[(s - s0) % (3 + nj)]
        if t < 3 and s >= s0 and nj: t = (t + s0) % 3
        m[t] |= 1 << s
    return m
sPRE = 's28'
sB = 's53'
def WO(k, t): r = 4*(5*k + t); return ('a', r)
def W1(k): return ('a', 160 + 4*k)
def W2(k, t):
    i = 3*k + t
    return ('a', 240 + 4*i) if i < 4 else ('v', 104 + 4*(i-4))
def R4(x): return f'{x[0]}[{x[1]}:{x[1]+3}]'
vA16, vA4, vQF, vRW, vRR, vAPs, vYs, vHs, vOs, vX1, vT = 1, 2, 3, 4, 5, 6, 7, 8, 9, 10, 11
vYr = 0
A = 16; ACC = 64
L_RED, L_Y, L_PAR, L_X = 0, 40960, 81920, 94208

def stage_rows(e, srdn, ppr, ninstr, rowbytes, step_rows, sbase):
    grp = 5 if ppr in (5, 10) else 1
    for j in range(grp):
        e(f'v_add_u32 v20, {64*j}, v17')
        if ppr == 2: e('v_lshrrev_b32 v21, 1, v20')
        else: e(f'v_mul_u32_u24 v21, {6554 if ppr == 10 else 13108}, v20\nv_lshrrev_b32 v21, 16, v21')
        e(f'''v_mul_u32_u24 v22, {ppr}, v21
        v_sub_u32 v22, v20, v22
        v_mul_u32_u24 v21, {rowbytes}, v21
        v_lshl_add_u32 v{24+j}, v22, 4, v21''')
    for n in range(ninstr):
        e(f's_add_u32 m0, s52, {1024*n}')
        if n % grp == 0: e(f's_add_u32 {sT0}, {sbase}, {(n//grp)*step_rows*rowbytes}')
        e(f'buffer_load_dwordx4 v{24 + n % grp}, s[{srdn}:{srdn+3}], {sT0} offen lds')

def touch(e):
    srd(e, 8, 'wq'); srd(e, 12, 'wo')
    e(f'v_lshlrev_b32 v200, 7, v0\ns_mul_i32 {sT0}, {sT}, 81920\ns_waitcnt lgkmcnt(0)')
    srd_fin(e, 8, 'wq'); srd_fin(e, 12, 'wo')
    for j in range(3):
        if j == 2: e(f's_cmp_ge_u32 {sW}, 2\ns_cselect_b32 {sT0}, {SZ["wq"]}, {sT0}')
        e(f'buffer_load_dword v201, v200, s[8:11], {sT0} offen\nbuffer_load_dword v202, v200, s[12:15], {sT0} offen\ns_add_u32 {sT0}, {sT0}, 32768')

def gen_T(e, cfg):
    e(f'''s_sub_u32 {sTEAM}, {sGRP}, 5
    s_lshl_b32 {sT}, {sTEAM}, 5
    s_add_u32 {sT}, {sT}, {sCU}
    s_sub_u32 s29, {sT}, 64
    s_sub_u32 {sT1}, {sT}, 4
    s_cmp_ge_u32 {sT}, 64
    s_cselect_b32 s29, s29, {sT1}''')
    L1 = e.lab('t1'); L2 = e.lab('t2'); L3 = e.lab('t3'); L4 = e.lab('t4'); L5 = e.lab('t5'); L6 = e.lab('t6')
    def hold():
        n = cfg.get('tdelay', 0)
        if not n: return
        wait_go(e, 32, 10, sleep=8)
        e(f'v_mov_b32 v10, 0\ns_lshl_b32 {sT0}, {sCU}, 8\ns_add_u32 {sT0}, {sT0}, {F_K}')
        wait_flags(e, 10, sT0, 1, n, 11, sleep=8)
    e(f's_cmp_ge_u32 {sT}, 84\ns_cbranch_scc1 {L2}\ns_cmp_ge_u32 {sT}, 64\ns_cbranch_scc1 {L3}')
    gen_ln_load(e)
    if cfg.get('pf', 0): touch(e)
    claim_issue(e)
    gen_ln(e, 6 if cfg.get('pf', 0) else 0)
    e(f's_branch {L1}\n{L2}:')
    claim_issue(e); claim_check(e)
    e(f's_lshl_b32 {sT0}, {sW}, 7\ns_add_u32 {sT0}, {sT0}, {sT}\ns_cmp_lg_u32 {sT0}, 95\ns_cbranch_scc1 {L1}')
    coordinate(e, 10)
    e(f'{L1}:\ns_mov_b32 {sOWN}, 1')
    hold()
    e(f's_cmp_lt_u32 {sT}, 36\ns_cbranch_scc1 {L6}\n{L3}:')
    gen_mod(e)
    hold()
    e(f'{L6}:')
    if cfg.get('stop') == 'pre':
        e('L_join:\ns_branch L_exit'); return
    e(f'''L_join:
    s_lshl_b32 {sT0}, {sTEAM}, 5
    s_add_u32 {sT0}, {sT0}, {sCU}
    s_lshl_b32 {sT0}, {sT0}, 2
    s_add_u32 {sFWO}, {sT0}, {F_WO}
    s_add_u32 {sFLN}, {sT0}, {F_LN}
    s_add_u32 {sFM1}, {sT0}, {F_M1}''')
    srd(e, 8, 'wo'); srd(e, 12, 'w1'); srd(e, 16, 'w2')
    e(f'''v_and_b32 v17, 63, v0
    v_lshlrev_b32 v{vA16}, 4, v17
    v_lshlrev_b32 v{vA4}, 2, v17
    v_and_b32 v18, 15, v17           ; rho
    v_lshrrev_b32 v19, 4, v17        ; g
    v_bfe_u32 v30, v17, 2, 2         ; rr
    v_and_b32 v31, 3, v17            ; cc
    s_mul_i32 s52, {sW}, 40960
    s_lshr_b32 s53, {sCU}, 3
    s_and_b32 s54, {sCU}, 7
    s_lshr_b32 s55, {sCU}, 4
    s_and_b32 s56, {sCU}, 15
    s_min_u32 s57, {sCU}, 26
    s_waitcnt lgkmcnt(0)
    s_barrier''')
    srd_fin(e, 8, 'wo'); srd_fin(e, 12, 'w1'); srd_fin(e, 16, 'w2')
    e(f'''s_lshl_b32 {sT1}, s53, 2
    s_add_u32 {sT1}, {sT1}, {sW}
    s_mul_i32 {sT1}, {sT1}, {256*1280}
    s_mul_i32 {sT2}, s54, 160
    s_add_u32 {sT1}, {sT1}, {sT2}''')
    stage_rows(e, 8, 10, 40, 1280, 32, sT1)
    e(f'''v_lshl_add_u32 v32, v19, 3, v30
    v_mul_u32_u24 v33, 160, v32
    v_lshl_add_u32 v33, v31, 3, v33
    v_add_u32 v33, s52, v33''')
    for k in range(8):
        e(f's_waitcnt vmcnt({35-5*k})')
        for t in range(5):
            for u in range(2):
                r = WO(k, t); e(f'ds_read_b64_tr_b16 {r[0]}[{r[1]+2*u}:{r[1]+2*u+1}], v33 offset:{5120*k + 640*u + 32*t}')
        e('s_waitcnt lgkmcnt(0)')
    e(f'''s_mul_i32 {sT1}, {sW}, {448*1280}
    s_mul_i32 {sT2}, s56, 80
    s_add_u32 {sT1}, {sT1}, {sT2}''')
    stage_rows(e, 16, 5, 35, 1280, 64, sT1)
    e(f'''v_mul_u32_u24 v33, 80, v32
    v_add_u32 v33, s52, v33
    v_and_b32 v34, 1, v31
    v_lshl_add_u32 v34, v34, 3, v33
    v_lshl_add_u32 v33, v31, 3, v33''')
    for k in range(14):
        if k % 2 == 0: e(f's_waitcnt vmcnt({30-5*(k//2)})')
        for t in range(3):
            for u in range(2):
                r = W2(k, t); e(f'ds_read_b64_tr_b16 {r[0]}[{r[1]+2*u}:{r[1]+2*u+1}], {"v33" if t < 2 else "v34"} offset:{2560*k + 320*u + 32*t}')
        e('s_waitcnt lgkmcnt(0)')
    e(f'''s_lshl_b32 {sT1}, s57, 7
    s_lshl_b32 {sT2}, {sW}, 5
    s_add_u32 {sT1}, {sT1}, {sT2}''')
    stage_rows(e, 12, 2, 20, 3456, 32, sT1)
    e(f'''v_lshlrev_b32 v33, 5, v32
    v_lshl_add_u32 v33, v31, 3, v33
    v_add_u32 v33, s52, v33''')
    for k in range(20):
        e(f's_waitcnt vmcnt({19-k})')
        for u in range(2):
            r = W1(k); e(f'ds_read_b64_tr_b16 {r[0]}[{r[1]+2*u}:{r[1]+2*u+1}], v33 offset:{1024*k + 128*u}')
        if k % 4 == 3: e('s_waitcnt lgkmcnt(0)')
    srd(e, 8, 'b1'); srd(e, 12, 'b2'); srd(e, 16, 'x'); srd(e, 20, 'out')
    gsync(e, vT, 37)
    e('s_waitcnt lgkmcnt(0)\ns_barrier')
    srd_fin(e, 8, 'b1'); srd_fin(e, 12, 'b2'); srd_fin(e, 16, 'x'); srd_fin(e, 20, 'out')
    Lp = e.lab('par')
    e(f'''s_cmp_lg_u32 {sW}, 0
    s_cbranch_scc1 {Lp}''')
    for j in range(10):
        e(f's_mov_b32 m0, {L_PAR + 1024*j}\ns_mov_b32 {sT0}, {WS_MOD + 5120 + 1024*j}')
        e(f'buffer_load_dwordx4 v{vA16}, {WS}, {sT0} offen sc1 lds')
    e(f'''v_lshlrev_b32 v20, 1, v17
    s_lshl_b32 {sT0}, s57, 7
    s_mul_i32 {sT1}, s56, 80
    buffer_load_ushort v21, v20, s[8:11], {sT0} offen
    buffer_load_ushort v22, v20, s[12:15], {sT1} offen
    v_add_u32 v20, {L_PAR + 10240}, v{vA4}
    s_waitcnt vmcnt(0)
    v_lshlrev_b32 v21, 16, v21
    v_lshlrev_b32 v22, 16, v22
    ds_write_b32 v20, v21
    ds_write_b32 v20, v22 offset:256
    s_waitcnt lgkmcnt(0)
    {Lp}:''')
    e(f'''s_lshl_b32 {sT0}, s53, 3
    s_lshl_b32 {sT1}, {sW}, 1
    s_add_u32 {sT0}, {sT0}, {sT1}
    v_add_u32 v{vQF}, {sT0}, v17
    v_lshlrev_b32 v{vQF}, 8, v{vQF}
    s_lshl_b32 {sO}, {sT0}, 12
    s_add_u32 {sO}, {sO}, {WS_O}
    s_mul_i32 {sT0}, {sW}, 10240
    v_lshl_add_u32 v21, v19, 2, v18
    v_and_b32 v21, 15, v21
    v_lshlrev_b32 v21, 4, v21
    v_lshl_add_u32 v21, v19, 8, v21
    v_add_u32 v{vRW}, {sT0}, v21
    v_lshrrev_b32 v20, 2, v17
    v_lshl_add_u32 v21, v31, 2, v20
    v_and_b32 v21, 15, v21
    v_lshlrev_b32 v21, 4, v21
    v_lshl_add_u32 v21, v31, 8, v21
    s_lshl_b32 {sT0}, {sW}, 10
    v_add_u32 v{vRR}, {sT0}, v21
    v_mul_u32_u24 v21, 10240, v20
    v_lshl_add_u32 v{vAPs}, v31, 4, v21
    s_mul_i32 {sAP}, s53, 2560
    s_mul_i32 {sT0}, s54, 320
    s_add_u32 {sAP}, {sAP}, {sT0}
    s_add_u32 {sAP}, {sAP}, {WS_AP}
    s_mul_i32 {sAPr}, {sCU}, 10240
    s_add_u32 {sAPr}, {sAPr}, {WS_AP}
    s_mul_i32 {sX}, {sCU}, 1280
    s_mul_i32 {sX1}, {sCU}, 2560
    s_add_u32 {sX1}, {sX1}, {WS_X1}
    s_lshl_b32 {sY}, {sCU}, 8
    s_add_u32 {sY}, {sY}, {WS_Y}
    v_xor_b32 v22, s56, v20
    v_lshlrev_b32 v21, 2, v31
    v_lshl_add_u32 v{vYs}, v22, 4, v21
    v_xor_b32 v22, v18, v19
    v_lshlrev_b32 v22, 4, v22
    v_lshl_add_u32 v22, v18, 8, v22
    v_add_u32 v{vYr}, {L_Y}, v22
    v_and_b32 v21, 1, v19
    v_mul_u32_u24 v21, {54*1024}, v21
    v_lshrrev_b32 v22, 1, v19
    v_lshl_add_u32 v21, v22, 8, v21
    v_lshl_add_u32 v21, v18, 4, v21
    s_and_b32 {sT0}, {sW}, 1
    s_lshl_b32 {sT0}, {sT0}, 9
    v_add_u32 v{vHs}, {sT0}, v21
    s_lshr_b32 {sT0}, {sW}, 1
    s_lshl_b32 {sT1}, s57, 1
    s_add_u32 {sT0}, {sT0}, {sT1}
    s_lshl_b32 {sHID}, {sT0}, 10
    s_add_u32 {sHID}, {sHID}, {WS_HID}
    s_mul_i32 {sHIDr}, s55, {54*1024}
    s_mul_i32 {sT0}, {sW}, {14*1024}
    s_add_u32 {sHIDr}, {sHIDr}, {sT0}
    s_add_u32 {sHIDr}, {sHIDr}, {WS_HID}
    s_cmp_eq_u32 {sW}, 3
    s_cselect_b32 {sHIDt}, 10, 12
    s_lshl_b32 {sHIDt}, {sHIDt}, 10
    v_mul_u32_u24 v21, 1280, v20
    v_lshl_add_u32 v{vOs}, v31, 3, v21
    v_lshlrev_b32 v{vX1}, 1, v{vOs}
    s_mul_i32 {sOUT}, s55, {16*1280}
    s_mul_i32 {sT0}, s56, 80
    s_add_u32 {sOUT}, {sOUT}, {sT0}
    s_lshl_b32 {sT0}, {sW}, 5
    s_add_u32 {sOUT}, {sOUT}, {sT0}
    s_lshl_b32 {sX1r}, {sOUT}, 1
    s_add_u32 {sX1r}, {sX1r}, {WS_X1}
    s_lshl_b32 {sYr}, {sW}, 11
    s_lshl_b32 {sFB}, {sTEAM}, 7
    s_mov_b32 {sPRE}, 0
    s_mov_b32 s58, 0x33333333
    s_cmp_eq_u32 {sW}, 2
    s_cselect_b32 s58, s58, -1
    s_mov_b32 s59, s58
    s_barrier''')
    for t, m in enumerate(schedule(cfg)):
        e(f's_cmp_eq_u32 {sTEAM}, {t}\ns_cselect_b32 s14, {m & 0xffffffff}, s14\ns_cselect_b32 s15, {m >> 32}, s15')
    e(f's_ff1_i32_b64 {sS}, {sSEG}\ns_cmp_lt_i32 {sS}, 0\ns_cbranch_scc1 L_exit')
    trace(e, 9, vT)
    LS = e.lab('tslow')
    e(f's_cmp_eq_u32 {sFAST}, 0\ns_cbranch_scc1 {LS}')
    loop(e, '', cfg)
    e(f'{LS}:')
    loop(e, ' sc1', cfg)

def lane_sum2(e, a, b, t):
    for m in ('quad_perm:[1,0,3,2]', 'quad_perm:[2,3,0,1]', 'row_half_mirror', 'row_mirror'):
        e(f'v_add_f32_dpp v{a}, v{a}, v{a} {m} row_mask:0xf bank_mask:0xf\nv_add_f32_dpp v{b}, v{b}, v{b} {m} row_mask:0xf bank_mask:0xf')
    for sw in ('v_permlane16_swap_b32', 'v_permlane32_swap_b32'):
        e(f'''v_mov_b32 v{t}, v{a}
        v_mov_b32 v{t+1}, v{b}
        {sw} v{a}, v{t}
        {sw} v{b}, v{t+1}
        v_add_f32 v{a}, v{a}, v{t}
        v_add_f32 v{b}, v{b}, v{t+1}''')

def norm(e, X, a, b, t):
    e(f'v_add_f32 v{a}, v{X}, v{X+1}\nv_mul_f32 v{b}, v{X}, v{X}\nv_fmac_f32 v{b}, v{X+1}, v{X+1}')
    for i in range(2, 10): e(f'v_add_f32 v{a}, v{a}, v{X+i}\nv_fmac_f32 v{b}, v{X+i}, v{X+i}')
    lane_sum2(e, a, b, t)
    e(f'''v_mul_f32 v{a}, {f2u(1/640)}, v{a}
    v_mul_f32 v{b}, {f2u(1/640)}, v{b}
    v_fma_f32 v{b}, -v{a}, v{a}, v{b}
    v_max_f32 v{b}, 0, v{b}
    v_add_f32 v{b}, {f2u(1e-5)}, v{b}
    v_rsq_f32 v{b}, v{b}
    v_mul_f32 v{a}, v{a}, v{b}''')

def loop(e, sc, cfg):
    L = e.lab('team')
    def pt(i):
        if cfg.get('tprof'): e(f's_memtime s[{64+2*i}:{65+2*i}]')
    def obase(seg):
        e(f's_lshl_b32 {sT0}, {seg}, 18\ns_add_u32 s8, {sT0}, {sO}\ns_add_u32 s9, s8, 4096\ns_add_u32 s10, s8, {1 << 17}\ns_add_u32 s11, s9, {1 << 17}')
    def old(i):
        mt, k = divmod(i, 8)
        return f'buffer_load_dwordx4 {vr(A+4*(i%12),4)}, v{vA16}, {WS}, s{8 + 2*mt + k//4} offen offset:{1024*(k%4)} sc1'
    def ofetch(seg):
        obase(seg)
        e(f"""s_mul_i32 {sT0}, {seg}, 40960
        s_add_u32 {sT0}, {sT0}, {sX}
        s_lshl_b32 {sT3}, {sW}, 10
        s_add_u32 {sT0}, {sT0}, {sT3}
        s_add_u32 m0, {sT3}, {L_X}
        s_nop 0
        buffer_load_dwordx4 v{vA16}, s[16:19], {sT0} offen lds""")
        for i in range(12): e(old(i))
    G = e.lab('wog')
    e(f"""{L}:
    s_add_u32 {sN}, {sS}, 1
    s_mov_b32 {sB}, {sS if cfg.get('fresh') else sTEAM}
    s_cmp_lg_u32 {sPRE}, 0
    s_cbranch_scc1 {G}
    s_mov_b32 {sT0}, {F_QA}""")
    pt(0)
    wait_flags(e, vQF, sT0, 3, sN, vT, sleep=1)
    ofetch(sS)
    e(f'{G}:')
    trace(e, 64, vT, sS)
    pt(1)
    issued = 12
    for i in range(16):
        mt, k = divmod(i, 8)
        e(f's_waitcnt vmcnt({issued-1-i})')
        for t in range(5):
            a = vr(ACC + 4*(5*mt + t), 4)
            e(f'v_mfma_f32_16x16x32_bf16 {a}, {R4(WO(k,t))}, {vr(A+4*(i%12),4)}, {"0" if k == 0 else a}')
        if issued < 16: e(old(issued)); issued += 1
        if 9 <= i < 14: e(f'ds_write_b128 v{vRW}, {vr(ACC+4*(i-9),4)} offset:{L_RED+1024*(i-9)}')
    pt(2)
    e(f's_mul_i32 {sT0}, {sB}, {32*10240}\ns_add_u32 {sT1}, {sT0}, {sAP}')
    for i in range(5, 10): e(f'ds_write_b128 v{vRW}, {vr(ACC+4*i,4)} offset:{L_RED+1024*i}')
    e('s_waitcnt lgkmcnt(0)\ns_barrier')
    Lk = e.lab('wo2')
    def rrd(j):
        for w in range(4): e(f'ds_read_b128 {vr(A+16*j+4*w,4)}, v{vRR} offset:{L_RED + 10240*w + 4096*j}')
    def rfin(j):
        b = A + 16*j
        e(f'''s_add_u32 {sT2}, {sW}, {4*j}
        s_cmp_ge_u32 {sT2}, 5
        s_cselect_b32 {sT3}, {16*10240 - 5*64}, 0
        s_lshl_b32 {sT2}, {sT2}, 6
        s_add_u32 {sT2}, {sT2}, {sT3}
        s_add_u32 {sT2}, {sT2}, {sT1}''')
        for h in (0, 2):
            e(f'''v_pk_add_f32 {vr(b+h,2)}, {vr(b+h,2)}, {vr(b+4+h,2)}
            v_pk_add_f32 {vr(b+8+h,2)}, {vr(b+8+h,2)}, {vr(b+12+h,2)}
            v_pk_add_f32 {vr(b+h,2)}, {vr(b+h,2)}, {vr(b+8+h,2)}''')
        e(f'buffer_store_dwordx4 {vr(b,4)}, v{vAPs}, {WS}, {sT2} offen{sc}')
    pt(3)
    rrd(0); rrd(1); rrd(2)
    e('s_waitcnt lgkmcnt(8)'); rfin(0)
    e(f's_waitcnt lgkmcnt(4)'); rfin(1)
    e(f's_waitcnt lgkmcnt(0)\ns_cmp_ge_u32 {sW}, 2\ns_cbranch_scc1 {Lk}')
    rfin(2)
    Lln = e.lab('lnskip')
    e(f'''{Lk}:
    s_waitcnt vmcnt(0)
    s_barrier
    s_cmp_lg_u32 {sW}, 0
    s_cbranch_scc1 {Lln}''')
    set_flag(e, sFWO, sN, vT, sc)
    trace(e, 128, vT, sS)
    pt(4)
    P = A; XB = A + 40; GA = ACC; SB = ACC + 10; CB = ACC + 20; a_, b_, t_ = ACC + 30, ACC + 31, ACC + 32
    e(f'''s_mul_i32 {sT1}, {sB}, 40960
    v_lshlrev_b32 v{vT+1}, 1, v{vA4}
    v_add_u32 v{vT+2}, {L_PAR}, v{vT+1}
    v_add_u32 v{vT+3}, {L_X}, v{vA4}''')
    for j in range(5): e(f'ds_read_b32 v{XB+j}, v{vT+3} offset:{256*j}')
    e('s_waitcnt lgkmcnt(0)')
    for n, b in enumerate((GA, SB, CB)):
        for j in range(5): e(f'ds_read_b64 {vr(b+2*j,2)}, v{vT+2} offset:{2560*n + 512*j}')
    e(f's_add_u32 {sT2}, {sFB}, {F_WO}')
    wait_flags(e, vA4, sT2, 0xffffffff, sN, vT)
    pt(5)
    e(f's_add_u32 s60, {sT0}, {sAPr}\ns_add_u32 s61, s60, 2560\ns_add_u32 s62, s60, 5120\ns_add_u32 s63, s60, 7680')
    for j in range(5):
        for g in range(4): e(f'buffer_load_dwordx2 {vr(P+10*g+2*j,2)}, v{vT+1}, {WS}, s{60+g} offen offset:{512*j} sc1')
    e(f's_lshl_b32 {sT2}, {sT1}, 1\ns_add_u32 {sT2}, {sT2}, {sX1}\ns_waitcnt lgkmcnt(0)')
    for j in range(5):
        p = P + 2*j
        e(f'''s_waitcnt vmcnt({16-4*j+j})
        v_pk_add_f32 {vr(p,2)}, {vr(p,2)}, {vr(p+10,2)}
        v_pk_add_f32 {vr(p+20,2)}, {vr(p+20,2)}, {vr(p+30,2)}
        v_lshlrev_b32 v{p+10}, 16, v{XB+j}
        v_and_b32 v{p+11}, 0xffff0000, v{XB+j}
        v_pk_add_f32 {vr(p,2)}, {vr(p,2)}, {vr(p+20,2)}
        v_pk_fma_f32 {vr(p,2)}, {vr(p,2)}, {vr(GA+2*j,2)}, {vr(p+10,2)}
        buffer_store_dwordx2 {vr(p,2)}, v{vT+1}, {WS}, {sT2} offen offset:{512*j}{sc}''')
    H2 = P + 10
    pt(6)
    norm(e, P, a_, b_, t_)
    for i in range(10): e(f'v_fma_f32 v{H2+i}, v{P+i}, v{b_}, -v{a_}')
    for j in range(5): e(f'v_pk_fma_f32 {vr(H2+2*j,2)}, {vr(H2+2*j,2)}, {vr(CB+2*j,2)}, {vr(SB+2*j,2)}')
    norm(e, H2, a_, b_, t_)
    e(f's_add_u32 {sT2}, {sT1}, {sY}')
    for j in range(5):
        e(f'''v_fma_f32 v{H2+2*j}, v{H2+2*j}, v{b_}, -v{a_}
        v_fma_f32 v{H2+2*j+1}, v{H2+2*j+1}, v{b_}, -v{a_}
        v_cvt_pk_bf16_f32 v{XB+j}, v{H2+2*j}, v{H2+2*j+1}
        buffer_store_dword v{XB+j}, v{vYs}, {WS}, {sT2} offen{sc}''')
        if j < 4: e(f's_add_u32 {sT2}, {sT2}, 8192')
    pt(7)
    e('s_waitcnt vmcnt(0)')
    set_flag(e, sFLN, sN, vT, sc)
    trace(e, 192, vT, sS)
    e(f's_add_u32 {sT2}, {sFB}, {F_LN}')
    wait_flags(e, vA4, sT2, 0xffffffff, sN, vT)
    Lm2 = e.lab('m1skip')
    e(f'''{Lln}:
    s_barrier
    s_mul_i32 {sT1}, {sB}, 40960
    s_cmp_ge_u32 {sCU}, 27
    s_cbranch_scc1 {Lm2}''')
    pt(8)
    e(f's_add_u32 {sT2}, {sT1}, {sYr}')
    for j in range(10):
        if j % 2 == 0: e(f's_add_u32 m0, {sYr}, {L_Y + 4096*j}\ns_add_u32 s60, {sT2}, {WS_Y + 4096*j}')
        e(f'buffer_load_dwordx4 v{vA16}, {WS}, s60 offen offset:{1024*(j%2)} sc1 lds')
    e(f'''v_lshrrev_b32 v{vT+1}, 8, v{vA16}
    v_lshlrev_b32 v{vT+1}, 4, v{vT+1}
    s_lshl_b32 {sT3}, {sW}, 6
    s_add_u32 {sT3}, {sT3}, {L_PAR + 10240}
    v_add_u32 v{vT+1}, {sT3}, v{vT+1}
    ds_read_b128 {vr(ACC+8,4)}, v{vT+1}
    v_xor_b32 v{vT+2}, 64, v{vYr}
    v_xor_b32 v{vT+3}, 0x80, v{vYr}
    v_xor_b32 v{vT+4}, 0xc0, v{vYr}
    s_mul_i32 {sT2}, {sB}, {108*1024}
    s_add_u32 s60, {sT2}, {sHID}
    s_waitcnt vmcnt(6) lgkmcnt(0)
    s_barrier''')
    D = 8
    pt(9)
    def yrd(i): k, mt = divmod(i, 2); return f'ds_read_b128 {vr(A+4*(i%(D+2)),4)}, v{(vYr, vT+2, vT+3, vT+4)[k%4]} offset:{8192*(k//4) + 4096*mt}'
    for i in range(D): e(yrd(i))
    for i in range(40):
        k, mt = divmod(i, 2)
        if i + D in (16, 32): e(f's_waitcnt vmcnt({2 if i + D == 16 else 0})\ns_barrier')
        if i + D < 40: e(yrd(i+D))
        e(f's_waitcnt lgkmcnt({min(D, 39-i)})')
        a = vr(ACC+4*mt, 4)
        e(f'v_mfma_f32_16x16x32_bf16 {a}, {R4(W1(k))}, {vr(A+4*(i%(D+2)),4)}, {vr(ACC+8,4) if k == 0 else a}')
    pt(10)
    c0 = -2*math.sqrt(2/math.pi)*math.log2(math.e)
    e(f's_mov_b32 s62, {f2u(c0*0.044715)}\nv_mov_b32 v{vT+1}, {f2u(c0)}')
    U = ACC + 12
    for i in range(8): e(f'v_mul_f32 v{U+i}, v{ACC+i}, v{ACC+i}')
    for i in range(8): e(f'v_fma_f32 v{U+i}, v{U+i}, s62, v{vT+1}')
    for i in range(8): e(f'v_mul_f32 v{U+i}, v{U+i}, v{ACC+i}')
    for i in range(8): e(f'v_exp_f32 v{U+i}, v{U+i}')
    for i in range(8): e(f'v_add_f32 v{U+i}, 1.0, v{U+i}')
    for i in range(8): e(f'v_rcp_f32 v{U+i}, v{U+i}')
    for i in range(8): e(f'v_mul_f32 v{U+i}, v{U+i}, v{ACC+i}')
    for i in range(4): e(f'v_cvt_pk_bf16_f32 v{ACC+i}, v{U+2*i}, v{U+2*i+1}')
    Lf = e.lab('m1f')
    pt(11)
    e(f'''v_permlane16_swap_b32 v{ACC}, v{ACC+2}
    v_permlane16_swap_b32 v{ACC+1}, v{ACC+3}
    buffer_store_dwordx4 {vr(ACC,4)}, v{vHs}, {WS}, s60 offen{sc}
    s_waitcnt vmcnt(0)
    s_barrier
    s_cmp_lg_u32 {sW}, 0
    s_cbranch_scc1 {Lm2}''')
    set_flag(e, sFM1, sN, vT, sc)
    trace(e, 256, vT, sS)
    pt(12)
    AC2 = 72; X1 = 84; B2 = 88; GB = 92
    e(f'''{Lm2}:
    s_lshl_b32 {sT2}, {sT1}, 1
    s_add_u32 {sT2}, {sT2}, {sX1r}
    buffer_load_dwordx4 {vr(X1,4)}, v{vX1}, {WS}, {sT2} offen sc1
    v_and_b32 v{vT+1}, 48, v{vA16}
    s_lshl_b32 {sT3}, {sW}, 6
    v_add_u32 v{vT+1}, {sT3}, v{vT+1}
    s_mul_i32 {sT3}, s56, 160
    v_add_u32 v{vT+2}, {sT3}, v{vT+1}
    v_add_u32 v{vT+1}, {L_PAR}, v{vT+1}
    v_add_u32 v{vT+2}, {L_PAR}, v{vT+2}
    ds_read_b128 {vr(B2,4)}, v{vT+1} offset:{10240+256}
    ds_read_b128 {vr(GB,4)}, v{vT+2} offset:7680
    s_add_u32 {sT2}, {sFB}, {F_M1}''')
    wait_flags(e, vA4, sT2, (1 << 27) - 1, sN, vT)
    pt(13)
    e(f'''s_mul_i32 {sT2}, {sB}, {108*1024}
    s_add_u32 s60, {sT2}, {sHIDr}
    s_add_u32 s61, s60, 4096
    s_add_u32 s62, s60, 8192
    s_add_u32 s63, s60, {sHIDt}''')
    for k in range(14): e(f'buffer_load_dwordx4 {vr(A+4*k,4)}, v{vA16}, {WS}, s{60+k//4} offen offset:{1024*(k%4)} sc1')
    e(f"""s_mov_b32 {sT0}, {F_QA}
    s_mov_b64 exec, 3
    buffer_load_dword v{vT}, v{vQF}, {WS}, {sT0} offen sc1
    s_mov_b64 exec, -1""")
    for k in range(14):
        e(f's_waitcnt vmcnt({14-k})')
        for t in range(3):
            a = vr(AC2+4*t, 4)
            e(f'v_mfma_f32_16x16x32_bf16 {a}, {R4(W2(k,t))}, {vr(A+4*k,4)}, {"0" if k == 0 else a}')
    pt(14)
    e(f"""s_mul_i32 {sT1}, {sS}, 40960
    s_add_u32 {sT2}, {sT1}, {sOUT}
    s_bitset0_b64 {sSEG}, {sS}
    s_ff1_i32_b64 s12, {sSEG}
    s_mov_b32 {sPRE}, 0""")
    for t in range(3): e(f'ds_write_b128 v{vRW}, {vr(AC2+4*t,4)} offset:{L_RED+1024*t}')
    Le = e.lab('m2e'); Lnp = e.lab('nopre')
    e(f"""s_mov_b64 exec, 3
    s_waitcnt vmcnt(0)
    v_cmp_ge_u32 vcc, s12, v{vT}
    s_mov_b64 exec, -1
    s_cbranch_vccnz {Lnp}""")
    if cfg.get('pre', 1):
        ofetch('s12')
        e(f's_mov_b32 {sPRE}, 1')
    e(f"""{Lnp}:
    s_waitcnt lgkmcnt(0)
    s_barrier
    s_cmp_eq_u32 {sW}, 3
    s_cbranch_scc1 {Le}""")
    E = 64
    for w in range(4): e(f'ds_read_b128 {vr(E+4*w,4)}, v{vRR} offset:{L_RED + 10240*w}')
    e('s_waitcnt lgkmcnt(0)')
    for h in (0, 2):
        e(f"""v_pk_add_f32 {vr(E+h,2)}, {vr(E+h,2)}, {vr(E+4+h,2)}
        v_pk_add_f32 {vr(E+8+h,2)}, {vr(E+8+h,2)}, {vr(E+12+h,2)}
        v_pk_add_f32 {vr(E+h,2)}, {vr(E+h,2)}, {vr(B2+h,2)}
        v_pk_add_f32 {vr(E+h,2)}, {vr(E+h,2)}, {vr(E+8+h,2)}
        v_pk_fma_f32 {vr(E+h,2)}, {vr(E+h,2)}, {vr(GB+h,2)}, {vr(X1+h,2)}""")
    e(f'''v_cvt_pk_bf16_f32 v{vT+1}, v{E}, v{E+1}
    v_cvt_pk_bf16_f32 v{vT+2}, v{E+2}, v{E+3}
    s_mov_b64 exec, s[58:59]
    buffer_store_dwordx2 {vr(vT+1,2)}, v{vOs}, s[20:23], {sT2} offen
    s_mov_b64 exec, -1
    {Le}:
    s_barrier''')
    trace(e, 320, vT, sS)
    pt(15)
    if cfg.get('tprof'):
        X = e.lab('tp')
        e(f's_cmp_lg_u32 {sS}, {cfg["tprof"]}\ns_cbranch_scc1 {X}\ns_waitcnt lgkmcnt(0)')
        for i in range(16): e(f'v_mov_b32 v{E+i}, s{64+2*i}')
        e(f's_lshl_b32 {sT0}, {sCU}, 2\ns_add_u32 {sT0}, {sT0}, {sW}\ns_lshl_b32 {sT0}, {sT0}, 6\ns_add_u32 {sT0}, {sT0}, {WS_DBG}\ns_mov_b64 exec, 1')
        for j in range(4): e(f'buffer_store_dwordx4 {vr(E+4*j,4)}, off, {WS}, {sT0} offset:{16*j}')
        e(f's_mov_b64 exec, -1\n{X}:')
    e(f'''
    s_mov_b32 {sS}, s12
    s_cmp_lt_u32 {sS}, 64
    s_cbranch_scc1 {L}''')
    diag(e, 60, vT+1)
    e('s_branch L_exit')
```

```python
import sys
from asmlib import Asm
from common import *
from role_r import gen_R, RCfg
from role_g import gen_KV, gen_QA
from role_t import gen_T
NAME = 'adaLN_cond__memory_aug_recurrent_mem_tr__mixer_channel_mlp__prompt_kernel'
REF = 'adaLN_cond__memory_aug_recurrent_mem_tr__mixer_channel_mlp__prompt.s'
def gen(head='', **kw):
    rc = RCfg(); rc.standalone = 0
    for k, v in kw.items():
        if hasattr(rc, k): setattr(rc, k, v)
    e = Asm()
    TRACE[0] = kw.get('trace', 0); DIAG[0] = kw.get('diag', 0)
    e(f'''s_cmp_lt_u32 s2, 256
    s_cbranch_scc1 L_start
    L_exit:
    s_endpgm
    L_start:
    s_load_dwordx2 s[4:5], s[0:1], {KA['ws']}
    s_load_dwordx2 {DBG}, s[0:1], {KA['dbg']}
    v_lshrrev_b32 v1, 6, v0
    v_readfirstlane_b32 {sW}, v1
    s_mov_b32 s6, {WS_BYTES}
    s_mov_b32 s7, 0x20000
    s_mov_b32 {sSPIN}, {kw.get('spin', 100000)}
    s_waitcnt lgkmcnt(0)''')
    e(f'''s_getreg_b32 {sGRP}, hwreg(HW_REG_XCC_ID, 0, 3)
    s_lshr_b32 {sIDX}, s2, 3
    s_mov_b32 {sOWN}, 0''')
    pm = sum(g << (4*x) for x, g in enumerate(kw.get('xmap', (0,1,2,3,4,5,6,7))))
    e(f's_lshl_b32 s8, {sGRP}, 2\ns_lshr_b32 {sGRP}, {pm}, s8\ns_and_b32 {sGRP}, {sGRP}, 7')
    if kw.get('fake') == 1: e(f's_mov_b32 {sGRP}, 3')
    if kw.get('fake') == 2: e(f's_and_b32 {sGRP}, {sGRP}, 6')
    trace(e, 0, 1)
    if DIAG[0]: e('s_memrealtime s[100:101]\ns_waitcnt lgkmcnt(0)\ns_mov_b32 s94, s100')
    e('L_dispatch:')
    if 'solo' in kw: e(f's_lshl_b32 s8, 1, {sGRP}\ns_and_b32 s8, s8, {kw["solo"]}\ns_cbranch_scc0 L_exit')
    e(f'''s_cmp_ge_u32 {sGRP}, 5
    s_cbranch_scc1 L_team
    s_cmp_eq_u32 {sGRP}, 4
    s_cbranch_scc1 L_qa
    s_cmp_eq_u32 {sGRP}, 3
    s_cbranch_scc1 L_v
    s_cmp_eq_u32 {sGRP}, 2
    s_cbranch_scc1 L_k
    s_mov_b32 s27, {sGRP}''')
    gen_R(e, rc)
    reclaim(e)
    e('L_k:'); gen_KV(e, 'k')
    e('L_v:'); gen_KV(e, 'v')
    e('L_qa:'); gen_QA(e, kw)
    e('L_team:'); gen_T(e, kw)
    if kw.get('slow'):
        e.lines = [(f's_mov_b32 {sFAST}, 0' if l.startswith(f's_cselect_b32 {sFAST},') else l) for l in e.lines]
    global PROF
    PROF = []
    if kw.get('prof'):
        m0, m1, every, skip = kw['prof']
        e.resolve_waits()
        a = e.lines.index(f'; MARK {m0}') + skip; b = e.lines.index(f'; MARK {m1}')
        new = []; n = 0
        for k, l in enumerate(e.lines[a+1:b]):
            if k % every == 0 and n < 16:
                new.append(f's_memtime s[{64+2*n}:{65+2*n}]'); n += 1; PROF.append([])
            new.append(l); PROF[-1].append(l)
        if n < 16: new.append(f's_memtime s[{64+2*n}:{65+2*n}]'); PROF.append([])
        e.lines[a+1:b] = new
    e.lines = [l for l in e.lines if not l.startswith('; MARK')]
    body = e.finalize()
    return f'''{head}; @launch grid=(256,1,1) block=(256,1,1) lds=163840
.amdgcn_target "amdgcn-amd-amdhsa--gfx950"
.text
.globl {NAME}
.p2align 8
.type {NAME},@function
{NAME}:
{body}.section .rodata,"a"
.p2align 6
.amdhsa_kernel {NAME}
  .amdhsa_next_free_vgpr 512
  .amdhsa_next_free_sgpr 102
  .amdhsa_accum_offset 256
  .amdhsa_group_segment_fixed_size 0
  .amdhsa_kernarg_size 136
  .amdhsa_user_sgpr_count 2
  .amdhsa_user_sgpr_kernarg_segment_ptr 1
  .amdhsa_system_sgpr_workgroup_id_x 1
.end_amdhsa_kernel
'''
if __name__ == '__main__':
    head = ''.join(l for l in open(REF + '.ref') if l.startswith(';') and '@launch' not in l and 'Override' not in l and 'grid=ceil' not in l)
    open(sys.argv[1] if len(sys.argv) > 1 else REF, 'w').write(gen(head))
```
